```python
import torch

def _softmax(x, axis=-1):
    return torch.softmax(x, dim=axis)
def _gelu(x):
    return torch.nn.functional.gelu(x, approximate="tanh")
def _silu(x):
    return torch.nn.functional.silu(x)
def _sigmoid(x):
    return torch.sigmoid(x)
def _layernorm(x, axis=-1, eps=1e-5):
    m = x.mean(dim=axis, keepdim=True)
    v = x.var(dim=axis, keepdim=True, unbiased=False)
    return (x - m) / torch.sqrt(v + eps)
def _scatter_add(tgt, idx, src, axis=0):
    return tgt.clone().index_add_(axis, idx, src)
def _segment_sum(src, seg, n):
    out = torch.zeros((n,) + src.shape[1:], dtype=src.dtype)
    return out.index_add_(0, seg, src)
def _pad(x, pw):
    flat = tuple(v for pair in reversed(pw) for v in pair)
    return torch.nn.functional.pad(x, flat)

kernel_name = 'interleave_layers__spectral_fnet__dense_activation_relu__prompt'

def setup_inputs():

    _w = (lambda a: (lambda t: t.to(torch.bfloat16) if t.is_floating_point() else t)(torch.as_tensor(a)))
    def _A_setup():
        B, S, D = 1, 2048, 512
        ns = torch.arange(S)[:, None] * torch.arange(S)[None, :]
        nd = torch.arange(D)[:, None] * torch.arange(D)[None, :]
        Ws_re = torch.cos(-2.0 * torch.pi * ns / S).to(float)
        Ws_im = torch.sin(-2.0 * torch.pi * ns / S).to(float)
        Wd_re = torch.cos(-2.0 * torch.pi * nd / D).to(float)
        Wd_im = torch.sin(-2.0 * torch.pi * nd / D).to(float)
        return {
            "x": _w((lambda *s: torch.randn(*s, dtype=torch.bfloat16) * 0.05)(B, S, D)),
            "dft_seq_re": _w(Ws_re),
            "dft_seq_im": _w(Ws_im),
            "dft_hid_re": _w(Wd_re),
            "dft_hid_im": _w(Wd_im),
        }
    _A_in = _A_setup()

    def _B_setup():
        B, S, D, Dff = 1, 2048, 512, 1792
        return {
            "x": _w((lambda *s: torch.randn(*s, dtype=torch.bfloat16) * 0.05)(B, S, D)),
            "w1": _w((lambda *s: torch.randn(*s, dtype=torch.bfloat16) * 1.6)(D, Dff)),
            "w2": _w((lambda *s: torch.randn(*s, dtype=torch.bfloat16) * 1.6)(Dff, D)),
        }
    _B_in = _B_setup()

    return {
        "A_x": _A_in["x"],
        "A_dft_seq_re": _A_in["dft_seq_re"],
        "A_dft_seq_im": _A_in["dft_seq_im"],
        "A_dft_hid_re": _A_in["dft_hid_re"],
        "A_dft_hid_im": _A_in["dft_hid_im"],
        "B_x": _B_in["x"],
        "B_w1": _B_in["w1"],
        "B_w2": _B_in["w2"],
    }

def reference(A_x, A_dft_seq_re, A_dft_seq_im, A_dft_hid_re, A_dft_hid_im, B_x, B_w1, B_w2):
    def _A_ref(x, dft_seq_re, dft_seq_im, dft_hid_re, dft_hid_im):
        a = torch.einsum("bsd,ed->bse", x, dft_hid_re)
        b = torch.einsum("bsd,ed->bse", x, dft_hid_im)
        y = torch.einsum("ts,bse->bte", dft_seq_re, a) - torch.einsum("ts,bse->bte", dft_seq_im, b)
        return y

    def _B_ref(x, w1, w2):
        h = torch.einsum("bsd,df->bsf", x, w1)
        zero = torch.zeros_like(h)
        h = torch.maximum(h, zero)
        return torch.einsum("bsf,fd->bsd", h, w2)

    x = A_x
    x = x + _A_ref(_layernorm(x, axis=-1), A_dft_seq_re, A_dft_seq_im, A_dft_hid_re, A_dft_hid_im)
    x = x + _B_ref(_layernorm(x, axis=-1), B_w1, B_w2)
    x = x + _A_ref(_layernorm(x, axis=-1), A_dft_seq_re, A_dft_seq_im, A_dft_hid_re, A_dft_hid_im)
    x = x + _B_ref(_layernorm(x, axis=-1), B_w1, B_w2)
    return x
```

```python
import re
REG = re.compile(r'\b([vas])\[(\d+):(\d+)\]|\b([vas])(\d+)\b|\b(vcc|exec|m0)\b')
def regs(tok):
    out = set()
    for m in REG.finditer(tok):
        if m.group(1):
            for i in range(int(m.group(2)), int(m.group(3)) + 1): out.add(m.group(1) + str(i))
        elif m.group(4): out.add(m.group(4) + m.group(5))
        else: out.add(m.group(6))
    return out
TRANS = ('v_exp', 'v_log', 'v_rcp', 'v_rsq', 'v_sqrt', 'v_sin', 'v_cos')
class I:
    def __init__(s, line):
        s.line = line
        t = line.split(';')[0].strip()
        s.op = t.split()[0] if t else ''
        rest = t[len(s.op):].strip()
        ops = [x.strip() for x in re.split(r',(?![^\[]*\])', rest)] if rest else []
        s.ops = ops
        op = s.op
        s.mfma = op.startswith('v_mfma')
        s.valu = op.startswith('v_') and not s.mfma
        s.vmem = op.startswith(('buffer_', 'global_'))
        s.ds = op.startswith('ds_')
        s.salu = op.startswith('s_')
        s.dpp = ('dpp' in op) or any(k in t for k in ('quad_perm', 'row_ror', 'row_shr', 'row_mirror', 'row_half_mirror', 'row_bcast', 'row_shl'))
        s.perml = op.startswith('v_permlane')
        s.trans = op.startswith(TRANS)
        s.dot = op.startswith('v_dot')
        s.rdlane = op.startswith(('v_readlane', 'v_readfirstlane'))
        s.w = set(); s.r = set(); s.srcC = set(); s.AB = set()
        allr = [regs(o) for o in ops]
        if s.mfma:
            s.w = allr[0]; s.AB = allr[1] | allr[2]; s.srcC = allr[3]; s.r = s.AB | s.srcC
        elif s.valu:
            s.w = set(allr[0]); s.r = set().union(*allr[1:]) if len(allr) > 1 else set()
            if s.perml: s.w |= allr[1]; s.r |= allr[0]
            if 'fmac' in op or 'dot2c' in op or s.dpp or 'mac' in op: s.r |= allr[0]
            if op.startswith('v_cndmask') and len(ops) == 3: s.r.add('vcc')
            if op.startswith('v_cmp') and len(ops) == 2: s.r |= allr[0]; s.w = {'vcc'}
        elif s.vmem:
            isst = 'store' in op
            lds = ' lds' in t
            if isst or lds: s.r = set().union(*allr)
            else: s.w = allr[0]; s.r = set().union(*allr[1:])
            s.st4 = isst and ('x4' in op or 'x3' in op)
            s.stdata = allr[0] if isst else set()
            s.lds = lds
        elif s.ds:
            if op.startswith('ds_read'): s.w = allr[0]; s.r = set().union(*allr[1:])
            else: s.r = set().union(*allr)
        elif s.salu:
            if ops and not op.startswith(('s_cmp', 's_waitcnt', 's_cbranch', 's_branch', 's_nop', 's_bar', 's_endpgm', 's_sleep', 's_setprio')):
                s.w = allr[0]; s.r = set().union(*allr[1:]) if len(allr) > 1 else set()
        s.slots = 1
        if op == 's_nop': s.slots = int(ops[0]) + 1
def need(p, c):
    n = 0
    vw = {x for x in p.w if x[0] in 'va' and x != 'vcc'}
    sw = {x for x in p.w if x[0] == 's' or x == 'vcc'}
    if p.valu:
        if c.mfma and vw & c.r: n = max(n, 3 if p.dot else 2)
        if c.valu and c.dpp and vw & c.r: n = max(n, 2)
        if c.perml and vw & c.r: n = max(n, 2)
        if c.rdlane and vw & c.r: n = max(n, 1)
        if c.vmem and sw & c.r: n = max(n, 5)
        if c.valu and sw & c.r: n = max(n, 4 if c.rdlane else 2)
        if p.trans and (c.valu or c.mfma) and vw & c.r: n = max(n, 1 if c.valu else 2)
        if p.dot and (c.valu or c.vmem or c.ds) and vw & (c.r | c.w):
            if not (c.op == p.op and vw & c.r and not (vw & (regs(c.ops[1]) | regs(c.ops[2])))): n = max(n, 3)
        if 'exec' in p.w and (c.valu or c.mfma): n = max(n, 5)
    if p.mfma:
        if c.mfma:
            if p.w & c.AB: n = max(n, 8)
            if p.w & c.srcC and p.w != c.srcC: n = max(n, 6)
            if p.w & c.w and p.w != c.srcC: n = max(n, 8)
        elif (c.valu or c.vmem or c.ds) and p.w & (c.r | c.w): n = max(n, 8)
        if c.valu and p.srcC & c.w: n = max(n, 3)
    if p.vmem and getattr(p, 'st4', False) and (c.valu or c.mfma) and p.stdata & c.w: n = max(n, 2)
    if p.salu and 'm0' in p.w and c.vmem and getattr(c, 'lds', False): n = max(n, 1)
    if p.salu and 'exec' in p.w and c.mfma: n = max(n, 4)
    if p.salu and 'exec' in p.w and c.valu and c.dpp: n = max(n, 5)
    return n
class Asm:
    def __init__(s): s.L = []; s.q = []; s.every = 0; s.cnt = 0; s.nspr = 0
    def sprinkle(s, items, every):
        s.q = list(items); s.every = every; s.cnt = 0; s.nspr = 0
    def flush(s):
        while s.q: s.L.extend(x.strip() for x in s.q.pop(0).split('\n')); s.nspr += 1
    def __call__(s, txt):
        for ln in txt.strip('\n').split('\n'):
            ln = ln.strip()
            if ln:
                s.L.append(ln)
                if s.q and not ln.endswith(':'):
                    s.cnt += 1
                    if s.cnt >= s.every:
                        s.cnt = 0; s.L.extend(x.strip() for x in s.q.pop(0).split('\n')); s.nspr += 1
    def finish(s):
        out = []; hist = []
        nn = 0
        for ln in s.L:
            t = ln.split(';')[0].strip()
            if not t or t.endswith(':') or t.startswith('.'):
                out.append(ln); continue
            c = I(ln)
            dist = 0; add = 0
            for p in reversed(hist):
                if dist >= 12: break
                add = max(add, need(p, c) - dist)
                dist += p.slots
            if add > 0:
                nn += 1
                while add > 0:
                    k = min(add, 16)
                    nop = 's_nop %d' % (k - 1); out.append('  ' + nop); hist.append(I(nop)); add -= k
            out.append('  ' + ln); hist.append(c)
            if len(hist) > 24: hist = hist[-24:]
        return '\n'.join(out) + '\n', nn
```

```python
import sys, numpy as np
sys.path.insert(0, 'work')
from asmlib import Asm
KN = "interleave_layers__spectral_fnet__dense_activation_relu__prompt"
AD0, AD1, X1O, X2O, XNO, HO, STO, FLO, DBO = 0x0, 0x200000, 0x400000, 0x600000, 0x800000, 0xA00000, 0x1200000, 0x1300000, 0x1380000
WSZ = 0x1400000
LAYOFF = 0
LW1 = 0; LS = 114688
def bf16(x):
    u = np.ascontiguousarray(x, dtype=np.float32).view(np.uint32)
    return ((u + 0x7FFF + ((u >> 16) & 1)) >> 16).astype(np.uint16)
def s1_of_rho(r): return ((r >> 3) >> 2) + 16 * ((r >> 3) & 3) + 2 * (r & 7)
def tables():
    l = np.arange(64); n = l & 15; q = l >> 4; kk = np.arange(8)
    T = []
    for mt in range(4):
        for ks in range(2):
            m = (16 * mt + n)[:, None]; rho = 32 * ks + 8 * q[:, None] + kk[None, :]; s1 = s1_of_rho(rho)
            v = np.where(m <= 32, np.cos(2*np.pi*((m*s1) % 64)/64), -np.sin(2*np.pi*(((m-32)*s1) % 64)/64))
            T.append(bf16(v).reshape(-1).view(np.uint32))
    ri = (q >> 1)[:, None]; d1 = 8 * (q & 1)[:, None] + kk[None, :]; th = 2*np.pi*((d1 * n[:, None]) % 16)/16
    T.append(bf16(np.where(ri == 0, np.cos(th), np.sin(th))).reshape(-1).view(np.uint32))
    T.append(bf16(np.where(ri == 0, -np.sin(th), np.cos(th))).reshape(-1).view(np.uint32))
    d2 = 16 * (kk >> 2)[None, :] + 4 * q[:, None] + (kk & 3)[None, :]
    for T2 in range(2):
        e2 = (16 * T2 + n)[:, None]; ph = 2*np.pi*((d2 * e2) % 32)/32
        T.append(bf16(np.cos(ph)).reshape(-1).view(np.uint32)); T.append(bf16(np.sin(ph)).reshape(-1).view(np.uint32))
    for fn in (np.cos, np.sin):
        for Tt in range(2):
            dd = 16 * Tt + 4 * q[:, None] + np.arange(4)[None, :]
            T.append(fn(2*np.pi*(dd * n[:, None])/512).astype(np.float32).reshape(-1).view(np.uint32))
    return np.concatenate(T)
TF64, TF16, TH32, TTW = 0, 8192, 10240, 14336

class Gen:
    def __init__(s, stop=None, stamps=False, force_slow=False, fine=None):
        s.finel = 0
        if fine and fine[-1] == '1': fine = fine[:-1]; s.finel = 1
        s.fine = fine; s.lay = 0; s.pretouch = False; s.cpf = False; s.nt = ''; s.adf = ''; s.wsoff = 0; s.stf = ''; s.ldf = ' sc1'; s.htouch = 0; s.pf1 = 1; s.pf2 = 1; s.nw2b = 28; s.every = 7
        s.a = Asm(); s.stop = stop; s.stamps = stamps; s.nst = 0; s.lab = 0; s.force_slow = force_slow
    def label(s, p='L'):
        s.lab += 1; return f'{p}_{s.lab}'
    def fstamp(s, name, grp):
        if s.fine == grp and s.lay == s.finel: s.stamp(name)
    def stamp(s, name=''):
        if not s.stamps: return
        if s.fine and name not in ('start', 'end') and not name.startswith(s.fine) and name not in ('beta poll', 'gamma poll', 'bar done'): return
        k = 60 + 2 * s.nst; s.nst += 1
        assert k + 1 <= 97
        s.a(f's_memrealtime s[{k}:{k+1}]\ns_waitcnt lgkmcnt(0)')
    def dual(s, fn):
        a = s.a; l1 = s.label('SLOW'); l2 = s.label('JOIN')
        a(f's_cmp_eq_u32 s43, 0\ns_cbranch_scc1 {l1}')
        fn(s.stf); a(f's_branch {l2}\n{l1}:'); fn(' sc1'); a(f'{l2}:')
    def poll(s, vaddr, vtmp, sexp, maskxcc=False):
        a = s.a; lp = s.label('POLL'); dn = s.label('PD')
        a(f's_mov_b32 s58, 0x40000\n{lp}:')
        a(f'buffer_load_dword v{vtmp}, v{vaddr}, s[28:31], 0 offen sc1\ns_waitcnt vmcnt(0)')
        if maskxcc:
            a(f'v_and_b32 v{vtmp+1}, 0xfffffff0, v{vtmp}\nv_cmp_ne_u32 vcc, s{sexp}, v{vtmp+1}')
        else:
            a(f'v_cmp_ne_u32 vcc, s{sexp}, v{vtmp}')
        a(f's_nop 4\ns_cbranch_vccz {dn}\ns_sub_u32 s58, s58, 1\ns_cmp_lg_u32 s58, 0\ns_cbranch_scc1 {lp}\n{dn}:')
    def wave_signal(s, arr, soff):
        a = s.a
        a(f's_add_u32 s57, s42, {16*arr}\nv_mov_b32 v222, s57\nv_mov_b32 v223, s{soff}\ns_waitcnt vmcnt(0)\ns_mov_b64 exec, 1')
        s.dual(lambda f: a(f'buffer_store_dword v222, v223, s[28:31], 0 offen{f}'))
        a('s_mov_b64 exec, -1')
    def signal(s, arr, soff_expr_sgpr, phase, dual=True, xcc=False, vm=0):
        a = s.a; sk = s.label('SIG')
        a(f's_waitcnt vmcnt({vm})\ns_barrier')
        a(f's_cmp_lg_u32 s41, 0\ns_cbranch_scc1 {sk}')
        a(f's_add_u32 s57, s42, {16*phase}')
        if xcc: a('s_add_u32 s57, s57, s59')
        a(f'v_mov_b32 v5, s57\nv_mov_b32 v6, {FLO + arr*0x8000}\nv_add_u32 v6, s{soff_expr_sgpr}, v6')
        a('s_mov_b64 exec, 1')
        if dual: s.dual(lambda f: a(f'buffer_store_dword v5, v6, s[28:31], 0 offen{f}'))
        else: a('buffer_store_dword v5, v6, s[28:31], 0 offen sc1')
        a(f's_mov_b64 exec, -1\n{sk}:')

    def prologue(s):
        a = s.a
        a(f'''
s_cmp_ge_u32 s2, 256
s_cbranch_scc1 END
s_load_dwordx4 s[4:7], s[0:1], 0
s_load_dwordx2 s[12:13], s[0:1], 16
s_load_dwordx4 s[16:19], s[0:1], 48
s_load_dwordx4 s[24:27], s[0:1], 64
s_load_dwordx2 s[28:29], s[0:1], 80
s_getreg_b32 s59, hwreg(HW_REG_XCC_ID, 0, 4)
s_getpc_b64 s[44:45]
PCL:
s_add_u32 s44, s44, TABLE-PCL
s_addc_u32 s45, s45, 0
v_lshrrev_b32 v5, 6, v0
v_and_b32 v0, 63, v0
s_and_b32 s36, s2, 7
s_lshr_b32 s37, s2, 3
v_readfirstlane_b32 s41, v5
s_lshr_b32 s47, s37, 3
s_lshl_b32 s38, s36, 2
s_add_u32 s38, s38, s47
s_and_b32 s39, s37, 7
s_and_b32 s40, s37, 15
s_lshr_b32 s47, s37, 4
s_lshl_b32 s47, s47, 1
s_lshl_b32 s46, s36, 2
s_add_u32 s46, s46, s47
s_lshr_b32 s47, s41, 1
s_add_u32 s46, s46, s47
v_and_b32 v1, 15, v0
v_lshrrev_b32 v2, 4, v0
v_bfe_u32 v3, v0, 2, 2
v_and_b32 v4, 3, v0
s_waitcnt lgkmcnt(0)
s_mov_b32 s8, s6
s_mov_b32 s9, s7
s_mov_b32 s32, s26
s_mov_b32 s33, s27
s_mov_b32 s20, s18
s_mov_b32 s21, s19
s_mov_b32 s6, 0x200000
s_mov_b32 s7, 0x20000
s_mov_b32 s10, 0x800000
s_mov_b32 s11, 0x20000
s_mov_b32 s14, 0x800000
s_mov_b32 s15, 0x20000
s_mov_b32 s18, 1835008
s_mov_b32 s19, 0x20000
s_mov_b32 s22, 1835008
s_mov_b32 s23, 0x20000
s_mov_b32 s26, 0x200000
s_mov_b32 s27, 0x20000
s_mov_b32 s30, {WSZ}
s_mov_b32 s31, 0x20000
s_mov_b32 s34, 256
s_mov_b32 s35, 0x20000
s_mov_b32 s43, 0
s_add_u32 s28, s28, {s.wsoff}
s_addc_u32 s29, s29, 0
''')
        s.stamp('start')
        if s.stamps: a('s_memtime s[98:99]\ns_waitcnt lgkmcnt(0)')
        sk = s.label('NON')
        a(f'''
s_cmp_lg_u32 s2, 0
s_cbranch_scc1 {sk}
s_cmp_lg_u32 s41, 0
s_cbranch_scc1 {sk}
s_memrealtime s[56:57]
s_waitcnt lgkmcnt(0)
s_lshl_b32 s56, s56, 8
s_or_b32 s56, s56, 0x80000000
v_mov_b32 v5, s56
v_mov_b32 v6, 0
s_mov_b64 exec, 1
buffer_store_dword v5, v6, s[32:35], 0 offen sc1
s_mov_b64 exec, -1
{sk}:''')
    def alpha_consts(s, base, t=5):
        a = s.a
        a(f's_lshr_b32 s47, s41, 1\ns_lshl_b32 s47, s47, 12\nv_lshlrev_b32 v{t}, 4, v0\nv_add_u32 v{t}, s47, v{t}')
        for k in range(4): a(f'global_load_dwordx4 v[{base+4*k}:{base+4*k+3}], v{t}, s[44:45] offset:{1024*k}')
    def alpha_in1(s):
        a = s.a
        a(f'''
v_lshrrev_b32 v6, 2, v0
v_bfe_u32 v7, v6, 3, 1
s_lshl_b32 s47, s41, 1
v_add_u32 v7, s47, v7
v_lshrrev_b32 v8, 2, v7
v_and_b32 v7, 3, v7
v_lshl_add_u32 v8, v7, 4, v8
v_and_b32 v7, 7, v6
v_lshl_add_u32 v8, v7, 1, v8
v_lshlrev_b32 v8, 5, v8
v_add_u32 v8, s38, v8
v_lshlrev_b32 v8, 10, v8
v_lshl_add_u32 v8, v4, 4, v8
s_lshl_b32 s47, s39, 7''')
        for i in range(16):
            a(f'buffer_load_dwordx4 v[{16+4*i}:{19+4*i}], v8, s[4:7], s47 offen')
            if i < 15: a('s_add_u32 s47, s47, 64\ns_and_b32 s47, s47, 1023')
    def alpha_ln1(s):
        a = s.a
        a('s_mov_b32 s47, 0x3f803f80\nv_mov_b32 v9, 0\nv_mov_b32 v10, 0\nv_mov_b32 v11, 0\nv_mov_b32 v12, 0')
        for i in range(0, 64, 2):
            a(f'v_dot2_f32_bf16 v9, v{16+i}, s47, v9\nv_dot2_f32_bf16 v10, v{16+i}, v{16+i}, v10')
            a(f'v_dot2_f32_bf16 v11, v{17+i}, s47, v11\nv_dot2_f32_bf16 v12, v{17+i}, v{17+i}, v12')
        a('''v_add_f32 v9, v9, v11
v_add_f32 v10, v10, v12
v_add_f32_dpp v9, v9, v9 quad_perm:[1,0,3,2] row_mask:0xf bank_mask:0xf
v_add_f32_dpp v10, v10, v10 quad_perm:[1,0,3,2] row_mask:0xf bank_mask:0xf
v_add_f32_dpp v9, v9, v9 quad_perm:[2,3,0,1] row_mask:0xf bank_mask:0xf
v_add_f32_dpp v10, v10, v10 quad_perm:[2,3,0,1] row_mask:0xf bank_mask:0xf''')
        s.finish_stats(9, 10)
        for i in range(8):
            r = 16 + i
            a(f'''v_lshlrev_b32 v11, 16, v{r}
v_and_b32 v12, 0xffff0000, v{r}
v_fma_f32 v11, v11, v9, v10
v_fma_f32 v12, v12, v9, v10
v_cvt_pk_bf16_f32 v{r}, v11, v12''')
        a(f'''
v_lshrrev_b32 v6, 2, v0
s_mul_i32 s47, s41, 12288
s_add_u32 s47, s47, {LS}
v_bfe_u32 v11, v6, 1, 1
v_bfe_u32 v12, v6, 3, 1
v_lshl_or_b32 v11, v12, 1, v11
v_lshlrev_b32 v11, 5, v11
v_lshl_add_u32 v11, v4, 3, v11
v_lshl_add_u32 v11, v6, 7, v11
v_add_u32 v11, s47, v11
v_xor_b32 v12, 32, v11
v_xor_b32 v13, 64, v11
v_xor_b32 v14, 96, v11
ds_write_b64 v11, v[16:17]
ds_write_b64 v12, v[18:19]
ds_write_b64 v13, v[20:21]
ds_write_b64 v14, v[22:23]''')
    def finish_stats(s, vs, vq):
        s.a(f'''
v_mul_f32 v{vs}, 0x3b000000, v{vs}
v_mul_f32 v{vq}, 0x3b000000, v{vq}
v_fma_f32 v{vq}, -v{vs}, v{vs}, v{vq}
v_max_f32 v{vq}, 0, v{vq}
v_add_f32 v{vq}, 0x3727c5ac, v{vq}
v_rsq_f32 v{vq}, v{vq}
s_nop 0
v_mul_f32 v{vs}, v{vs}, v{vq}
v_sub_f32 v{vs}, 0, v{vs}
v_swap_b32 v{vs}, v{vq}''')
    def alpha_core(s, cb, adoff):
        a = s.a
        a(f'''
s_and_b32 s47, s41, 1
s_lshl_b32 s47, s47, 1
v_lshrrev_b32 v6, 1, v3
v_and_b32 v7, 1, v2
v_lshl_or_b32 v6, v7, 1, v6
v_xor_b32 v6, s47, v6
v_lshlrev_b32 v6, 5, v6
v_lshl_add_u32 v6, v4, 3, v6
v_and_b32 v7, 1, v2
v_lshl_add_u32 v7, v7, 3, v3
v_lshl_add_u32 v6, v7, 7, v6
v_lshrrev_b32 v7, 1, v2
v_mul_u32_u24 v7, 12288, v7
v_add_u32 v6, v7, v6
v_add_u32 v6, {LS}, v6
v_xor_b32 v7, 32, v6''')
        A = 96
        for dt in range(2):
            for ks in range(2):
                for h in range(2):
                    r = A + 8*dt + 4*ks + 2*h
                    a(f'ds_read_b64_tr_b16 v[{r}:{r+1}], v{6+dt} offset:{24576*ks+512*h}')
        a(f'''
s_lshr_b32 s47, s41, 1
s_lshl_b32 s47, s47, 20
s_lshl_b32 s48, s38, 10
s_add_u32 s47, s47, s48
s_lshl_b32 s48, s39, 7
s_add_u32 s47, s47, s48
s_and_b32 s48, s41, 1
s_lshl_b32 s48, s48, 6
s_add_u32 s47, s47, s48
s_add_u32 s47, s47, {adoff}
v_lshlrev_b32 v8, 15, v1
v_lshl_add_u32 v8, v2, 4, v8
s_add_u32 s48, s47, 0x80000
s_waitcnt lgkmcnt(0)''')
        C = 112
        for mt in range(2):
            for dt in range(2):
                c = C + 8*mt + 4*dt
                for ks in range(2):
                    src = '0' if ks == 0 else f'v[{c}:{c+3}]'
                    a(f'v_mfma_f32_16x16x32_bf16 v[{c}:{c+3}], v[{A+8*dt+4*ks}:{A+8*dt+4*ks+3}], v[{cb+8*mt+4*ks}:{cb+8*mt+4*ks+3}], {src}')
        for mt in range(2):
            c = C + 8*mt
            for k in range(4): a(f'v_cvt_pk_bf16_f32 v{c+k}, v{c+2*k}, v{c+2*k+1}')
            a(f'buffer_store_dwordx4 v[{c}:{c+3}], v8, s[28:31], s{47+mt} offen sc1')
    def get_nonce(s):
        a = s.a; lp = s.label('NP'); dn = s.label('ND')
        a(f'''s_mov_b32 s58, 0x40000
v_mov_b32 v5, 0
{lp}:
buffer_load_dword v6, v5, s[32:35], 0 offen sc1
s_waitcnt vmcnt(0)
v_readfirstlane_b32 s42, v6
s_cmp_lg_u32 s42, 0
s_cbranch_scc1 {dn}
s_sub_u32 s58, s58, 1
s_cmp_lg_u32 s58, 0
s_cbranch_scc1 {lp}
{dn}:''')
    def g_load(s):
        a = s.a
        a('''
s_lshr_b32 s47, s39, 2
s_and_b32 s48, s39, 3
s_lshl_b32 s48, s48, 4
s_add_u32 s47, s47, s48
s_lshl_b32 s47, s47, 5
s_add_u32 s47, s47, s38
s_lshl_b32 s47, s47, 12
v_lshrrev_b32 v5, 1, v1
v_lshlrev_b32 v5, 18, v5
v_lshl_add_u32 v5, v2, 4, v5
buffer_load_dwordx4 v[80:83], v5, s[8:11], s47 offen
buffer_load_dwordx4 v[84:87], v5, s[12:15], s47 offen''')
    def g_make(s):
        a = s.a
        a('''
s_cmp_eq_u32 s38, 0
s_cselect_b32 s50, 0, -1
s_cmp_ge_u32 s39, 4
s_cselect_b32 s51, 0x80008000, 0
s_xor_b32 s52, s51, 0x80008000
v_and_b32 v5, 1, v1
v_cmp_eq_u32 vcc, 1, v5''')
        for k in range(4):
            a(f'''v_cndmask_b32 v6, v{80+k}, v{84+k}, vcc
v_xor_b32 v7, s52, v{84+k}
v_xor_b32 v8, s51, v{80+k}
v_cndmask_b32 v7, v7, v8, vcc
v_and_b32 v7, s50, v7
v_accvgpr_write_b32 a{224+k}, v6
v_accvgpr_write_b32 a{228+k}, v7''')
    def w1_load(s):
        a = s.a
        for k in range(7):
            a(f'''v_lshlrev_b32 v5, 4, v0
v_add_u32 v5, {1024*k}, v5
v_mul_u32_u24 v6, 0x4925, v5
v_lshrrev_b32 v6, 22, v6
v_mul_u32_u24 v7, 224, v6
v_sub_u32 v5, v5, v7
v_mul_u32_u24 v6, 3584, v6
v_add_u32 v{88+k}, v5, v6''')
    def w1_issue(s):
        a = s.a
        a(f'''s_mul_i32 s54, s40, 224
s_mul_i32 s55, s41, {4*32*3584}
s_add_u32 s54, s54, s55''')
        for blk in range(4):
            for k in range(7):
                r = 112 + 28*blk + 4*k
                a(f'buffer_load_dwordx4 a[{r}:{r+3}], v{88+k}, s[16:19], s54 offen{s.nt}')
            if blk < 3: a(f's_add_u32 s54, s54, {32*3584}')
    def w1_transpose(s):
        a = s.a
        a(f'''s_mul_i32 s47, s41, {4*7168}
s_add_u32 s47, s47, {LW1}
v_lshlrev_b32 v86, 4, v0
v_add_u32 v86, s47, v86
v_lshl_add_u32 v87, v2, 2, v3
v_mul_u32_u24 v87, 224, v87
v_lshl_add_u32 v87, v4, 3, v87
v_add_u32 v87, s47, v87''')
        for blk in range(4):
            for k in range(7):
                r = 112 + 28*blk + 4*k
                a(f'ds_write_b128 v86, a[{r}:{r+3}] offset:{7168*blk + 1024*k}')
            for ft in range(7):
                for h in range(2):
                    r = 112 + 28*blk + 4*ft + 2*h
                    a(f'ds_read_b64_tr_b16 a[{r}:{r+1}], v87 offset:{7168*blk + 32*ft + 3584*h}')
        for blk in range(4):
            a(f's_waitcnt lgkmcnt({0 if blk == 3 else 0})') if blk == 0 else None
            for k in range(7):
                r = 112 + 28*blk + 4*k
                a(f'ds_write_b128 v86, a[{r}:{r+3}] offset:{7168*blk + 1024*k}')
    def touch(s, srd, vd):
        s.a(f'''s_mul_i32 s54, s37, 57344
s_lshl_b32 s55, s41, 14
s_add_u32 s54, s54, s55
v_lshlrev_b32 v{vd}, 7, v0
buffer_load_dword v{vd+1}, v{vd}, s[{srd}:{srd+3}], s54 offen''')
        sk = s.label('TCH')
        s.a(f'''s_cmp_eq_u32 s41, 3
s_cselect_b32 s55, 0, 8192
s_add_u32 s54, s54, s55
buffer_load_dword v{vd+2}, v{vd}, s[{srd}:{srd+3}], s54 offen''')
    def w1_store(s):
        a = s.a
        a(f'''s_mul_i32 s47, s41, {4*7168}
s_add_u32 s47, s47, {LW1}
v_lshlrev_b32 v5, 4, v0
v_add_u32 v5, s47, v5''')
        for blk in range(4):
            for k in range(7):
                r = 112 + 28*blk + 4*k
                a(f'ds_write_b128 v5, a[{r}:{r+3}] offset:{7168*blk + 1024*k}')
    def w2_setup(s, i0, vt, st):
        s.a(f'''v_lshrrev_b32 v{vt}, 3, v0
v_lshlrev_b32 v{vt}, 10, v{vt}
v_and_b32 v{vt+1}, 7, v0
v_lshl_add_u32 v{vt}, v{vt+1}, 4, v{vt}
s_mul_i32 s{st}, s41, {448*1024}
s_lshl_b32 s49, s39, 7
s_add_u32 s{st}, s{st}, s49
s_add_u32 s{st}, s{st}, {8192*i0}''')
    def w2_issue(s, i0, i1, vt, st):
        for i in range(i0, i1):
            s.a(f'buffer_load_dwordx4 a[{4*i}:{4*i+3}], v{vt}, s[20:23], s{st} offen{s.nt}\ns_add_u32 s{st}, s{st}, 8192')
    def w2t_ops(s, ks):
        ops = [f'ds_write_b128 v230, a[{16*ks+4*k}:{16*ks+4*k+3}] offset:{1024*k}' for k in range(4)]
        for nt in range(4):
            for h in range(2):
                r = 16*ks + 4*nt + 2*h
                ops.append(f'ds_read_b64_tr_b16 a[{r}:{r+1}], v{231+nt} offset:{2048*h}')
        return ops
    def w2_transpose(s, ks0, ks1, lbase):
        a = s.a
        a(f'''
s_lshl_b32 s47, s41, 12
s_add_u32 s47, s47, {lbase}
v_bfe_u32 v230, v0, 1, 2
v_bfe_u32 v231, v0, 4, 2
v_xor_b32 v230, v230, v231
v_lshlrev_b32 v230, 5, v230
v_and_b32 v231, 1, v0
v_lshl_add_u32 v230, v231, 4, v230
v_lshrrev_b32 v231, 3, v0
v_lshl_add_u32 v230, v231, 7, v230
v_add_u32 v230, s47, v230
v_and_b32 v231, 1, v2
v_lshrrev_b32 v232, 1, v3
v_lshl_or_b32 v231, v231, 1, v232
v_lshlrev_b32 v231, 5, v231
v_lshl_add_u32 v231, v4, 3, v231
v_lshl_add_u32 v232, v2, 2, v3
v_lshl_add_u32 v231, v232, 7, v231
v_add_u32 v231, s47, v231
v_xor_b32 v232, 32, v231
v_xor_b32 v233, 64, v231
v_xor_b32 v234, 96, v231''')
        for ks in range(ks0, ks1):
            for op in s.w2t_ops(ks): a(op)
    def beta_consts(s):
        a = s.a
        a(f'v_lshlrev_b32 v5, 4, v0\nv_add_u32 v5, {TF16}, v5\nv_add_u32 v6, 4096, v5')
        for k in range(10):
            r = 8 + 4*k
            if k < 4: a(f'global_load_dwordx4 v[{r}:{r+3}], v5, s[44:45] offset:{1024*k}')
            elif k < 8: a(f'global_load_dwordx4 v[{r}:{r+3}], v6, s[44:45] offset:{1024*(k-4)}')
        a('v_add_u32 v6, 4096, v6')
        for k in (8, 9):
            r = 8 + 4*k
            a(f'global_load_dwordx4 v[{r}:{r+3}], v6, s[44:45] offset:{1024*(k-8)}')
    def beta_addr(s, layer):
        a = s.a
        a(f'''
s_lshl_b32 s47, s41, 8
v_lshlrev_b32 v48, 10, v2
v_lshl_add_u32 v48, v1, 4, v48
v_add_u32 v48, s47, v48
s_lshl_b32 s47, s41, 13
s_add_u32 s47, s47, {LS}
v_lshrrev_b32 v49, 1, v1
v_xor_b32 v49, v49, v2
v_lshlrev_b32 v49, 5, v49
v_and_b32 v50, 1, v1
v_lshl_add_u32 v49, v50, 4, v49
v_lshl_add_u32 v49, v2, 8, v49
v_add_u32 v49, s47, v49
v_xor_b32 v50, 128, v49
v_and_b32 v51, 1, v2
v_lshl_or_b32 v51, v51, 2, v3
v_lshlrev_b32 v51, 5, v51
v_lshl_add_u32 v51, v4, 3, v51
v_lshl_add_u32 v52, v2, 3, v3
v_lshl_add_u32 v51, v52, 8, v51
v_add_u32 v51, s47, v51''')
        for dt in range(1, 8): a(f'v_xor_b32 v{51+dt}, {32*dt}, v51')
        UB = LS + 32768
        a(f'''
s_lshl_b32 s47, s41, 8
s_lshr_b32 s48, s41, 1
s_lshl_b32 s48, s48, 5
s_add_u32 s47, s47, s48
v_lshlrev_b32 v59, 3, v2
v_add_u32 v59, s47, v59
v_lshlrev_b32 v60, 3, v1
v_xor_b32 v59, v59, v60
v_lshl_add_u32 v59, v1, 10, v59
v_add_u32 v59, {UB}, v59
v_xor_b32 v60, 32, v59
v_xor_b32 v61, 64, v59
v_xor_b32 v62, 96, v59''')
        a(f'''
s_lshl_b32 s47, s41, 2
v_lshrrev_b32 v63, 1, v2
v_add_u32 v63, s47, v63
v_and_b32 v64, 1, v2
v_mul_u32_u24 v64, 544, v64
v_lshl_add_u32 v64, v3, 6, v64
v_lshl_add_u32 v64, v4, 3, v64
v_lshlrev_b32 v65, 3, v63
v_xor_b32 v64, v64, v65
v_lshl_add_u32 v63, v63, 10, v64
v_add_u32 v63, {UB}, v63
v_xor_b32 v64, 32, v63
v_xor_b32 v65, 16, v63
v_add_u32 v65, 2048, v65
v_xor_b32 v66, 32, v65''')
        a(f'''
v_lshlrev_b32 v67, 5, v1
v_lshl_add_u32 v67, v2, 3, v67
s_lshl_b32 s47, s38, 16
s_lshl_b32 s48, s39, 13
s_add_u32 s47, s47, s48
s_lshl_b32 s48, s41, 11
s_add_u32 s47, s47, s48
v_add_u32 v68, s47, v67''')
        if layer == 0:
            a('''
s_lshr_b32 s47, s39, 2
s_and_b32 s48, s39, 3
s_lshl_b32 s48, s48, 4
s_add_u32 s47, s47, s48
s_lshl_b32 s48, s41, 2
s_add_u32 s47, s47, s48
s_lshl_b32 s47, s47, 5
s_add_u32 s47, s47, s38
s_lshl_b32 s47, s47, 10
v_add_u32 v69, s47, v67
v_add_u32 v70, 0x10000, v69''')
        XI = LS + 8448
        a(f'''
s_lshl_b32 s47, s41, 1
v_lshrrev_b32 v71, 1, v1
v_xor_b32 v72, s47, v71
v_lshlrev_b32 v72, 4, v72
v_lshl_add_u32 v72, v71, 9, v72
v_lshl_add_u32 v72, v2, 7, v72
v_and_b32 v71, 1, v1
v_lshl_add_u32 v71, v71, 3, v72
v_add_u32 v71, {XI}, v71
v_xor_b32 v72, 16, v71''')
        a(f'''
s_lshl_b32 s47, s41, 2
v_lshrrev_b32 v73, 5, v0
v_add_u32 v73, s47, v73
v_and_b32 v74, 7, v0
v_xor_b32 v75, v74, v73
v_and_b32 v75, 7, v75
v_lshlrev_b32 v75, 4, v75
v_lshl_add_u32 v75, v73, 9, v75
v_bfe_u32 v84, v0, 3, 2
v_lshl_add_u32 v75, v84, 7, v75
v_lshlrev_b32 v73, 10, v73
v_lshl_add_u32 v73, v84, 8, v73
v_lshl_add_u32 v73, v74, 4, v73
s_lshl_b32 s47, s38, 16
s_lshr_b32 s48, s39, 1
s_lshl_b32 s48, s48, 14
s_add_u32 s47, s47, s48
s_and_b32 s48, s39, 1
s_lshl_b32 s48, s48, 7
s_add_u32 s47, s47, s48
v_add_u32 v74, s47, v73
v_add_u32 v73, {XI}, v75
v_xor_b32 v85, 32, v73''')
    def beta_resid(s, layer):
        a = s.a
        for rr in range(2):
            for T2 in range(2):
                r = 76 + 4*rr + 2*T2
                if layer == 0: a(f'buffer_load_dwordx2 v[{r}:{r+1}], v{69+rr}, s[4:7], 0 offen offset:{512*T2}')
                else: a(f'buffer_load_dwordx2 v[{r}:{r+1}], v68, s[28:31], s49 offen offset:{1024*rr+512*T2}{s.ldf}')
    def beta_main(s, layer):
        a = s.a
        ad = AD0 if layer == 0 else AD1
        a(f'''
s_sub_u32 s47, 32, s38
s_cmp_lt_u32 s39, 4
s_cselect_b32 s47, s38, s47
s_add_u32 s48, s47, 32
s_cmp_eq_u32 s38, 0
s_cselect_b32 s48, 0, s48
s_lshl_b32 s47, s47, 15
s_lshl_b32 s48, s48, 15
s_add_u32 s47, s47, {ad}
s_add_u32 s48, s48, {ad}
s_mov_b32 s49, {X2O}''')
        D = 96
        for p in range(2):
            for i in range(8):
                r = D + 32*p + 4*i
                a(f'buffer_load_dwordx4 v[{r}:{r+3}], v48, s[28:31], s{47+p} offen{s.adf}')
                if i < 7: a(f's_add_u32 s{47+p}, s{47+p}, 4096')
        nw = 0; nr = 0; spr = []
        if layer == 0:
            s.beta_resid(layer); nr = 4
            if s.pf2 == 2: s.touch(20, 246); nw += 2
            a(f's_mul_i32 s54, s40, 224\ns_mul_i32 s55, s41, {4*32*3584}\ns_add_u32 s54, s54, s55')
            s.w2_setup(0, 86, 55)
            for blk in range(4):
                for k in range(7):
                    r = 112 + 28*blk + 4*k
                    spr.append(f'buffer_load_dwordx4 a[{r}:{r+3}], v{88+k}, s[16:19], s54 offen' + (f'\nv_add_u32 v{88+k}, {32*3584}, v{88+k}' if blk < 3 else ''))
            for i in range(s.nw2b):
                spr.append(f'buffer_load_dwordx4 a[{4*i}:{4*i+3}], v86, s[20:23], s55 offen\nv_add_u32 v86, 8192, v86')
        T = 160
        C = 192
        for p in range(2):
            a(f's_waitcnt vmcnt({(8 if p == 0 else 0) + nr + nw + a.nspr * (p == 1 and layer == 0)})')
            if p == 0 and spr: a.sprinkle(spr, s.every)
            if p == 0: s.fstamp('beta AD0 arrived', 'beta')
            for i in range(8):
                r = D + 32*p + 4*i
                a(f'ds_write_b128 v{49 + ((i>>1)&1)}, v[{r}:{r+3}] offset:{1024*i}')
            for dt in range(8):
                for h in range(2):
                    r = T + 4*dt + 2*h
                    a(f'ds_read_b64_tr_b16 v[{r}:{r+1}], v{51+dt} offset:{1024*h}')
            for dt in range(8):
                a(f's_waitcnt lgkmcnt({14-2*dt})')
                src = '0' if p == 0 else f'v[{C+4*dt}:{C+4*dt+3}]'
                a(f'v_mfma_f32_16x16x32_bf16 v[{C+4*dt}:{C+4*dt+3}], v[{T+4*dt}:{T+4*dt+3}], a[{224+4*p}:{227+4*p}], {src}')
        for dt in range(8):
            c = C + 4*dt
            a(f'v_cvt_pk_bf16_f32 v{c}, v{c}, v{c+1}\nv_cvt_pk_bf16_f32 v{c+1}, v{c+2}, v{c+3}')
            a(f'ds_write_b64 v{59+(dt&3)}, v[{c}:{c+1}] offset:{128*(dt>>2)}')
        if layer == 0:
            a(f's_lshl_b32 s47, s41, 13\ns_add_u32 s47, s47, {LS}\ns_lshr_b32 s48, s41, 1\ns_mul_i32 s48, s48, 8188\ns_add_u32 s47, s47, s48\nv_mov_b32 v96, s47\nv_mov_b32 v97, s53\nds_write_b32 v96, v97')
        a('s_waitcnt lgkmcnt(0)\ns_barrier')
        if layer == 0:
            a(f'v_lshlrev_b32 v96, 13, v4\nv_lshrrev_b32 v97, 1, v4\nv_mul_u32_u24 v97, 8188, v97\nv_add_u32 v96, v96, v97\nv_add_u32 v96, {LS}, v96\nds_read_b32 v97, v96\ns_waitcnt lgkmcnt(0)\nv_cmp_ne_u32 vcc, 0, v97\ns_nop 4\ns_cmp_eq_u64 vcc, 0\ns_cselect_b32 s43, 1, 0')
            if s.force_slow: a('s_mov_b32 s43, 0')
        if layer == 1: s.beta_resid(layer)
        s.fstamp('beta U done', 'beta')
        for rr in range(2):
            for Tt in range(2):
                for h in range(2):
                    r = D + 8*rr + 4*Tt + 2*h
                    a(f'ds_read_b64_tr_b16 v[{r}:{r+1}], v{63+2*rr+Tt} offset:{256*h}')
        P = 112
        for rr in range(2):
            a(f's_waitcnt lgkmcnt({4 if rr == 0 else 0})')
            for Tt in range(2):
                for ci in range(2):
                    p = P + 16*rr + 8*Tt + 4*ci
                    a(f'v_mfma_f32_16x16x32_bf16 v[{p}:{p+3}], v[{D+8*rr+4*Tt}:{D+8*rr+4*Tt+3}], v[{8+4*ci}:{11+4*ci}], 0')
        Q = 144
        for rr in range(2):
            for Tt in range(2):
                pr = P + 16*rr + 8*Tt; pi = pr + 4
                for jj in range(0, 4, 2):
                    tc = 32 + 4*Tt + jj; ts = 40 + 4*Tt + jj; t0 = 160 + 8*Tt + jj; t1 = t0 + 4
                    a(f'''v_pk_mul_f32 v[{t0}:{t0+1}], v[{pr+jj}:{pr+jj+1}], v[{tc}:{tc+1}]
v_pk_mul_f32 v[{t1}:{t1+1}], v[{pi+jj}:{pi+jj+1}], v[{tc}:{tc+1}]
v_pk_fma_f32 v[{t0}:{t0+1}], v[{pi+jj}:{pi+jj+1}], v[{ts}:{ts+1}], v[{t0}:{t0+1}]
v_pk_fma_f32 v[{t1}:{t1+1}], v[{pr+jj}:{pr+jj+1}], v[{ts}:{ts+1}], v[{t1}:{t1+1}] neg_lo:[1,0,0] neg_hi:[1,0,0]''')
                t0 = 160 + 8*Tt
                a(f'''v_cvt_pk_bf16_f32 v{Q+8*rr+2*Tt}, v{t0}, v{t0+1}
v_cvt_pk_bf16_f32 v{Q+8*rr+2*Tt+1}, v{t0+2}, v{t0+3}
v_cvt_pk_bf16_f32 v{Q+8*rr+4+2*Tt}, v{t0+4}, v{t0+5}
v_cvt_pk_bf16_f32 v{Q+8*rr+4+2*Tt+1}, v{t0+6}, v{t0+7}''')
        s.fstamp('beta twiddle done', 'beta')
        Y = 176
        for rr in range(2):
            for T2 in range(2):
                y = Y + 8*rr + 4*T2
                a(f'v_mfma_f32_16x16x32_bf16 v[{y}:{y+3}], v[{Q+8*rr}:{Q+8*rr+3}], v[{16+8*T2}:{19+8*T2}], 0')
            for T2 in range(2):
                y = Y + 8*rr + 4*T2
                a(f'v_mfma_f32_16x16x32_bf16 v[{y}:{y+3}], v[{Q+8*rr+4}:{Q+8*rr+7}], v[{20+8*T2}:{23+8*T2}], v[{y}:{y+3}]')
        a(f's_waitcnt vmcnt({min(63, nw + (a.nspr if layer == 0 else 0))})')
        for rr in range(2):
            for T2 in range(2):
                y = Y + 8*rr + 4*T2; x = 76 + 4*rr + 2*T2
                for k in range(2):
                    a(f'''v_lshlrev_b32 v96, 16, v{x+k}
v_and_b32 v97, 0xffff0000, v{x+k}
v_add_f32 v{y+2*k}, v{y+2*k}, v96
v_add_f32 v{y+2*k+1}, v{y+2*k+1}, v97''')
            y = Y + 8*rr; S_, Q_ = 100 + 2*rr, 101 + 2*rr
            a(f'v_add_f32 v{S_}, v{y}, v{y+1}\nv_mul_f32 v{Q_}, v{y}, v{y}\nv_fma_f32 v{Q_}, v{y+1}, v{y+1}, v{Q_}')
            for k in range(2, 8): a(f'v_add_f32 v{S_}, v{S_}, v{y+k}\nv_fma_f32 v{Q_}, v{y+k}, v{y+k}, v{Q_}')
        s.wave_reduce([100, 101, 102, 103], 104, rows=True)
        for rr in range(2):
            s.finish_stats(100 + 2*rr, 101 + 2*rr)
        for rr in range(2):
            y = Y + 8*rr
            for k in range(4): a(f'v_cvt_pk_bf16_f32 v{208+4*rr+k}, v{y+2*k}, v{y+2*k+1}')
            for k in range(8): a(f'v_fma_f32 v{y+k}, v{y+k}, v{100+2*rr}, v{101+2*rr}')
            for k in range(4): a(f'v_cvt_pk_bf16_f32 v{216+4*rr+k}, v{y+2*k}, v{y+2*k+1}')
        a.flush()
        a(f's_mov_b32 s47, {X1O + LAYOFF*layer}\ns_mov_b32 s48, {XNO + LAYOFF*layer}')
        s.fstamp('beta epilogue done', 'beta')
        for rr in range(2):
            for T2 in range(2):
                a(f'ds_write_b64 v{71+rr}, v[{216+4*rr+2*T2}:{217+4*rr+2*T2}] offset:{4096*T2}')
        def st1(f):
            for rr in range(2):
                for T2 in range(2):
                    a(f'buffer_store_dwordx2 v[{208+4*rr+2*T2}:{209+4*rr+2*T2}], v68, s[28:31], s47 offen offset:{1024*rr+512*T2}{f}')
        s.dual(st1)
        a('s_waitcnt lgkmcnt(0)\ns_barrier')
        a('ds_read_b128 v[216:219], v73\nds_read_b128 v[220:223], v85 offset:1024')
        def st2(f):
            a(f's_waitcnt lgkmcnt(1)\nbuffer_store_dwordx4 v[216:219], v74, s[28:31], s48 offen{f}')
            a(f's_waitcnt lgkmcnt(0)\nbuffer_store_dwordx4 v[220:223], v74, s[28:31], s48 offen offset:2048{f}')
        s.dual(st2)
        s.fstamp('beta stores issued', 'beta')
    def wave_reduce(s, rs, t, rows):
        a = s.a
        if rows:
            for ctl in ('quad_perm:[1,0,3,2]', 'quad_perm:[2,3,0,1]', 'row_half_mirror', 'row_mirror'):
                for r in rs: a(f'v_add_f32_dpp v{r}, v{r}, v{r} {ctl} row_mask:0xf bank_mask:0xf')
        for sw in ('v_permlane16_swap_b32', 'v_permlane32_swap_b32'):
            for k, r in enumerate(rs): a(f'v_mov_b32 v{t+k}, v{r}')
            for k, r in enumerate(rs): a(f'{sw} v{r}, v{t+k}')
            for k, r in enumerate(rs): a(f'v_add_f32 v{r}, v{r}, v{t+k}')
    def gamma(s):
        a = s.a
        XB, A, C = 8, 136, 192
        a(f'''
v_lshlrev_b32 v5, 4, v0
s_lshl_b32 s47, s46, 16
s_and_b32 s48, s41, 1
s_lshl_b32 s48, s48, 15
s_add_u32 s47, s47, s48
s_add_u32 s47, s47, {XNO + LAYOFF*s.lay}
s_add_u32 s48, s47, 16384''')
        issued = []
        def ldx(ks):
            for rt in range(2):
                r = XB + 8*ks + 4*rt
                a(f'buffer_load_dwordx4 v[{r}:{r+3}], v5, s[28:31], s{47+rt} offen offset:{1024*(ks&3)}{s.ldf}'); issued.append(ks)
            if (ks & 3) == 3 and ks < 15: a('s_add_u32 s47, s47, 4096\ns_add_u32 s48, s48, 4096')
        for ks in range(4): ldx(ks)
        nx = [4]; nw2 = [s.nw2b]
        if s.lay == 0: s.w2_setup(s.nw2b, 250, 55)
        a(f'''v_lshl_add_u32 v252, v2, 2, v3
v_mul_u32_u24 v252, 224, v252
v_lshl_add_u32 v252, v4, 3, v252
v_add_u32 v252, {LW1}, v252
v_add_u32 v253, 57344, v252''')
        def rd(n):
            ks = n // 7; ft = n % 7; b = 252 if ks < 8 else 253; o = 7168*(ks & 7) + 32*ft
            r = A + 4*(n % 7)
            for h in range(2): a(f'ds_read_b64_tr_b16 v[{r+2*h}:{r+2*h+1}], v{b} offset:{o + 3584*h}')
        for n in range(7): rd(n)
        for ks in range(16):
            last = max(k for k, t in enumerate(issued) if t == ks)
            a(f's_waitcnt vmcnt({len(issued) - 1 - last})')
            if ks in (0, 1, 2, 4, 8, 12): s.fstamp(f'gamma ks{ks}', 'gamma')
            for ft in range(7):
                n = 7*ks + ft
                a(f's_waitcnt lgkmcnt({2*min(6, 111-n)})')
                r = A + 4*(n % 7)
                for rt in range(2):
                    c = C + 8*ft + 4*rt
                    src = '0' if ks == 0 else f'v[{c}:{c+3}]'
                    a(f'v_mfma_f32_16x16x32_bf16 v[{c}:{c+3}], v[{r}:{r+3}], v[{XB+8*ks+4*rt}:{XB+8*ks+4*rt+3}], {src}')
                if n + 7 < 112: rd(n + 7)
                if ft in (1, 4):
                    if nx[0] < 16: ldx(nx[0]); nx[0] += 1
                    elif s.lay == 0 and nw2[0] < 56:
                        k = min((56 - s.nw2b + 19) // 20, 56 - nw2[0])
                        s.w2_issue(nw2[0], nw2[0] + k, 250, 55); issued.extend(['w']*k); nw2[0] += k
        if s.lay == s.finel: s.stamp('gamma mfma done')
        if s.lay == 0:
            s.w2_issue(nw2[0], 56, 250, 55)
        P = 8
        for ft in range(7):
            for rt in range(2):
                c = C + 8*ft + 4*rt; p = P + 16*rt + 2*ft
                a(f'v_cvt_pk_bf16_f32 v{p}, v{c}, v{c+1}\nv_cvt_pk_bf16_f32 v{p+1}, v{c+2}, v{c+3}')
                a(f'v_pk_max_i16 v{p}, v{p}, 0\nv_pk_max_i16 v{p+1}, v{p+1}, 0')
        a(f'''
s_mul_i32 s47, s46, 229376
s_and_b32 s48, s41, 1
s_mul_i32 s48, s48, {2*57344}
s_add_u32 s47, s47, s48
s_mul_i32 s48, s40, 7
s_lshr_b32 s48, s48, 1
s_lshl_b32 s48, s48, 10
s_add_u32 s47, s47, s48
s_add_u32 s47, s47, {HO + LAYOFF*s.lay}
s_add_u32 s48, s47, 57344''')
        a('v_lshlrev_b32 v250, 3, v0')
        od = s.label('ODD'); jn = s.label('GJ')
        a(f's_bitcmp1_b32 s40, 0\ns_cbranch_scc1 {od}')
        def st_even(f):
            for rt in range(2):
                p = P + 16*rt
                for k in range(3): a(f'buffer_store_dwordx4 v[{p+4*k}:{p+4*k+3}], v5, s[28:31], s{47+rt} offen offset:{1024*k}{f}')
                a(f'buffer_store_dwordx2 v[{p+12}:{p+13}], v250, s[28:31], s{47+rt} offen offset:3072{f}')
        s.dual(st_even)
        a(f's_branch {jn}\n{od}:')
        def st_odd(f):
            for rt in range(2):
                p = P + 16*rt
                a(f'buffer_store_dwordx2 v[{p}:{p+1}], v250, s[28:31], s{47+rt} offen offset:512{f}')
                for k in range(3): a(f'buffer_store_dwordx4 v[{p+2+4*k}:{p+5+4*k}], v5, s[28:31], s{47+rt} offen offset:{1024*(k+1)}{f}')
        s.dual(st_odd)
        a(f'{jn}:')
    def delta_addr(s):
        a = s.a
        a('''
s_lshl_b32 s47, s38, 16
s_lshl_b32 s48, s41, 14
s_add_u32 s47, s47, s48
s_lshl_b32 s48, s39, 7
s_add_u32 s47, s47, s48
v_lshlrev_b32 v6, 10, v1
v_lshl_add_u32 v6, v2, 3, v6
v_add_u32 v6, s47, v6
v_lshlrev_b32 v5, 4, v0''')
    def delta(s, layer):
        a = s.a
        C, R, X = 8, 72, 200
        a(f's_mov_b32 s49, {X1O + LAYOFF*layer}\nv_lshlrev_b32 v7, 3, v0')
        a(f's_mul_i32 s47, s38, 229376\ns_mul_i32 s48, s41, 14336\ns_add_u32 s47, s47, s48\ns_add_u32 s47, s47, {HO + LAYOFF*layer}')
        for sl in range(4):
            a(f's_add_u32 s48, s41, {sl}\ns_and_b32 s48, s48, 3\ns_mul_i32 s48, s48, 57344\ns_add_u32 s{50+sl}, s47, s48')
        issued = []
        def ld(st):
            for sl in range(4):
                r = R + 16*(st & 7) + 4*sl
                if st in (3, 10):
                    a(f'buffer_load_dwordx2 v[{r}:{r+1}], v7, s[28:31], s{50+sl} offen offset:{1024*(st&3)}{s.ldf}')
                    a(f'buffer_load_dwordx2 v[{r+2}:{r+3}], v7, s[28:31], s{50+sl} offen offset:{1024*(st&3)+512}{s.ldf}')
                    issued.extend([st, st])
                else:
                    a(f'buffer_load_dwordx4 v[{r}:{r+3}], v5, s[28:31], s{50+sl} offen offset:{1024*(st&3)}{s.ldf}')
                    issued.append(st)
            if (st & 3) == 3:
                for sl in range(4): a(f's_add_u32 s{50+sl}, s{50+sl}, 4096')
        for st in range(3): ld(st)
        nl = [3]
        for st in range(14):
            last = max(k for k, t in enumerate(issued) if t == st)
            ops = []
            if layer == 0:
                a(f's_waitcnt vmcnt({len(issued) - 1 - last}) lgkmcnt({12 if st < 13 else 0})')
                if st + 2 < 14: ops = s.w2t_ops(st + 2)
            else:
                a(f's_waitcnt vmcnt({len(issued) - 1 - last})')
            if st in (0, 1, 2, 4, 7, 8, 10, 13): s.fstamp(f'delta st{st}', 'delta')
            for sl in range(4):
                for nt in range(4):
                    c = C + 16*sl + 4*nt; r = R + 16*(st & 7) + 4*sl
                    src = '0' if st == 0 else f'v[{c}:{c+3}]'
                    a(f'v_mfma_f32_16x16x32_bf16 v[{c}:{c+3}], a[{16*st+4*nt}:{16*st+4*nt+3}], v[{r}:{r+3}], {src}')
                    if ops: a(ops.pop(0))
            for _ in range(2):
                if nl[0] < 14 and nl[0] <= st + 8: ld(nl[0]); nl[0] += 1
            if st == 6:
                for nt in range(4):
                    a(f'buffer_load_dwordx2 v[{X+2*nt}:{X+2*nt+1}], v6, s[28:31], s49 offen offset:{32*nt}{s.ldf}'); issued.append('x')
                if layer == 0: s.alpha_consts(208, 228); issued.extend(['c']*4)
        if layer == s.finel: s.stamp('delta mfma done')
        if layer == 0: a('s_barrier')
        a(f'v_add_u32 v72, {LS}, v5')
        for sl in range(1, 4):
            a(f's_add_u32 s47, s41, {sl}\ns_and_b32 s47, s47, 3\ns_mul_i32 s47, s47, 12288\nv_add_u32 v{72+sl}, s47, v72')
        a('s_mul_i32 s47, s41, 12288\nv_add_u32 v72, s47, v72')
        for sl in range(1, 4):
            for nt in range(4):
                c = C + 16*sl + 4*nt
                a(f'ds_write_b128 v{72+sl}, v[{c}:{c+3}] offset:{4096*(sl-1)+1024*nt}')
        a('s_waitcnt lgkmcnt(0)\ns_barrier')
        for sl in range(1, 4):
            for nt in range(4):
                c = C + 16*sl + 4*nt
                a(f'ds_read_b128 v[{c}:{c+3}], v72 offset:{4096*(sl-1)+1024*nt}')
        a('s_waitcnt vmcnt(0)')
        for nt in range(4):
            for k in range(2):
                a(f'''v_lshlrev_b32 v76, 16, v{X+2*nt+k}
v_and_b32 v77, 0xffff0000, v{X+2*nt+k}
v_add_f32 v{C+4*nt+2*k}, v{C+4*nt+2*k}, v76
v_add_f32 v{C+4*nt+2*k+1}, v{C+4*nt+2*k+1}, v77''')
        for sl in range(1, 4):
            a(f's_waitcnt lgkmcnt({4*(3-sl)})')
            for k in range(16): a(f'v_add_f32 v{C+k}, v{C+k}, v{C+16*sl+k}')
        for k in range(8): a(f'v_cvt_pk_bf16_f32 v{X+k}, v{C+2*k}, v{C+2*k+1}')
        if layer == 1:
            a('''
s_lshl_b32 s47, s41, 1
v_lshrrev_b32 v7, 3, v1
v_add_u32 v7, s47, v7
v_lshrrev_b32 v76, 2, v7
v_and_b32 v7, 3, v7
v_lshl_add_u32 v76, v7, 4, v76
v_and_b32 v7, 7, v1
v_lshl_add_u32 v76, v7, 1, v76
v_lshlrev_b32 v76, 5, v76
v_add_u32 v76, s38, v76
v_lshlrev_b32 v76, 10, v76
v_lshl_add_u32 v76, v2, 3, v76
s_lshl_b32 s47, s39, 7''')
            for nt in range(4): a(f'buffer_store_dwordx2 v[{X+2*nt}:{X+2*nt+1}], v76, s[24:27], s47 offen offset:{32*nt}')
            return
        a(f'v_add_f32 v76, v{C}, v{C+1}\nv_mul_f32 v77, v{C}, v{C}\nv_fma_f32 v77, v{C+1}, v{C+1}, v77')
        for k in range(2, 16): a(f'v_add_f32 v76, v76, v{C+k}\nv_fma_f32 v77, v{C+k}, v{C+k}, v77')
        s.wave_reduce([76, 77], 78, rows=False)
        a(f'''
s_lshl_b32 s47, s38, 13
s_lshl_b32 s48, s41, 11
s_add_u32 s47, s47, s48
s_add_u32 s47, s47, {STO}
s_lshl_b32 s48, s39, 4
s_add_u32 s48, s48, s47
v_lshlrev_b32 v80, 7, v1
s_mov_b32 s49, {X2O}
s_add_u32 s56, s42, 48
v_mov_b32 v78, v77
v_mov_b32 v77, s56
v_mov_b32 v79, s56''')
        def st(f):
            a('s_mov_b64 exec, 0xffff')
            a(f'buffer_store_dwordx4 v[76:79], v80, s[28:31], s48 offen{f}')
            a('s_mov_b64 exec, -1')
            for nt in range(4): a(f'buffer_store_dwordx2 v[{X+2*nt}:{X+2*nt+1}], v6, s[28:31], s49 offen offset:{32*nt}{f}')
        s.dual(st)
    def delta_norm(s):
        a = s.a
        C = 8
        lp = s.label('SP'); dn = s.label('SD')
        a(f'''v_lshl_add_u32 v80, v2, 5, v80
s_mov_b32 s58, 0x40000
{lp}:
buffer_load_dwordx4 v[72:75], v80, s[28:31], s47 offen sc1
buffer_load_dwordx4 v[76:79], v80, s[28:31], s47 offen offset:16 sc1
s_waitcnt vmcnt(0)
v_cmp_ne_u32 vcc, s56, v73
v_cmp_ne_u32 s[48:49], s56, v75
s_nop 1
s_or_b64 vcc, vcc, s[48:49]
v_cmp_ne_u32 s[48:49], s56, v77
s_nop 1
s_or_b64 vcc, vcc, s[48:49]
v_cmp_ne_u32 s[48:49], s56, v79
s_nop 1
s_or_b64 vcc, vcc, s[48:49]
s_cbranch_vccz {dn}
s_sub_u32 s58, s58, 1
s_cmp_lg_u32 s58, 0
s_cbranch_scc1 {lp}
{dn}:
v_add_f32 v76, v72, v76
v_add_f32 v77, v74, v78''')
        s.stamp('stats poll')
        s.wave_reduce([76, 77], 78, rows=False)
        s.finish_stats(76, 77)
        for k in range(0, 16, 2): a(f'v_fma_f32 v{C+k}, v{C+k}, v76, v77\nv_fma_f32 v{C+k+1}, v{C+k+1}, v76, v77\nv_cvt_pk_bf16_f32 v{C+k//2}, v{C+k}, v{C+k+1}')
        for nt in range(4):
            a(f'ds_write_b64 v{226 if nt < 2 else 227}, v[{C+2*nt}:{C+2*nt+1}] offset:{16*(nt&1)}')
    def xtile_addr(s):
        s.a(f'''
s_mul_i32 s48, s41, 12288
s_add_u32 s48, s48, {LS}
v_bfe_u32 v226, v1, 1, 1
v_bfe_u32 v227, v1, 3, 1
v_lshl_or_b32 v226, v227, 1, v226
v_and_b32 v227, 1, v2
v_xor_b32 v226, v226, v227
v_lshlrev_b32 v226, 5, v226
v_lshrrev_b32 v227, 1, v2
v_lshl_add_u32 v226, v227, 3, v226
v_lshl_add_u32 v226, v1, 7, v226
v_add_u32 v226, s48, v226
v_xor_b32 v227, 64, v226''')
    def bar_addr(s, arr, v):
        s.a(f'''
v_lshrrev_b32 v{v}, 1, v0
v_and_b32 v{v+1}, 3, v{v}
v_lshrrev_b32 v{v}, 2, v{v}
v_lshl_add_u32 v{v}, v{v+1}, 6, v{v}
v_and_b32 v{v+1}, 1, v0
v_lshl_add_u32 v{v}, v{v+1}, 3, v{v}
s_lshl_b32 s47, s41, 4
v_add_u32 v{v}, s47, v{v}
v_lshlrev_b32 v{v}, 6, v{v}
v_add_u32 v{v}, {FLO + arr*0x8000}, v{v}''')
    def barrier0(s):
        a = s.a; pf = s.label('PF'); jn = s.label('PJ'); lp = s.label('BP'); dn = s.label('BD')
        a(f's_mov_b32 s53, 0\ns_cmp_ge_u32 s41, 2\ns_cbranch_scc1 {pf}')
        s.bar_addr(0, 222)
        a(f'''s_mov_b32 s56, s42
s_mov_b32 s58, 0x40000
{lp}:
buffer_load_dword v223, v222, s[28:31], 0 offen sc1
buffer_load_dword v224, v222, s[28:31], 0 offen offset:2048 sc1
s_waitcnt vmcnt(0)
v_and_b32 v225, 0xfffffff0, v223
v_and_b32 v226, 0xfffffff0, v224
v_cmp_ne_u32 vcc, s56, v225
v_cmp_ne_u32 s[48:49], s56, v226
s_nop 4
s_or_b64 vcc, vcc, s[48:49]
s_cbranch_vccz {dn}
s_sub_u32 s58, s58, 1
s_cmp_lg_u32 s58, 0
s_cbranch_scc1 {lp}
{dn}:
v_and_b32 v223, 15, v223
v_and_b32 v224, 15, v224
v_cmp_ne_u32 vcc, s59, v223
v_cmp_ne_u32 s[48:49], s59, v224
s_nop 4
s_or_b64 vcc, vcc, s[48:49]
s_lshl_b32 s47, s36, 3
s_lshl_b64 s[48:49], 0xff, s47
s_and_b64 s[48:49], s[48:49], vcc
s_cmp_lg_u64 s[48:49], 0
s_cselect_b32 s53, 1, 0
s_branch {jn}
{pf}:''')
        if s.pf1 == 2:
            a('''s_mul_i32 s54, s37, 57344
s_sub_u32 s55, s41, 2
s_lshl_b32 s55, s55, 15
s_add_u32 s54, s54, s55
s_cmp_eq_u32 s41, 3
s_cselect_b32 s55, 0, 8192
v_lshlrev_b32 v240, 7, v0
buffer_load_dword v241, v240, s[16:19], s54 offen
s_add_u32 s54, s54, 8192
buffer_load_dword v242, v240, s[16:19], s54 offen
s_add_u32 s54, s54, 8192
buffer_load_dword v243, v240, s[16:19], s54 offen
s_add_u32 s54, s54, s55
buffer_load_dword v244, v240, s[16:19], s54 offen''')
        a(f'{jn}:\ns_barrier')
    def grp16_base(s, arr, dst):
        s.a(f'''s_lshr_b32 s{dst}, s37, 4
s_lshl_b32 s48, s36, 1
s_add_u32 s{dst}, s{dst}, s48
s_lshl_b32 s{dst}, s{dst}, 8
s_add_u32 s{dst}, s{dst}, {FLO + arr*0x8000}''')
    def grp16_poll(s, arr):
        s.grp16_base(arr, 47)
        s.a(f'''s_lshl_b32 s48, s41, 6
s_add_u32 s47, s47, s48
v_lshlrev_b32 v222, 2, v1
v_add_u32 v222, s47, v222
s_add_u32 s56, s42, {16*arr}''')
        s.poll(222, 223, 56)
    def grp16_signal(s, arr):
        s.grp16_base(arr, 54)
        s.a('s_lshl_b32 s48, s40, 4\ns_add_u32 s54, s54, s48\ns_lshl_b32 s48, s41, 2\ns_add_u32 s54, s54, s48')
        s.wave_signal(arr, 54)
    def dump_stamps(s):
        if not s.stamps: return
        a = s.a
        a(f's_lshl_b32 s47, s2, 2\ns_add_u32 s47, s47, s41\ns_lshl_b32 s47, s47, 7\ns_add_u32 s47, s47, {DBO}\nv_mov_b32 v5, s47\ns_mov_b64 exec, 1')
        for k in range(s.nst):
            a(f'v_mov_b32 v6, s{60+2*k}\nbuffer_store_dword v6, v5, s[28:31], 0 offen offset:{4*k}')
        for k, r in enumerate((43, 59, 53, 98, 100)):
            a(f'v_mov_b32 v6, s{r}\nbuffer_store_dword v6, v5, s[28:31], 0 offen offset:{4*(24+k)}')
        a('s_mov_b64 exec, -1')
    def build(s):
        a = s.a
        s.prologue()
        s.alpha_in1(); s.alpha_consts(128); s.g_load()
        npre = 0
        if s.pretouch:
            a(f'v_lshlrev_b32 v95, 20, v0\nv_min_u32 v95, {WSZ - 4}, v95\nbuffer_load_dword v96, v95, s[28:31], 0 offen\nv_and_b32 v95, 1, v0\nv_lshlrev_b32 v95, 20, v95\nbuffer_load_dword v96, v95, s[24:27], 0 offen')
            npre = 2
        if s.cpf:
            a(f'''s_lshl_b32 s47, s37, 12
s_lshl_b32 s48, s41, 10
s_add_u32 s47, s47, s48
v_lshlrev_b32 v95, 4, v0
v_add_u32 v95, s47, v95
v_min_u32 v95, TABLE-{KN}_kernel+{len(tables())*4 - 16}, v95
s_sub_u32 s48, s44, TABLE-{KN}_kernel
s_subb_u32 s49, s45, 0
global_load_dwordx4 v[248:251], v95, s[48:49]''')
            npre += 1
        if s.htouch:
            if s.htouch == 1:
                a(f'v_min_u32 v238, 6, v0\nv_lshlrev_b32 v238, 12, v238\ns_mov_b32 s55, 0')
            else:
                a(f'v_min_u32 v238, 55, v0\nv_lshlrev_b32 v238, 7, v238\ns_mul_i32 s55, s41, 7168')
            a(f's_mul_i32 s54, s38, 229376\ns_add_u32 s54, s54, s55\ns_mul_i32 s55, s39, 28672\ns_add_u32 s54, s54, s55\ns_add_u32 s54, s54, {HO}\nbuffer_load_dword v239, v238, s[28:31], s54 offen sc1')
            npre += 1
        if s.pf1 == 1: s.touch(16, 240); npre += 2
        if s.pf2 == 1: s.touch(20, 244); npre += 2
        s.w1_load()
        a(f's_waitcnt vmcnt({6 + npre})')
        s.stamp('x arrived')
        a('v_mov_b32 v95, 0\nbuffer_load_dword v95, v95, s[32:35], 0 offen sc1')
        s.alpha_ln1()
        a(f's_waitcnt vmcnt({3 + npre}) lgkmcnt(0)\ns_barrier')
        s.alpha_core(128, AD0)
        s.fstamp('alpha stores issued', 'alpha')
        a('s_waitcnt vmcnt(0)')
        dn = s.label('ND')
        a(f'''v_readfirstlane_b32 s42, v95
s_cmp_lg_u32 s42, 0
s_cbranch_scc1 {dn}''')
        s.get_nonce()
        a(f'{dn}:')
        a('s_lshl_b32 s54, s2, 6')
        s.signal(0, 54, 0, dual=False, xcc=True, vm=0)
        s.stamp('sig0')
        s.g_make()
        s.beta_consts(); s.beta_addr(0)
        for layer in range(2):
            arr = 4*layer; s.lay = layer
            if layer == 1:
                a('s_waitcnt lgkmcnt(0)\ns_barrier')
                s.alpha_core(208, AD1)
                a('s_lshl_b32 s54, s2, 6')
                s.signal(4, 54, 4, dual=False)
                s.stamp('sig4')
                s.beta_consts(); s.beta_addr(1)
            if layer == 0: s.barrier0()
            else:
                s.bar_addr(arr, 222)
                a(f's_add_u32 s56, s42, {16*arr}')
                s.poll(222, 223, 56)
            s.stamp('bar done')
            s.beta_main(layer)
            s.grp16_signal(arr + 1)
            if layer == s.finel: s.stamp('beta sig')
            if s.stop == f'beta{layer}': return s.end()
            if layer == 0: s.w1_store()
            s.grp16_poll(arr + 1)
            if layer == 0: a('s_waitcnt lgkmcnt(0)\ns_barrier')
            s.stamp('beta poll')
            s.gamma()
            s.grp16_signal(arr + 2)
            if layer == 0: s.stamp('gamma sig')
            if s.stop == f'gamma{layer}': return s.end()
            if layer == 0: s.w2_transpose(0, 2, LS + 32768)
            s.delta_addr()
            if layer == 0: s.xtile_addr()
            s.grp16_poll(arr + 2)
            s.stamp('gamma poll')
            s.delta(layer)
            if layer == 0:
                s.delta_norm()
                if s.stop == 'delta0': return s.end()
        return s.end()
    def end(s):
        a = s.a
        s.stamp('end')
        if s.stamps: a('s_memtime s[100:101]\ns_waitcnt lgkmcnt(0)')
        s.dump_stamps()
        a('END:\ns_endpgm')
        body, nn = a.finish()
        tab = tables()
        t = '\n'.join('.long ' + ','.join('0x%08x' % x for x in tab[i:i+8]) for i in range(0, len(tab), 8))
        hdr = open('cdna_kernels/' + KN + '.s.ref').read().split('; Override')[0]
        txt = hdr + f'''; Single persistent kernel: LN + FFT-factorised FNet mixing + FFN GEMMs, 256 workgroups (one per CU).
; @launch grid=(256,1,1) block=(256,1,1) lds=163840
.amdgcn_target "amdgcn-amd-amdhsa--gfx950"
.text
.globl {KN}_kernel
.p2align 8
.type {KN}_kernel,@function
{KN}_kernel:
{body}
.p2align 8
.type TABLE,@object
TABLE:
{t}
.size TABLE, {len(tab)*4}
.section .rodata,"a"
.p2align 6
.amdhsa_kernel {KN}_kernel
  .amdhsa_next_free_vgpr 512
  .amdhsa_next_free_sgpr 102
  .amdhsa_accum_offset 256
  .amdhsa_group_segment_fixed_size 0
  .amdhsa_kernarg_size 88
  .amdhsa_user_sgpr_count 2
  .amdhsa_user_sgpr_kernarg_segment_ptr 1
  .amdhsa_system_sgpr_workgroup_id_x 1
  .amdhsa_float_denorm_mode_32 3
.end_amdhsa_kernel
'''
        return txt
if __name__ == '__main__':
    import argparse
    ap = argparse.ArgumentParser(); ap.add_argument('out'); ap.add_argument('--stop'); ap.add_argument('--stamps', action='store_true'); ap.add_argument('--slow', action='store_true'); ap.add_argument('--fine'); ap.add_argument('--pre', action='store_true'); ap.add_argument('--cpf', action='store_true'); ap.add_argument('--nt', action='store_true'); ap.add_argument('--adsc1', action='store_true'); ap.add_argument('--wsoff', type=lambda x: int(x, 0), default=0); ap.add_argument('--stf', default=''); ap.add_argument('--htouch', type=int, default=0); ap.add_argument('--pf1', type=int, default=1); ap.add_argument('--pf2', type=int, default=1); ap.add_argument('--nw2b', type=int, default=28); ap.add_argument('--every', type=int, default=7)
    o = ap.parse_args()
    g = Gen(o.stop, o.stamps, o.slow, o.fine); g.pretouch = o.pre; g.cpf = o.cpf; g.nt = ' nt' if o.nt else ''; g.adf = ' sc1' if o.adsc1 else ''; g.pf1 = o.pf1; g.wsoff = o.wsoff; g.stf = (' ' + o.stf.replace('+', ' ')) if o.stf else ''; g.htouch = o.htouch; g.pf2 = o.pf2; g.nw2b = o.nw2b; g.every = o.every
    open(o.out, 'w').write(g.build())
```

```python
import sys, numpy as np
sys.path.insert(0, 'work')
from asmlib import Asm
KN = "interleave_layers__spectral_fnet__dense_activation_relu__prompt"
AD0, AD1, X1O, X2O, XNO, HO, STO, FLO, DBO = 0x0, 0x200000, 0x400000, 0x600000, 0x800000, 0xA00000, 0x1200000, 0x1300000, 0x1380000
WSZ = 0x1400000
LAYOFF = 0
LW1 = 0; LS = 114688
def bf16(x):
    u = np.ascontiguousarray(x, dtype=np.float32).view(np.uint32)
    return ((u + 0x7FFF + ((u >> 16) & 1)) >> 16).astype(np.uint16)
def s1_of_rho(r): return ((r >> 3) >> 2) + 16 * ((r >> 3) & 3) + 2 * (r & 7)
def tables():
    l = np.arange(64); n = l & 15; q = l >> 4; kk = np.arange(8)
    T = []
    for mt in range(4):
        for ks in range(2):
            m = (16 * mt + n)[:, None]; rho = 32 * ks + 8 * q[:, None] + kk[None, :]; s1 = s1_of_rho(rho)
            v = np.where(m <= 32, np.cos(2*np.pi*((m*s1) % 64)/64), -np.sin(2*np.pi*(((m-32)*s1) % 64)/64))
            T.append(bf16(v).reshape(-1).view(np.uint32))
    ri = (q >> 1)[:, None]; d1 = 8 * (q & 1)[:, None] + kk[None, :]; th = 2*np.pi*((d1 * n[:, None]) % 16)/16
    T.append(bf16(np.where(ri == 0, np.cos(th), np.sin(th))).reshape(-1).view(np.uint32))
    T.append(bf16(np.where(ri == 0, -np.sin(th), np.cos(th))).reshape(-1).view(np.uint32))
    d2 = 16 * (kk >> 2)[None, :] + 4 * q[:, None] + (kk & 3)[None, :]
    for T2 in range(2):
        e2 = (16 * T2 + n)[:, None]; ph = 2*np.pi*((d2 * e2) % 32)/32
        T.append(bf16(np.cos(ph)).reshape(-1).view(np.uint32)); T.append(bf16(np.sin(ph)).reshape(-1).view(np.uint32))
    for fn in (np.cos, np.sin):
        for Tt in range(2):
            dd = 16 * Tt + 4 * q[:, None] + np.arange(4)[None, :]
            T.append(fn(2*np.pi*(dd * n[:, None])/512).astype(np.float32).reshape(-1).view(np.uint32))
    return np.concatenate(T)
TF64, TF16, TH32, TTW = 0, 8192, 10240, 14336

class Gen:
    def __init__(s, stop=None, stamps=False, force_slow=False, fine=None):
        s.finel = 0
        if fine and fine[-1] == '1': fine = fine[:-1]; s.finel = 1
        s.fine = fine; s.lay = 0; s.pretouch = False; s.cpf = False; s.nt = ''; s.adf = ''; s.w1e = 0; s.gx0 = 5; s.gx1 = 1; s.wsoff = 0; s.stf = ''; s.ldf = ' sc1'; s.htouch = 0; s.pf1 = 1; s.pf2 = 1; s.nw2b = 28; s.every = 7
        s.a = Asm(); s.stop = stop; s.stamps = stamps; s.nst = 0; s.lab = 0; s.force_slow = force_slow
    def label(s, p='L'):
        s.lab += 1; return f'{p}_{s.lab}'
    def fstamp(s, name, grp):
        if s.fine == grp and s.lay == s.finel: s.stamp(name)
    def stamp(s, name=''):
        if not s.stamps: return
        if s.fine and name not in ('start', 'end') and not name.startswith(s.fine) and name not in ('beta poll', 'gamma poll', 'bar done'): return
        k = 60 + 2 * s.nst; s.nst += 1
        assert k + 1 <= 97
        s.a(f's_memrealtime s[{k}:{k+1}]\ns_waitcnt lgkmcnt(0)')
    def dual(s, fn):
        a = s.a; l1 = s.label('SLOW'); l2 = s.label('JOIN')
        a(f's_cmp_eq_u32 s43, 0\ns_cbranch_scc1 {l1}')
        fn(s.stf); a(f's_branch {l2}\n{l1}:'); fn(' sc1'); a(f'{l2}:')
    def poll(s, vaddr, vtmp, sexp, maskxcc=False):
        a = s.a; lp = s.label('POLL'); dn = s.label('PD')
        a(f's_mov_b32 s58, 0x40000\n{lp}:')
        a(f'buffer_load_dword v{vtmp}, v{vaddr}, s[28:31], 0 offen sc1\ns_waitcnt vmcnt(0)')
        if maskxcc:
            a(f'v_and_b32 v{vtmp+1}, 0xfffffff0, v{vtmp}\nv_cmp_ne_u32 vcc, s{sexp}, v{vtmp+1}')
        else:
            a(f'v_cmp_ne_u32 vcc, s{sexp}, v{vtmp}')
        a(f's_nop 4\ns_cbranch_vccz {dn}\ns_sub_u32 s58, s58, 1\ns_cmp_lg_u32 s58, 0\ns_cbranch_scc1 {lp}\n{dn}:')
    def wave_signal(s, arr, soff):
        a = s.a
        a(f's_add_u32 s57, s42, {16*arr}\nv_mov_b32 v222, s57\nv_mov_b32 v223, s{soff}\ns_waitcnt vmcnt(0)\ns_mov_b64 exec, 1')
        s.dual(lambda f: a(f'buffer_store_dword v222, v223, s[28:31], 0 offen{f}'))
        a('s_mov_b64 exec, -1')
    def signal(s, arr, soff_expr_sgpr, phase, dual=True, xcc=False, vm=0):
        a = s.a; sk = s.label('SIG')
        a(f's_waitcnt vmcnt({vm})\ns_barrier')
        a(f's_cmp_lg_u32 s41, 0\ns_cbranch_scc1 {sk}')
        a(f's_add_u32 s57, s42, {16*phase}')
        if xcc: a('s_add_u32 s57, s57, s59')
        a(f'v_mov_b32 v5, s57\nv_mov_b32 v6, {FLO + arr*0x8000}\nv_add_u32 v6, s{soff_expr_sgpr}, v6')
        a('s_mov_b64 exec, 1')
        if dual: s.dual(lambda f: a(f'buffer_store_dword v5, v6, s[28:31], 0 offen{f}'))
        else: a('buffer_store_dword v5, v6, s[28:31], 0 offen sc1')
        a(f's_mov_b64 exec, -1\n{sk}:')

    def prologue(s):
        a = s.a
        a(f'''
s_cmp_ge_u32 s2, 256
s_cbranch_scc1 END
s_load_dwordx4 s[4:7], s[0:1], 0
s_load_dwordx2 s[12:13], s[0:1], 16
s_load_dwordx4 s[16:19], s[0:1], 48
s_load_dwordx4 s[24:27], s[0:1], 64
s_load_dwordx2 s[28:29], s[0:1], 80
s_getreg_b32 s59, hwreg(HW_REG_XCC_ID, 0, 4)
s_getpc_b64 s[44:45]
PCL:
s_add_u32 s44, s44, TABLE-PCL
s_addc_u32 s45, s45, 0
v_lshrrev_b32 v5, 6, v0
v_and_b32 v0, 63, v0
s_and_b32 s36, s2, 7
s_lshr_b32 s37, s2, 3
v_readfirstlane_b32 s41, v5
s_lshr_b32 s47, s37, 3
s_lshl_b32 s38, s36, 2
s_add_u32 s38, s38, s47
s_and_b32 s39, s37, 7
s_and_b32 s40, s37, 15
s_lshr_b32 s47, s37, 4
s_lshl_b32 s47, s47, 1
s_lshl_b32 s46, s36, 2
s_add_u32 s46, s46, s47
s_lshr_b32 s47, s41, 1
s_add_u32 s46, s46, s47
v_and_b32 v1, 15, v0
v_lshrrev_b32 v2, 4, v0
v_bfe_u32 v3, v0, 2, 2
v_and_b32 v4, 3, v0
s_waitcnt lgkmcnt(0)
s_mov_b32 s8, s6
s_mov_b32 s9, s7
s_mov_b32 s32, s26
s_mov_b32 s33, s27
s_mov_b32 s20, s18
s_mov_b32 s21, s19
s_mov_b32 s6, 0x200000
s_mov_b32 s7, 0x20000
s_mov_b32 s10, 0x800000
s_mov_b32 s11, 0x20000
s_mov_b32 s14, 0x800000
s_mov_b32 s15, 0x20000
s_mov_b32 s18, 1835008
s_mov_b32 s19, 0x20000
s_mov_b32 s22, 1835008
s_mov_b32 s23, 0x20000
s_mov_b32 s26, 0x200000
s_mov_b32 s27, 0x20000
s_mov_b32 s30, {WSZ}
s_mov_b32 s31, 0x20000
s_mov_b32 s34, 256
s_mov_b32 s35, 0x20000
s_mov_b32 s43, 0
s_add_u32 s28, s28, {s.wsoff}
s_addc_u32 s29, s29, 0
''')
        s.stamp('start')
        if s.stamps: a('s_memtime s[98:99]\ns_waitcnt lgkmcnt(0)')
        sk = s.label('NON')
        a(f'''
s_cmp_lg_u32 s2, 0
s_cbranch_scc1 {sk}
s_cmp_lg_u32 s41, 0
s_cbranch_scc1 {sk}
s_memrealtime s[56:57]
s_waitcnt lgkmcnt(0)
s_lshl_b32 s56, s56, 8
s_or_b32 s56, s56, 0x80000000
v_mov_b32 v5, s56
v_mov_b32 v6, 0
s_mov_b64 exec, 1
buffer_store_dword v5, v6, s[32:35], 0 offen sc1
s_mov_b64 exec, -1
{sk}:''')
    def alpha_consts(s, base, t=5):
        a = s.a
        a(f's_lshr_b32 s47, s41, 1\ns_lshl_b32 s47, s47, 12\nv_lshlrev_b32 v{t}, 4, v0\nv_add_u32 v{t}, s47, v{t}')
        for k in range(4): a(f'global_load_dwordx4 v[{base+4*k}:{base+4*k+3}], v{t}, s[44:45] offset:{1024*k}')
    def alpha_in1(s):
        a = s.a
        a(f'''
v_lshrrev_b32 v6, 2, v0
v_bfe_u32 v7, v6, 3, 1
s_lshl_b32 s47, s41, 1
v_add_u32 v7, s47, v7
v_lshrrev_b32 v8, 2, v7
v_and_b32 v7, 3, v7
v_lshl_add_u32 v8, v7, 4, v8
v_and_b32 v7, 7, v6
v_lshl_add_u32 v8, v7, 1, v8
v_lshlrev_b32 v8, 5, v8
v_add_u32 v8, s38, v8
v_lshlrev_b32 v8, 10, v8
v_lshl_add_u32 v8, v4, 4, v8
s_lshl_b32 s47, s39, 7''')
        for i in range(16):
            a(f'buffer_load_dwordx4 v[{16+4*i}:{19+4*i}], v8, s[4:7], s47 offen')
            if i < 15: a('s_add_u32 s47, s47, 64\ns_and_b32 s47, s47, 1023')
    def alpha_ln1(s):
        a = s.a
        a('s_mov_b32 s47, 0x3f803f80\nv_mov_b32 v9, 0\nv_mov_b32 v10, 0\nv_mov_b32 v11, 0\nv_mov_b32 v12, 0')
        for i in range(0, 64, 2):
            a(f'v_dot2_f32_bf16 v9, v{16+i}, s47, v9\nv_dot2_f32_bf16 v10, v{16+i}, v{16+i}, v10')
            a(f'v_dot2_f32_bf16 v11, v{17+i}, s47, v11\nv_dot2_f32_bf16 v12, v{17+i}, v{17+i}, v12')
        a('''v_add_f32 v9, v9, v11
v_add_f32 v10, v10, v12
v_add_f32_dpp v9, v9, v9 quad_perm:[1,0,3,2] row_mask:0xf bank_mask:0xf
v_add_f32_dpp v10, v10, v10 quad_perm:[1,0,3,2] row_mask:0xf bank_mask:0xf
v_add_f32_dpp v9, v9, v9 quad_perm:[2,3,0,1] row_mask:0xf bank_mask:0xf
v_add_f32_dpp v10, v10, v10 quad_perm:[2,3,0,1] row_mask:0xf bank_mask:0xf''')
        s.finish_stats(9, 10)
        for i in range(8):
            r = 16 + i
            a(f'''v_lshlrev_b32 v11, 16, v{r}
v_and_b32 v12, 0xffff0000, v{r}
v_fma_f32 v11, v11, v9, v10
v_fma_f32 v12, v12, v9, v10
v_cvt_pk_bf16_f32 v{r}, v11, v12''')
        a(f'''
v_lshrrev_b32 v6, 2, v0
s_mul_i32 s47, s41, 12288
s_add_u32 s47, s47, {LS}
v_bfe_u32 v11, v6, 1, 1
v_bfe_u32 v12, v6, 3, 1
v_lshl_or_b32 v11, v12, 1, v11
v_lshlrev_b32 v11, 5, v11
v_lshl_add_u32 v11, v4, 3, v11
v_lshl_add_u32 v11, v6, 7, v11
v_add_u32 v11, s47, v11
v_xor_b32 v12, 32, v11
v_xor_b32 v13, 64, v11
v_xor_b32 v14, 96, v11
ds_write_b64 v11, v[16:17]
ds_write_b64 v12, v[18:19]
ds_write_b64 v13, v[20:21]
ds_write_b64 v14, v[22:23]''')
    def finish_stats(s, vs, vq):
        s.a(f'''
v_mul_f32 v{vs}, 0x3b000000, v{vs}
v_mul_f32 v{vq}, 0x3b000000, v{vq}
v_fma_f32 v{vq}, -v{vs}, v{vs}, v{vq}
v_max_f32 v{vq}, 0, v{vq}
v_add_f32 v{vq}, 0x3727c5ac, v{vq}
v_rsq_f32 v{vq}, v{vq}
s_nop 0
v_mul_f32 v{vs}, v{vs}, v{vq}
v_sub_f32 v{vs}, 0, v{vs}
v_swap_b32 v{vs}, v{vq}''')
    def alpha_core(s, cb, adoff):
        a = s.a
        a(f'''
s_and_b32 s47, s41, 1
s_lshl_b32 s47, s47, 1
v_lshrrev_b32 v6, 1, v3
v_and_b32 v7, 1, v2
v_lshl_or_b32 v6, v7, 1, v6
v_xor_b32 v6, s47, v6
v_lshlrev_b32 v6, 5, v6
v_lshl_add_u32 v6, v4, 3, v6
v_and_b32 v7, 1, v2
v_lshl_add_u32 v7, v7, 3, v3
v_lshl_add_u32 v6, v7, 7, v6
v_lshrrev_b32 v7, 1, v2
v_mul_u32_u24 v7, 12288, v7
v_add_u32 v6, v7, v6
v_add_u32 v6, {LS}, v6
v_xor_b32 v7, 32, v6''')
        A = 96
        for dt in range(2):
            for ks in range(2):
                for h in range(2):
                    r = A + 8*dt + 4*ks + 2*h
                    a(f'ds_read_b64_tr_b16 v[{r}:{r+1}], v{6+dt} offset:{24576*ks+512*h}')
        a(f'''
s_lshr_b32 s47, s41, 1
s_lshl_b32 s47, s47, 20
s_lshl_b32 s48, s38, 10
s_add_u32 s47, s47, s48
s_lshl_b32 s48, s39, 7
s_add_u32 s47, s47, s48
s_and_b32 s48, s41, 1
s_lshl_b32 s48, s48, 6
s_add_u32 s47, s47, s48
s_add_u32 s47, s47, {adoff}
v_lshlrev_b32 v8, 15, v1
v_lshl_add_u32 v8, v2, 4, v8
s_add_u32 s48, s47, 0x80000
s_waitcnt lgkmcnt(0)''')
        C = 112
        for mt in range(2):
            for dt in range(2):
                c = C + 8*mt + 4*dt
                for ks in range(2):
                    src = '0' if ks == 0 else f'v[{c}:{c+3}]'
                    a(f'v_mfma_f32_16x16x32_bf16 v[{c}:{c+3}], v[{A+8*dt+4*ks}:{A+8*dt+4*ks+3}], v[{cb+8*mt+4*ks}:{cb+8*mt+4*ks+3}], {src}')
        for mt in range(2):
            c = C + 8*mt
            for k in range(4): a(f'v_cvt_pk_bf16_f32 v{c+k}, v{c+2*k}, v{c+2*k+1}')
            a(f'buffer_store_dwordx4 v[{c}:{c+3}], v8, s[28:31], s{47+mt} offen sc1')
    def get_nonce(s):
        a = s.a; lp = s.label('NP'); dn = s.label('ND')
        a(f'''s_mov_b32 s58, 0x40000
v_mov_b32 v5, 0
{lp}:
buffer_load_dword v6, v5, s[32:35], 0 offen sc1
s_waitcnt vmcnt(0)
v_readfirstlane_b32 s42, v6
s_cmp_lg_u32 s42, 0
s_cbranch_scc1 {dn}
s_sub_u32 s58, s58, 1
s_cmp_lg_u32 s58, 0
s_cbranch_scc1 {lp}
{dn}:''')
    def g_load(s):
        a = s.a
        a('''
s_lshr_b32 s47, s39, 2
s_and_b32 s48, s39, 3
s_lshl_b32 s48, s48, 4
s_add_u32 s47, s47, s48
s_lshl_b32 s47, s47, 5
s_add_u32 s47, s47, s38
s_lshl_b32 s47, s47, 12
v_lshrrev_b32 v5, 1, v1
v_lshlrev_b32 v5, 18, v5
v_lshl_add_u32 v5, v2, 4, v5
buffer_load_dwordx4 v[80:83], v5, s[8:11], s47 offen
buffer_load_dwordx4 v[84:87], v5, s[12:15], s47 offen''')
    def g_make(s):
        a = s.a
        a('''
s_cmp_eq_u32 s38, 0
s_cselect_b32 s50, 0, -1
s_cmp_ge_u32 s39, 4
s_cselect_b32 s51, 0x80008000, 0
s_xor_b32 s52, s51, 0x80008000
v_and_b32 v5, 1, v1
v_cmp_eq_u32 vcc, 1, v5''')
        for k in range(4):
            a(f'''v_cndmask_b32 v6, v{80+k}, v{84+k}, vcc
v_xor_b32 v7, s52, v{84+k}
v_xor_b32 v8, s51, v{80+k}
v_cndmask_b32 v7, v7, v8, vcc
v_and_b32 v7, s50, v7
v_accvgpr_write_b32 a{224+k}, v6
v_accvgpr_write_b32 a{228+k}, v7''')
    def w1_load(s):
        a = s.a
        for k in range(7):
            a(f'''v_lshlrev_b32 v5, 4, v0
v_add_u32 v5, {1024*k}, v5
v_mul_u32_u24 v6, 0x4925, v5
v_lshrrev_b32 v6, 22, v6
v_mul_u32_u24 v7, 224, v6
v_sub_u32 v5, v5, v7
v_mul_u32_u24 v6, 3584, v6
v_add_u32 v{88+k}, v5, v6''')
    def w1_issue(s):
        a = s.a
        a(f'''s_mul_i32 s54, s40, 224
s_mul_i32 s55, s41, {4*32*3584}
s_add_u32 s54, s54, s55''')
        for blk in range(4):
            for k in range(7):
                r = 112 + 28*blk + 4*k
                a(f'buffer_load_dwordx4 a[{r}:{r+3}], v{88+k}, s[16:19], s54 offen{s.nt}')
            if blk < 3: a(f's_add_u32 s54, s54, {32*3584}')
    def w1_transpose(s):
        a = s.a
        a(f'''s_mul_i32 s47, s41, {4*7168}
s_add_u32 s47, s47, {LW1}
v_lshlrev_b32 v86, 4, v0
v_add_u32 v86, s47, v86
v_lshl_add_u32 v87, v2, 2, v3
v_mul_u32_u24 v87, 224, v87
v_lshl_add_u32 v87, v4, 3, v87
v_add_u32 v87, s47, v87''')
        for blk in range(4):
            for k in range(7):
                r = 112 + 28*blk + 4*k
                a(f'ds_write_b128 v86, a[{r}:{r+3}] offset:{7168*blk + 1024*k}')
            for ft in range(7):
                for h in range(2):
                    r = 112 + 28*blk + 4*ft + 2*h
                    a(f'ds_read_b64_tr_b16 a[{r}:{r+1}], v87 offset:{7168*blk + 32*ft + 3584*h}')
        for blk in range(4):
            a(f's_waitcnt lgkmcnt({0 if blk == 3 else 0})') if blk == 0 else None
            for k in range(7):
                r = 112 + 28*blk + 4*k
                a(f'ds_write_b128 v86, a[{r}:{r+3}] offset:{7168*blk + 1024*k}')
    def touch(s, srd, vd):
        s.a(f'''s_mul_i32 s54, s37, 57344
s_lshl_b32 s55, s41, 14
s_add_u32 s54, s54, s55
v_lshlrev_b32 v{vd}, 7, v0
buffer_load_dword v{vd+1}, v{vd}, s[{srd}:{srd+3}], s54 offen''')
        sk = s.label('TCH')
        s.a(f'''s_cmp_eq_u32 s41, 3
s_cselect_b32 s55, 0, 8192
s_add_u32 s54, s54, s55
buffer_load_dword v{vd+2}, v{vd}, s[{srd}:{srd+3}], s54 offen''')
    def w1_items(s):
        it = []
        for blk in range(4):
            for k in range(7):
                r = 112 + 28*blk + 4*k
                it.append(f'buffer_load_dwordx4 a[{r}:{r+3}], v{88+k}, s[16:19], s54 offen' + (f'\nv_add_u32 v{88+k}, {32*3584}, v{88+k}' if blk < 3 else ''))
        return it
    def w1_store(s):
        a = s.a
        a(f'''s_mul_i32 s47, s41, {4*7168}
s_add_u32 s47, s47, {LW1}
v_lshlrev_b32 v5, 4, v0
v_add_u32 v5, s47, v5''')
        for blk in range(4):
            for k in range(7):
                r = 112 + 28*blk + 4*k
                a(f'ds_write_b128 v5, a[{r}:{r+3}] offset:{7168*blk + 1024*k}')
    def w2_setup(s, i0, vt, st):
        s.a(f'''v_lshrrev_b32 v{vt}, 3, v0
v_lshlrev_b32 v{vt}, 10, v{vt}
v_and_b32 v{vt+1}, 7, v0
v_lshl_add_u32 v{vt}, v{vt+1}, 4, v{vt}
s_mul_i32 s{st}, s41, {448*1024}
s_lshl_b32 s49, s39, 7
s_add_u32 s{st}, s{st}, s49
s_add_u32 s{st}, s{st}, {8192*i0}''')
    def w2_issue(s, i0, i1, vt, st):
        for i in range(i0, i1):
            s.a(f'buffer_load_dwordx4 a[{4*i}:{4*i+3}], v{vt}, s[20:23], s{st} offen{s.nt}\ns_add_u32 s{st}, s{st}, 8192')
    def w2t_ops(s, ks):
        ops = [f'ds_write_b128 v230, a[{16*ks+4*k}:{16*ks+4*k+3}] offset:{1024*k}' for k in range(4)]
        for nt in range(4):
            for h in range(2):
                r = 16*ks + 4*nt + 2*h
                ops.append(f'ds_read_b64_tr_b16 a[{r}:{r+1}], v{231+nt} offset:{2048*h}')
        return ops
    def w2_transpose(s, ks0, ks1, lbase):
        a = s.a
        a(f'''
s_lshl_b32 s47, s41, 12
s_add_u32 s47, s47, {lbase}
v_bfe_u32 v230, v0, 1, 2
v_bfe_u32 v231, v0, 4, 2
v_xor_b32 v230, v230, v231
v_lshlrev_b32 v230, 5, v230
v_and_b32 v231, 1, v0
v_lshl_add_u32 v230, v231, 4, v230
v_lshrrev_b32 v231, 3, v0
v_lshl_add_u32 v230, v231, 7, v230
v_add_u32 v230, s47, v230
v_and_b32 v231, 1, v2
v_lshrrev_b32 v232, 1, v3
v_lshl_or_b32 v231, v231, 1, v232
v_lshlrev_b32 v231, 5, v231
v_lshl_add_u32 v231, v4, 3, v231
v_lshl_add_u32 v232, v2, 2, v3
v_lshl_add_u32 v231, v232, 7, v231
v_add_u32 v231, s47, v231
v_xor_b32 v232, 32, v231
v_xor_b32 v233, 64, v231
v_xor_b32 v234, 96, v231''')
        for ks in range(ks0, ks1):
            for op in s.w2t_ops(ks): a(op)
    def beta_consts(s):
        a = s.a
        a(f'v_lshlrev_b32 v5, 4, v0\nv_add_u32 v5, {TF16}, v5\nv_add_u32 v6, 4096, v5')
        for k in range(10):
            r = 8 + 4*k
            if k < 4: a(f'global_load_dwordx4 v[{r}:{r+3}], v5, s[44:45] offset:{1024*k}')
            elif k < 8: a(f'global_load_dwordx4 v[{r}:{r+3}], v6, s[44:45] offset:{1024*(k-4)}')
        a('v_add_u32 v6, 4096, v6')
        for k in (8, 9):
            r = 8 + 4*k
            a(f'global_load_dwordx4 v[{r}:{r+3}], v6, s[44:45] offset:{1024*(k-8)}')
    def beta_addr(s, layer):
        a = s.a
        a(f'''
s_lshl_b32 s47, s41, 8
v_lshlrev_b32 v48, 10, v2
v_lshl_add_u32 v48, v1, 4, v48
v_add_u32 v48, s47, v48
s_lshl_b32 s47, s41, 13
s_add_u32 s47, s47, {LS}
v_lshrrev_b32 v49, 1, v1
v_xor_b32 v49, v49, v2
v_lshlrev_b32 v49, 5, v49
v_and_b32 v50, 1, v1
v_lshl_add_u32 v49, v50, 4, v49
v_lshl_add_u32 v49, v2, 8, v49
v_add_u32 v49, s47, v49
v_xor_b32 v50, 128, v49
v_and_b32 v51, 1, v2
v_lshl_or_b32 v51, v51, 2, v3
v_lshlrev_b32 v51, 5, v51
v_lshl_add_u32 v51, v4, 3, v51
v_lshl_add_u32 v52, v2, 3, v3
v_lshl_add_u32 v51, v52, 8, v51
v_add_u32 v51, s47, v51''')
        for dt in range(1, 8): a(f'v_xor_b32 v{51+dt}, {32*dt}, v51')
        UB = LS + 32768
        a(f'''
s_lshl_b32 s47, s41, 8
s_lshr_b32 s48, s41, 1
s_lshl_b32 s48, s48, 5
s_add_u32 s47, s47, s48
v_lshlrev_b32 v59, 3, v2
v_add_u32 v59, s47, v59
v_lshlrev_b32 v60, 3, v1
v_xor_b32 v59, v59, v60
v_lshl_add_u32 v59, v1, 10, v59
v_add_u32 v59, {UB}, v59
v_xor_b32 v60, 32, v59
v_xor_b32 v61, 64, v59
v_xor_b32 v62, 96, v59''')
        a(f'''
s_lshl_b32 s47, s41, 2
v_lshrrev_b32 v63, 1, v2
v_add_u32 v63, s47, v63
v_and_b32 v64, 1, v2
v_mul_u32_u24 v64, 544, v64
v_lshl_add_u32 v64, v3, 6, v64
v_lshl_add_u32 v64, v4, 3, v64
v_lshlrev_b32 v65, 3, v63
v_xor_b32 v64, v64, v65
v_lshl_add_u32 v63, v63, 10, v64
v_add_u32 v63, {UB}, v63
v_xor_b32 v64, 32, v63
v_xor_b32 v65, 16, v63
v_add_u32 v65, 2048, v65
v_xor_b32 v66, 32, v65''')
        a(f'''
v_lshlrev_b32 v67, 5, v1
v_lshl_add_u32 v67, v2, 3, v67
s_lshl_b32 s47, s38, 16
s_lshl_b32 s48, s39, 13
s_add_u32 s47, s47, s48
s_lshl_b32 s48, s41, 11
s_add_u32 s47, s47, s48
v_add_u32 v68, s47, v67''')
        if layer == 0:
            a('''
s_lshr_b32 s47, s39, 2
s_and_b32 s48, s39, 3
s_lshl_b32 s48, s48, 4
s_add_u32 s47, s47, s48
s_lshl_b32 s48, s41, 2
s_add_u32 s47, s47, s48
s_lshl_b32 s47, s47, 5
s_add_u32 s47, s47, s38
s_lshl_b32 s47, s47, 10
v_add_u32 v69, s47, v67
v_add_u32 v70, 0x10000, v69''')
        XI = LS + 8448
        a(f'''
s_lshl_b32 s47, s41, 1
v_lshrrev_b32 v71, 1, v1
v_xor_b32 v72, s47, v71
v_lshlrev_b32 v72, 4, v72
v_lshl_add_u32 v72, v71, 9, v72
v_lshl_add_u32 v72, v2, 7, v72
v_and_b32 v71, 1, v1
v_lshl_add_u32 v71, v71, 3, v72
v_add_u32 v71, {XI}, v71
v_xor_b32 v72, 16, v71''')
        a(f'''
s_lshl_b32 s47, s41, 2
v_lshrrev_b32 v73, 5, v0
v_add_u32 v73, s47, v73
v_and_b32 v74, 7, v0
v_xor_b32 v75, v74, v73
v_and_b32 v75, 7, v75
v_lshlrev_b32 v75, 4, v75
v_lshl_add_u32 v75, v73, 9, v75
v_bfe_u32 v84, v0, 3, 2
v_lshl_add_u32 v75, v84, 7, v75
v_lshlrev_b32 v73, 10, v73
v_lshl_add_u32 v73, v84, 8, v73
v_lshl_add_u32 v73, v74, 4, v73
s_lshl_b32 s47, s38, 16
s_lshr_b32 s48, s39, 1
s_lshl_b32 s48, s48, 14
s_add_u32 s47, s47, s48
s_and_b32 s48, s39, 1
s_lshl_b32 s48, s48, 7
s_add_u32 s47, s47, s48
v_add_u32 v74, s47, v73
v_add_u32 v73, {XI}, v75
v_xor_b32 v85, 32, v73''')
    def beta_resid(s, layer):
        a = s.a
        for rr in range(2):
            for T2 in range(2):
                r = 76 + 4*rr + 2*T2
                if layer == 0: a(f'buffer_load_dwordx2 v[{r}:{r+1}], v{69+rr}, s[4:7], 0 offen offset:{512*T2}')
                else: a(f'buffer_load_dwordx2 v[{r}:{r+1}], v68, s[28:31], s49 offen offset:{1024*rr+512*T2}{s.ldf}')
    def beta_main(s, layer):
        a = s.a
        ad = AD0 if layer == 0 else AD1
        a(f'''
s_sub_u32 s47, 32, s38
s_cmp_lt_u32 s39, 4
s_cselect_b32 s47, s38, s47
s_add_u32 s48, s47, 32
s_cmp_eq_u32 s38, 0
s_cselect_b32 s48, 0, s48
s_lshl_b32 s47, s47, 15
s_lshl_b32 s48, s48, 15
s_add_u32 s47, s47, {ad}
s_add_u32 s48, s48, {ad}
s_mov_b32 s49, {X2O}''')
        D = 96
        for p in range(2):
            for i in range(8):
                r = D + 32*p + 4*i
                a(f'buffer_load_dwordx4 v[{r}:{r+3}], v48, s[28:31], s{47+p} offen{s.adf}')
                if i < 7: a(f's_add_u32 s{47+p}, s{47+p}, 4096')
        nw = 0; nr = 0; spr = []
        if layer == 0:
            s.beta_resid(layer); nr = 4
            if s.pf2 == 2: s.touch(20, 246); nw += 2
            a(f's_mul_i32 s54, s40, 224\ns_mul_i32 s55, s41, {4*32*3584}\ns_add_u32 s54, s54, s55')
            s.w2_setup(0, 86, 55)
            if not s.w1e: spr.extend(s.w1_items())
            for i in range(s.nw2b):
                spr.append(f'buffer_load_dwordx4 a[{4*i}:{4*i+3}], v86, s[20:23], s55 offen\nv_add_u32 v86, 8192, v86')
        T = 160
        C = 192
        for p in range(2):
            a(f's_waitcnt vmcnt({(8 if p == 0 else 0) + nr + nw + a.nspr * (p == 1 and layer == 0)})')
            if p == 0 and spr: a.sprinkle(spr, s.every)
            if p == 0: s.fstamp('beta AD0 arrived', 'beta')
            for i in range(8):
                r = D + 32*p + 4*i
                a(f'ds_write_b128 v{49 + ((i>>1)&1)}, v[{r}:{r+3}] offset:{1024*i}')
            for dt in range(8):
                for h in range(2):
                    r = T + 4*dt + 2*h
                    a(f'ds_read_b64_tr_b16 v[{r}:{r+1}], v{51+dt} offset:{1024*h}')
            for dt in range(8):
                a(f's_waitcnt lgkmcnt({14-2*dt})')
                src = '0' if p == 0 else f'v[{C+4*dt}:{C+4*dt+3}]'
                a(f'v_mfma_f32_16x16x32_bf16 v[{C+4*dt}:{C+4*dt+3}], v[{T+4*dt}:{T+4*dt+3}], a[{224+4*p}:{227+4*p}], {src}')
        for dt in range(8):
            c = C + 4*dt
            a(f'v_cvt_pk_bf16_f32 v{c}, v{c}, v{c+1}\nv_cvt_pk_bf16_f32 v{c+1}, v{c+2}, v{c+3}')
            a(f'ds_write_b64 v{59+(dt&3)}, v[{c}:{c+1}] offset:{128*(dt>>2)}')
        if layer == 0:
            a(f's_lshl_b32 s47, s41, 13\ns_add_u32 s47, s47, {LS}\ns_lshr_b32 s48, s41, 1\ns_mul_i32 s48, s48, 8188\ns_add_u32 s47, s47, s48\nv_mov_b32 v96, s47\nv_mov_b32 v97, s53\nds_write_b32 v96, v97')
        a('s_waitcnt lgkmcnt(0)\ns_barrier')
        if layer == 0:
            a(f'v_lshlrev_b32 v96, 13, v4\nv_lshrrev_b32 v97, 1, v4\nv_mul_u32_u24 v97, 8188, v97\nv_add_u32 v96, v96, v97\nv_add_u32 v96, {LS}, v96\nds_read_b32 v97, v96\ns_waitcnt lgkmcnt(0)\nv_cmp_ne_u32 vcc, 0, v97\ns_nop 4\ns_cmp_eq_u64 vcc, 0\ns_cselect_b32 s43, 1, 0')
            if s.force_slow: a('s_mov_b32 s43, 0')
        if layer == 1: s.beta_resid(layer)
        s.fstamp('beta U done', 'beta')
        for rr in range(2):
            for Tt in range(2):
                for h in range(2):
                    r = D + 8*rr + 4*Tt + 2*h
                    a(f'ds_read_b64_tr_b16 v[{r}:{r+1}], v{63+2*rr+Tt} offset:{256*h}')
        P = 112
        for rr in range(2):
            a(f's_waitcnt lgkmcnt({4 if rr == 0 else 0})')
            for Tt in range(2):
                for ci in range(2):
                    p = P + 16*rr + 8*Tt + 4*ci
                    a(f'v_mfma_f32_16x16x32_bf16 v[{p}:{p+3}], v[{D+8*rr+4*Tt}:{D+8*rr+4*Tt+3}], v[{8+4*ci}:{11+4*ci}], 0')
        Q = 144
        for rr in range(2):
            for Tt in range(2):
                pr = P + 16*rr + 8*Tt; pi = pr + 4
                for jj in range(0, 4, 2):
                    tc = 32 + 4*Tt + jj; ts = 40 + 4*Tt + jj; t0 = 160 + 8*Tt + jj; t1 = t0 + 4
                    a(f'''v_pk_mul_f32 v[{t0}:{t0+1}], v[{pr+jj}:{pr+jj+1}], v[{tc}:{tc+1}]
v_pk_mul_f32 v[{t1}:{t1+1}], v[{pi+jj}:{pi+jj+1}], v[{tc}:{tc+1}]
v_pk_fma_f32 v[{t0}:{t0+1}], v[{pi+jj}:{pi+jj+1}], v[{ts}:{ts+1}], v[{t0}:{t0+1}]
v_pk_fma_f32 v[{t1}:{t1+1}], v[{pr+jj}:{pr+jj+1}], v[{ts}:{ts+1}], v[{t1}:{t1+1}] neg_lo:[1,0,0] neg_hi:[1,0,0]''')
                t0 = 160 + 8*Tt
                a(f'''v_cvt_pk_bf16_f32 v{Q+8*rr+2*Tt}, v{t0}, v{t0+1}
v_cvt_pk_bf16_f32 v{Q+8*rr+2*Tt+1}, v{t0+2}, v{t0+3}
v_cvt_pk_bf16_f32 v{Q+8*rr+4+2*Tt}, v{t0+4}, v{t0+5}
v_cvt_pk_bf16_f32 v{Q+8*rr+4+2*Tt+1}, v{t0+6}, v{t0+7}''')
        s.fstamp('beta twiddle done', 'beta')
        Y = 176
        for rr in range(2):
            for T2 in range(2):
                y = Y + 8*rr + 4*T2
                a(f'v_mfma_f32_16x16x32_bf16 v[{y}:{y+3}], v[{Q+8*rr}:{Q+8*rr+3}], v[{16+8*T2}:{19+8*T2}], 0')
            for T2 in range(2):
                y = Y + 8*rr + 4*T2
                a(f'v_mfma_f32_16x16x32_bf16 v[{y}:{y+3}], v[{Q+8*rr+4}:{Q+8*rr+7}], v[{20+8*T2}:{23+8*T2}], v[{y}:{y+3}]')
        a(f's_waitcnt vmcnt({min(63, nw + (a.nspr if layer == 0 else 0))})')
        for rr in range(2):
            for T2 in range(2):
                y = Y + 8*rr + 4*T2; x = 76 + 4*rr + 2*T2
                for k in range(2):
                    a(f'''v_lshlrev_b32 v96, 16, v{x+k}
v_and_b32 v97, 0xffff0000, v{x+k}
v_add_f32 v{y+2*k}, v{y+2*k}, v96
v_add_f32 v{y+2*k+1}, v{y+2*k+1}, v97''')
            y = Y + 8*rr; S_, Q_ = 100 + 2*rr, 101 + 2*rr
            a(f'v_add_f32 v{S_}, v{y}, v{y+1}\nv_mul_f32 v{Q_}, v{y}, v{y}\nv_fma_f32 v{Q_}, v{y+1}, v{y+1}, v{Q_}')
            for k in range(2, 8): a(f'v_add_f32 v{S_}, v{S_}, v{y+k}\nv_fma_f32 v{Q_}, v{y+k}, v{y+k}, v{Q_}')
        s.wave_reduce([100, 101, 102, 103], 104, rows=True)
        for rr in range(2):
            s.finish_stats(100 + 2*rr, 101 + 2*rr)
        for rr in range(2):
            y = Y + 8*rr
            for k in range(4): a(f'v_cvt_pk_bf16_f32 v{208+4*rr+k}, v{y+2*k}, v{y+2*k+1}')
            for k in range(8): a(f'v_fma_f32 v{y+k}, v{y+k}, v{100+2*rr}, v{101+2*rr}')
            for k in range(4): a(f'v_cvt_pk_bf16_f32 v{216+4*rr+k}, v{y+2*k}, v{y+2*k+1}')
        a.flush()
        a(f's_mov_b32 s47, {X1O + LAYOFF*layer}\ns_mov_b32 s48, {XNO + LAYOFF*layer}')
        s.fstamp('beta epilogue done', 'beta')
        for rr in range(2):
            for T2 in range(2):
                a(f'ds_write_b64 v{71+rr}, v[{216+4*rr+2*T2}:{217+4*rr+2*T2}] offset:{4096*T2}')
        def st1(f):
            for rr in range(2):
                for T2 in range(2):
                    a(f'buffer_store_dwordx2 v[{208+4*rr+2*T2}:{209+4*rr+2*T2}], v68, s[28:31], s47 offen offset:{1024*rr+512*T2}{f}')
        s.dual(st1)
        a('s_waitcnt lgkmcnt(0)\ns_barrier')
        a('ds_read_b128 v[216:219], v73\nds_read_b128 v[220:223], v85 offset:1024')
        def st2(f):
            a(f's_waitcnt lgkmcnt(1)\nbuffer_store_dwordx4 v[216:219], v74, s[28:31], s48 offen{f}')
            a(f's_waitcnt lgkmcnt(0)\nbuffer_store_dwordx4 v[220:223], v74, s[28:31], s48 offen offset:2048{f}')
        s.dual(st2)
        s.fstamp('beta stores issued', 'beta')
    def wave_reduce(s, rs, t, rows):
        a = s.a
        if rows:
            for ctl in ('quad_perm:[1,0,3,2]', 'quad_perm:[2,3,0,1]', 'row_half_mirror', 'row_mirror'):
                for r in rs: a(f'v_add_f32_dpp v{r}, v{r}, v{r} {ctl} row_mask:0xf bank_mask:0xf')
        for sw in ('v_permlane16_swap_b32', 'v_permlane32_swap_b32'):
            for k, r in enumerate(rs): a(f'v_mov_b32 v{t+k}, v{r}')
            for k, r in enumerate(rs): a(f'{sw} v{r}, v{t+k}')
            for k, r in enumerate(rs): a(f'v_add_f32 v{r}, v{r}, v{t+k}')
    def gamma(s):
        a = s.a
        XB, A, C = 8, 136, 192
        a(f'''
v_lshlrev_b32 v5, 4, v0
s_lshl_b32 s47, s46, 16
s_and_b32 s48, s41, 1
s_lshl_b32 s48, s48, 15
s_add_u32 s47, s47, s48
s_add_u32 s47, s47, {XNO + LAYOFF*s.lay}
s_add_u32 s48, s47, 16384''')
        issued = []
        def ldx(ks):
            for rt in range(2):
                r = XB + 8*ks + 4*rt
                a(f'buffer_load_dwordx4 v[{r}:{r+3}], v5, s[28:31], s{47+rt} offen offset:{1024*(ks&3)}{s.ldf}'); issued.append(ks)
            if (ks & 3) == 3 and ks < 15: a('s_add_u32 s47, s47, 4096\ns_add_u32 s48, s48, 4096')
        nx0 = 4 if s.lay == 0 else s.gx0
        for ks in range(nx0): ldx(ks)
        nx = [nx0]; nw2 = [s.nw2b]
        if s.lay == 0: s.w2_setup(s.nw2b, 250, 55)
        a(f'''v_lshl_add_u32 v252, v2, 2, v3
v_mul_u32_u24 v252, 224, v252
v_lshl_add_u32 v252, v4, 3, v252
v_add_u32 v252, {LW1}, v252
v_add_u32 v253, 57344, v252''')
        def rd(n, h):
            ks = n // 7; ft = n % 7; b = 252 if ks < 8 else 253; o = 7168*(ks & 7) + 32*ft
            r = A + 4*(n % 8)
            a(f'ds_read_b64_tr_b16 v[{r+2*h}:{r+2*h+1}], v{b} offset:{o + 3584*h}')
        for n in range(7): rd(n, 0); rd(n, 1)
        for ks in range(16):
            last = max(k for k, t in enumerate(issued) if t == ks)
            a(f's_waitcnt vmcnt({len(issued) - 1 - last})')
            if ks in (0, 6): s.fstamp(f'gamma ks{ks}', 'gamma')
            for ft in range(7):
                n = 7*ks + ft
                a(f's_waitcnt lgkmcnt({2*min(6, 111-n)})')
                r = A + 4*(n % 8)
                for rt in range(2):
                    c = C + 8*ft + 4*rt
                    src = '0' if ks == 0 else f'v[{c}:{c+3}]'
                    a(f'v_mfma_f32_16x16x32_bf16 v[{c}:{c+3}], v[{r}:{r+3}], v[{XB+8*ks+4*rt}:{XB+8*ks+4*rt+3}], {src}')
                    if n + 7 < 112: rd(n + 7, rt)
                if ft in (1, 4):
                    if s.lay == 1 and ft == 4 and s.gx1: pass
                    elif nx[0] < 16: ldx(nx[0]); nx[0] += 1
                    elif s.lay == 0 and nw2[0] < 56:
                        k = min((56 - s.nw2b + 19) // 20, 56 - nw2[0])
                        s.w2_issue(nw2[0], nw2[0] + k, 250, 55); issued.extend(['w']*k); nw2[0] += k
        if s.lay == s.finel: s.stamp('gamma mfma done')
        if s.lay == 0:
            s.w2_issue(nw2[0], 56, 250, 55)
        P = 8
        for ft in range(7):
            for rt in range(2):
                c = C + 8*ft + 4*rt; p = P + 16*rt + 2*ft
                a(f'v_cvt_pk_bf16_f32 v{p}, v{c}, v{c+1}\nv_cvt_pk_bf16_f32 v{p+1}, v{c+2}, v{c+3}')
                a(f'v_pk_max_i16 v{p}, v{p}, 0\nv_pk_max_i16 v{p+1}, v{p+1}, 0')
        a(f'''
s_mul_i32 s47, s46, 229376
s_and_b32 s48, s41, 1
s_mul_i32 s48, s48, {2*57344}
s_add_u32 s47, s47, s48
s_mul_i32 s48, s40, 7
s_lshr_b32 s48, s48, 1
s_lshl_b32 s48, s48, 10
s_add_u32 s47, s47, s48
s_add_u32 s47, s47, {HO + LAYOFF*s.lay}
s_add_u32 s48, s47, 57344''')
        a('v_lshlrev_b32 v250, 3, v0')
        od = s.label('ODD'); jn = s.label('GJ')
        a(f's_bitcmp1_b32 s40, 0\ns_cbranch_scc1 {od}')
        def st_even(f):
            for rt in range(2):
                p = P + 16*rt
                for k in range(3): a(f'buffer_store_dwordx4 v[{p+4*k}:{p+4*k+3}], v5, s[28:31], s{47+rt} offen offset:{1024*k}{f}')
                a(f'buffer_store_dwordx2 v[{p+12}:{p+13}], v250, s[28:31], s{47+rt} offen offset:3072{f}')
        s.dual(st_even)
        a(f's_branch {jn}\n{od}:')
        def st_odd(f):
            for rt in range(2):
                p = P + 16*rt
                a(f'buffer_store_dwordx2 v[{p}:{p+1}], v250, s[28:31], s{47+rt} offen offset:512{f}')
                for k in range(3): a(f'buffer_store_dwordx4 v[{p+2+4*k}:{p+5+4*k}], v5, s[28:31], s{47+rt} offen offset:{1024*(k+1)}{f}')
        s.dual(st_odd)
        a(f'{jn}:')
    def delta_addr(s):
        a = s.a
        a('''
s_lshl_b32 s47, s38, 16
s_lshl_b32 s48, s41, 14
s_add_u32 s47, s47, s48
s_lshl_b32 s48, s39, 7
s_add_u32 s47, s47, s48
v_lshlrev_b32 v6, 10, v1
v_lshl_add_u32 v6, v2, 3, v6
v_add_u32 v6, s47, v6
v_lshlrev_b32 v5, 4, v0''')
    def delta(s, layer):
        a = s.a
        C, R, X = 8, 72, 200
        a(f's_mov_b32 s49, {X1O + LAYOFF*layer}\nv_lshlrev_b32 v7, 3, v0')
        a(f's_mul_i32 s47, s38, 229376\ns_mul_i32 s48, s41, 14336\ns_add_u32 s47, s47, s48\ns_add_u32 s47, s47, {HO + LAYOFF*layer}')
        for sl in range(4):
            a(f's_add_u32 s48, s41, {sl}\ns_and_b32 s48, s48, 3\ns_mul_i32 s48, s48, 57344\ns_add_u32 s{50+sl}, s47, s48')
        issued = []
        def ld(st):
            for sl in range(4):
                r = R + 16*(st & 7) + 4*sl
                if st in (3, 10):
                    a(f'buffer_load_dwordx2 v[{r}:{r+1}], v7, s[28:31], s{50+sl} offen offset:{1024*(st&3)}{s.ldf}')
                    a(f'buffer_load_dwordx2 v[{r+2}:{r+3}], v7, s[28:31], s{50+sl} offen offset:{1024*(st&3)+512}{s.ldf}')
                    issued.extend([st, st])
                else:
                    a(f'buffer_load_dwordx4 v[{r}:{r+3}], v5, s[28:31], s{50+sl} offen offset:{1024*(st&3)}{s.ldf}')
                    issued.append(st)
            if (st & 3) == 3:
                for sl in range(4): a(f's_add_u32 s{50+sl}, s{50+sl}, 4096')
        for st in range(3): ld(st)
        nl = [3]
        for st in range(14):
            last = max(k for k, t in enumerate(issued) if t == st)
            ops = []
            if layer == 0:
                a(f's_waitcnt vmcnt({len(issued) - 1 - last}) lgkmcnt({12 if st < 13 else 0})')
                if st + 2 < 14: ops = s.w2t_ops(st + 2)
            else:
                a(f's_waitcnt vmcnt({len(issued) - 1 - last})')
            if st in (0, 4, 8): s.fstamp(f'delta st{st}', 'delta')
            for sl in range(4):
                for nt in range(4):
                    c = C + 16*sl + 4*nt; r = R + 16*(st & 7) + 4*sl
                    src = '0' if st == 0 else f'v[{c}:{c+3}]'
                    a(f'v_mfma_f32_16x16x32_bf16 v[{c}:{c+3}], a[{16*st+4*nt}:{16*st+4*nt+3}], v[{r}:{r+3}], {src}')
                    if ops: a(ops.pop(0))
            for _ in range(2):
                if nl[0] < 14 and nl[0] <= st + 8: ld(nl[0]); nl[0] += 1
            if st == 6:
                for nt in range(4):
                    a(f'buffer_load_dwordx2 v[{X+2*nt}:{X+2*nt+1}], v6, s[28:31], s49 offen offset:{32*nt}{s.ldf}'); issued.append('x')
                if layer == 0: s.alpha_consts(208, 228); issued.extend(['c']*4)
        if layer == s.finel: s.stamp('delta mfma done')
        if layer == 0: a('s_barrier')
        a(f'v_add_u32 v72, {LS}, v5')
        for sl in range(1, 4):
            a(f's_add_u32 s47, s41, {sl}\ns_and_b32 s47, s47, 3\ns_mul_i32 s47, s47, 12288\nv_add_u32 v{72+sl}, s47, v72')
        a('s_mul_i32 s47, s41, 12288\nv_add_u32 v72, s47, v72')
        for sl in range(1, 4):
            for nt in range(4):
                c = C + 16*sl + 4*nt
                a(f'ds_write_b128 v{72+sl}, v[{c}:{c+3}] offset:{4096*(sl-1)+1024*nt}')
        a('s_waitcnt lgkmcnt(0)\ns_barrier')
        for sl in range(1, 4):
            for nt in range(4):
                c = C + 16*sl + 4*nt
                a(f'ds_read_b128 v[{c}:{c+3}], v72 offset:{4096*(sl-1)+1024*nt}')
        a('s_waitcnt vmcnt(0)')
        for nt in range(4):
            for k in range(2):
                a(f'''v_lshlrev_b32 v76, 16, v{X+2*nt+k}
v_and_b32 v77, 0xffff0000, v{X+2*nt+k}
v_add_f32 v{C+4*nt+2*k}, v{C+4*nt+2*k}, v76
v_add_f32 v{C+4*nt+2*k+1}, v{C+4*nt+2*k+1}, v77''')
        for sl in range(1, 4):
            a(f's_waitcnt lgkmcnt({4*(3-sl)})')
            for k in range(16): a(f'v_add_f32 v{C+k}, v{C+k}, v{C+16*sl+k}')
        for k in range(8): a(f'v_cvt_pk_bf16_f32 v{X+k}, v{C+2*k}, v{C+2*k+1}')
        if layer == 1:
            a('''
s_lshl_b32 s47, s41, 1
v_lshrrev_b32 v7, 3, v1
v_add_u32 v7, s47, v7
v_lshrrev_b32 v76, 2, v7
v_and_b32 v7, 3, v7
v_lshl_add_u32 v76, v7, 4, v76
v_and_b32 v7, 7, v1
v_lshl_add_u32 v76, v7, 1, v76
v_lshlrev_b32 v76, 5, v76
v_add_u32 v76, s38, v76
v_lshlrev_b32 v76, 10, v76
v_lshl_add_u32 v76, v2, 3, v76
s_lshl_b32 s47, s39, 7''')
            for nt in range(4): a(f'buffer_store_dwordx2 v[{X+2*nt}:{X+2*nt+1}], v76, s[24:27], s47 offen offset:{32*nt}')
            return
        a(f'v_add_f32 v76, v{C}, v{C+1}\nv_mul_f32 v77, v{C}, v{C}\nv_fma_f32 v77, v{C+1}, v{C+1}, v77')
        for k in range(2, 16): a(f'v_add_f32 v76, v76, v{C+k}\nv_fma_f32 v77, v{C+k}, v{C+k}, v77')
        s.wave_reduce([76, 77], 78, rows=False)
        a(f'''
s_lshl_b32 s47, s38, 13
s_lshl_b32 s48, s41, 11
s_add_u32 s47, s47, s48
s_add_u32 s47, s47, {STO}
s_lshl_b32 s48, s39, 4
s_add_u32 s48, s48, s47
v_lshlrev_b32 v80, 7, v1
s_mov_b32 s49, {X2O}
s_add_u32 s56, s42, 48
v_mov_b32 v78, v77
v_mov_b32 v77, s56
v_mov_b32 v79, s56''')
        def st(f):
            a('s_mov_b64 exec, 0xffff')
            a(f'buffer_store_dwordx4 v[76:79], v80, s[28:31], s48 offen{f}')
            a('s_mov_b64 exec, -1')
            for nt in range(4): a(f'buffer_store_dwordx2 v[{X+2*nt}:{X+2*nt+1}], v6, s[28:31], s49 offen offset:{32*nt}{f}')
        s.dual(st)
    def delta_norm(s):
        a = s.a
        C = 8
        lp = s.label('SP'); dn = s.label('SD')
        a(f'''v_lshl_add_u32 v80, v2, 5, v80
s_mov_b32 s58, 0x40000
{lp}:
buffer_load_dwordx4 v[72:75], v80, s[28:31], s47 offen sc1
buffer_load_dwordx4 v[76:79], v80, s[28:31], s47 offen offset:16 sc1
s_waitcnt vmcnt(0)
v_cmp_ne_u32 vcc, s56, v73
v_cmp_ne_u32 s[48:49], s56, v75
s_nop 1
s_or_b64 vcc, vcc, s[48:49]
v_cmp_ne_u32 s[48:49], s56, v77
s_nop 1
s_or_b64 vcc, vcc, s[48:49]
v_cmp_ne_u32 s[48:49], s56, v79
s_nop 1
s_or_b64 vcc, vcc, s[48:49]
s_cbranch_vccz {dn}
s_sub_u32 s58, s58, 1
s_cmp_lg_u32 s58, 0
s_cbranch_scc1 {lp}
{dn}:
v_add_f32 v76, v72, v76
v_add_f32 v77, v74, v78''')
        s.stamp('stats poll')
        s.wave_reduce([76, 77], 78, rows=False)
        s.finish_stats(76, 77)
        for k in range(0, 16, 2): a(f'v_fma_f32 v{C+k}, v{C+k}, v76, v77\nv_fma_f32 v{C+k+1}, v{C+k+1}, v76, v77\nv_cvt_pk_bf16_f32 v{C+k//2}, v{C+k}, v{C+k+1}')
        for nt in range(4):
            a(f'ds_write_b64 v{226 if nt < 2 else 227}, v[{C+2*nt}:{C+2*nt+1}] offset:{16*(nt&1)}')
    def xtile_addr(s):
        s.a(f'''
s_mul_i32 s48, s41, 12288
s_add_u32 s48, s48, {LS}
v_bfe_u32 v226, v1, 1, 1
v_bfe_u32 v227, v1, 3, 1
v_lshl_or_b32 v226, v227, 1, v226
v_and_b32 v227, 1, v2
v_xor_b32 v226, v226, v227
v_lshlrev_b32 v226, 5, v226
v_lshrrev_b32 v227, 1, v2
v_lshl_add_u32 v226, v227, 3, v226
v_lshl_add_u32 v226, v1, 7, v226
v_add_u32 v226, s48, v226
v_xor_b32 v227, 64, v226''')
    def bar_addr(s, arr, v):
        s.a(f'''
v_lshrrev_b32 v{v}, 1, v0
v_and_b32 v{v+1}, 3, v{v}
v_lshrrev_b32 v{v}, 2, v{v}
v_lshl_add_u32 v{v}, v{v+1}, 6, v{v}
v_and_b32 v{v+1}, 1, v0
v_lshl_add_u32 v{v}, v{v+1}, 3, v{v}
s_lshl_b32 s47, s41, 4
v_add_u32 v{v}, s47, v{v}
v_lshlrev_b32 v{v}, 6, v{v}
v_add_u32 v{v}, {FLO + arr*0x8000}, v{v}''')
    def barrier0(s):
        a = s.a; pf = s.label('PF'); jn = s.label('PJ'); lp = s.label('BP'); dn = s.label('BD')
        a(f's_mov_b32 s53, 0\ns_cmp_ge_u32 s41, 2\ns_cbranch_scc1 {pf}')
        s.bar_addr(0, 222)
        a(f'''s_mov_b32 s56, s42
s_mov_b32 s58, 0x40000
{lp}:
buffer_load_dword v223, v222, s[28:31], 0 offen sc1
buffer_load_dword v224, v222, s[28:31], 0 offen offset:2048 sc1
s_waitcnt vmcnt(0)
v_and_b32 v225, 0xfffffff0, v223
v_and_b32 v226, 0xfffffff0, v224
v_cmp_ne_u32 vcc, s56, v225
v_cmp_ne_u32 s[48:49], s56, v226
s_nop 4
s_or_b64 vcc, vcc, s[48:49]
s_cbranch_vccz {dn}
s_sub_u32 s58, s58, 1
s_cmp_lg_u32 s58, 0
s_cbranch_scc1 {lp}
{dn}:
v_and_b32 v223, 15, v223
v_and_b32 v224, 15, v224
v_cmp_ne_u32 vcc, s59, v223
v_cmp_ne_u32 s[48:49], s59, v224
s_nop 4
s_or_b64 vcc, vcc, s[48:49]
s_lshl_b32 s47, s36, 3
s_lshl_b64 s[48:49], 0xff, s47
s_and_b64 s[48:49], s[48:49], vcc
s_cmp_lg_u64 s[48:49], 0
s_cselect_b32 s53, 1, 0
s_branch {jn}
{pf}:''')
        if s.pf1 == 2:
            a('''s_mul_i32 s54, s37, 57344
s_sub_u32 s55, s41, 2
s_lshl_b32 s55, s55, 15
s_add_u32 s54, s54, s55
s_cmp_eq_u32 s41, 3
s_cselect_b32 s55, 0, 8192
v_lshlrev_b32 v240, 7, v0
buffer_load_dword v241, v240, s[16:19], s54 offen
s_add_u32 s54, s54, 8192
buffer_load_dword v242, v240, s[16:19], s54 offen
s_add_u32 s54, s54, 8192
buffer_load_dword v243, v240, s[16:19], s54 offen
s_add_u32 s54, s54, s55
buffer_load_dword v244, v240, s[16:19], s54 offen''')
        a(f'{jn}:\ns_barrier')
    def grp16_base(s, arr, dst):
        s.a(f'''s_lshr_b32 s{dst}, s37, 4
s_lshl_b32 s48, s36, 1
s_add_u32 s{dst}, s{dst}, s48
s_lshl_b32 s{dst}, s{dst}, 8
s_add_u32 s{dst}, s{dst}, {FLO + arr*0x8000}''')
    def grp16_poll(s, arr):
        s.grp16_base(arr, 47)
        s.a(f'''s_lshl_b32 s48, s41, 6
s_add_u32 s47, s47, s48
v_lshlrev_b32 v222, 2, v1
v_add_u32 v222, s47, v222
s_add_u32 s56, s42, {16*arr}''')
        s.poll(222, 223, 56)
    def grp16_signal(s, arr):
        s.grp16_base(arr, 54)
        s.a('s_lshl_b32 s48, s40, 4\ns_add_u32 s54, s54, s48\ns_lshl_b32 s48, s41, 2\ns_add_u32 s54, s54, s48')
        s.wave_signal(arr, 54)
    def dump_stamps(s):
        if not s.stamps: return
        a = s.a
        a(f's_lshl_b32 s47, s2, 2\ns_add_u32 s47, s47, s41\ns_lshl_b32 s47, s47, 7\ns_add_u32 s47, s47, {DBO}\nv_mov_b32 v5, s47\ns_mov_b64 exec, 1')
        for k in range(s.nst):
            a(f'v_mov_b32 v6, s{60+2*k}\nbuffer_store_dword v6, v5, s[28:31], 0 offen offset:{4*k}')
        for k, r in enumerate((43, 59, 53, 98, 100)):
            a(f'v_mov_b32 v6, s{r}\nbuffer_store_dword v6, v5, s[28:31], 0 offen offset:{4*(24+k)}')
        a('s_mov_b64 exec, -1')
    def build(s):
        a = s.a
        s.prologue()
        s.alpha_in1(); s.alpha_consts(128); s.g_load()
        npre = 0
        if s.pretouch:
            a(f'v_lshlrev_b32 v95, 20, v0\nv_min_u32 v95, {WSZ - 4}, v95\nbuffer_load_dword v96, v95, s[28:31], 0 offen\nv_and_b32 v95, 1, v0\nv_lshlrev_b32 v95, 20, v95\nbuffer_load_dword v96, v95, s[24:27], 0 offen')
            npre = 2
        if s.cpf:
            a(f'''s_lshl_b32 s47, s37, 12
s_lshl_b32 s48, s41, 10
s_add_u32 s47, s47, s48
v_lshlrev_b32 v95, 4, v0
v_add_u32 v95, s47, v95
v_min_u32 v95, TABLE-{KN}_kernel+{len(tables())*4 - 16}, v95
s_sub_u32 s48, s44, TABLE-{KN}_kernel
s_subb_u32 s49, s45, 0
global_load_dwordx4 v[248:251], v95, s[48:49]''')
            npre += 1
        if s.htouch:
            if s.htouch == 1:
                a(f'v_min_u32 v238, 6, v0\nv_lshlrev_b32 v238, 12, v238\ns_mov_b32 s55, 0')
            else:
                a(f'v_min_u32 v238, 55, v0\nv_lshlrev_b32 v238, 7, v238\ns_mul_i32 s55, s41, 7168')
            a(f's_mul_i32 s54, s38, 229376\ns_add_u32 s54, s54, s55\ns_mul_i32 s55, s39, 28672\ns_add_u32 s54, s54, s55\ns_add_u32 s54, s54, {HO}\nbuffer_load_dword v239, v238, s[28:31], s54 offen sc1')
            npre += 1
        if s.pf1 == 1: s.touch(16, 240); npre += 2
        if s.pf2 == 1: s.touch(20, 244); npre += 2
        s.w1_load()
        if s.w1e:
            a(f's_mul_i32 s54, s40, 224\ns_mul_i32 s55, s41, {4*32*3584}\ns_add_u32 s54, s54, s55')
            it = s.w1_items()
            for x in it[:s.w1e]: a(x)
            npre += s.w1e
        a(f's_waitcnt vmcnt({6 + npre})')
        s.stamp('x arrived')
        if s.w1e:
            for x in it[s.w1e:]: a(x)
            npre += 28 - s.w1e
        a('v_mov_b32 v95, 0\nbuffer_load_dword v95, v95, s[32:35], 0 offen sc1')
        s.alpha_ln1()
        a(f's_waitcnt vmcnt({3 + npre}) lgkmcnt(0)\ns_barrier')
        s.alpha_core(128, AD0)
        s.fstamp('alpha stores issued', 'alpha')
        a('s_waitcnt vmcnt(0)')
        dn = s.label('ND')
        a(f'''v_readfirstlane_b32 s42, v95
s_cmp_lg_u32 s42, 0
s_cbranch_scc1 {dn}''')
        s.get_nonce()
        a(f'{dn}:')
        a('s_lshl_b32 s54, s2, 6')
        s.signal(0, 54, 0, dual=False, xcc=True, vm=0)
        s.stamp('sig0')
        s.g_make()
        if s.w1e: s.w1_store()
        s.beta_consts(); s.beta_addr(0)
        for layer in range(2):
            arr = 4*layer; s.lay = layer
            if layer == 1:
                a('s_waitcnt lgkmcnt(0)\ns_barrier')
                s.alpha_core(208, AD1)
                a('s_lshl_b32 s54, s2, 6')
                s.signal(4, 54, 4, dual=False)
                s.stamp('sig4')
                s.beta_consts(); s.beta_addr(1)
            if layer == 0: s.barrier0()
            else:
                s.bar_addr(arr, 222)
                a(f's_add_u32 s56, s42, {16*arr}')
                s.poll(222, 223, 56)
            s.stamp('bar done')
            s.beta_main(layer)
            s.grp16_signal(arr + 1)
            if layer == s.finel: s.stamp('beta sig')
            if s.stop == f'beta{layer}': return s.end()
            if layer == 0 and not s.w1e: s.w1_store()
            s.grp16_poll(arr + 1)
            if layer == 0 and not s.w1e: a('s_waitcnt lgkmcnt(0)\ns_barrier')
            s.stamp('beta poll')
            s.gamma()
            s.grp16_signal(arr + 2)
            if layer == s.finel: s.stamp('gamma sig')
            if s.stop == f'gamma{layer}': return s.end()
            if layer == 0: s.w2_transpose(0, 2, LS + 32768)
            s.delta_addr()
            if layer == 0: s.xtile_addr()
            s.grp16_poll(arr + 2)
            s.stamp('gamma poll')
            s.delta(layer)
            if layer == 0:
                s.delta_norm()
                if s.stop == 'delta0': return s.end()
        return s.end()
    def end(s):
        a = s.a
        s.stamp('end')
        if s.stamps: a('s_memtime s[100:101]\ns_waitcnt lgkmcnt(0)')
        s.dump_stamps()
        a('END:\ns_endpgm')
        body, nn = a.finish()
        tab = tables()
        t = '\n'.join('.long ' + ','.join('0x%08x' % x for x in tab[i:i+8]) for i in range(0, len(tab), 8))
        hdr = open('cdna_kernels/' + KN + '.s.ref').read().split('; Override')[0]
        txt = hdr + f'''; Single persistent kernel: LN + FFT-factorised FNet mixing + FFN GEMMs, 256 workgroups (one per CU).
; @launch grid=(256,1,1) block=(256,1,1) lds=163840
.amdgcn_target "amdgcn-amd-amdhsa--gfx950"
.text
.globl {KN}_kernel
.p2align 8
.type {KN}_kernel,@function
{KN}_kernel:
{body}
.p2align 8
.type TABLE,@object
TABLE:
{t}
.size TABLE, {len(tab)*4}
.section .rodata,"a"
.p2align 6
.amdhsa_kernel {KN}_kernel
  .amdhsa_next_free_vgpr 512
  .amdhsa_next_free_sgpr 102
  .amdhsa_accum_offset 256
  .amdhsa_group_segment_fixed_size 0
  .amdhsa_kernarg_size 88
  .amdhsa_user_sgpr_count 2
  .amdhsa_user_sgpr_kernarg_segment_ptr 1
  .amdhsa_system_sgpr_workgroup_id_x 1
  .amdhsa_float_denorm_mode_32 3
.end_amdhsa_kernel
'''
        return txt
if __name__ == '__main__':
    import argparse
    ap = argparse.ArgumentParser(); ap.add_argument('out'); ap.add_argument('--stop'); ap.add_argument('--stamps', action='store_true'); ap.add_argument('--slow', action='store_true'); ap.add_argument('--fine'); ap.add_argument('--pre', action='store_true'); ap.add_argument('--cpf', action='store_true'); ap.add_argument('--nt', action='store_true'); ap.add_argument('--adsc1', action='store_true'); ap.add_argument('--wsoff', type=lambda x: int(x, 0), default=0); ap.add_argument('--gx0', type=int, default=5); ap.add_argument('--gx1', type=int, default=1); ap.add_argument('--w1e', type=int, default=0); ap.add_argument('--stf', default=''); ap.add_argument('--htouch', type=int, default=0); ap.add_argument('--pf1', type=int, default=1); ap.add_argument('--pf2', type=int, default=1); ap.add_argument('--nw2b', type=int, default=28); ap.add_argument('--every', type=int, default=7)
    o = ap.parse_args()
    g = Gen(o.stop, o.stamps, o.slow, o.fine); g.pretouch = o.pre; g.cpf = o.cpf; g.nt = ' nt' if o.nt else ''; g.adf = ' sc1' if o.adsc1 else ''; g.pf1 = o.pf1; g.w1e = o.w1e; g.gx0 = o.gx0; g.gx1 = o.gx1; g.wsoff = o.wsoff; g.stf = (' ' + o.stf.replace('+', ' ')) if o.stf else ''; g.htouch = o.htouch; g.pf2 = o.pf2; g.nw2b = o.nw2b; g.every = o.every
    open(o.out, 'w').write(g.build())
```

```python
import sys, numpy as np
sys.path.insert(0, 'work')
from asmlib import Asm
KN = "interleave_layers__spectral_fnet__dense_activation_relu__prompt"
AD0, AD1, X1O, X2O, XNO, HO, STO, FLO, DBO = 0x0, 0x200000, 0x400000, 0x400000, 0x800000, 0xA00000, 0x1200000, 0x1300000, 0x1380000
WSZ = 0x1400000
LAYOFF = 0
LW1 = 0; LS = 114688
def bf16(x):
    u = np.ascontiguousarray(x, dtype=np.float32).view(np.uint32)
    return ((u + 0x7FFF + ((u >> 16) & 1)) >> 16).astype(np.uint16)
def s1_of_rho(r): return ((r >> 3) >> 2) + 16 * ((r >> 3) & 3) + 2 * (r & 7)
def tables():
    l = np.arange(64); n = l & 15; q = l >> 4; kk = np.arange(8)
    T = []
    for mt in range(4):
        for ks in range(2):
            m = (16 * mt + n)[:, None]; rho = 32 * ks + 8 * q[:, None] + kk[None, :]; s1 = s1_of_rho(rho)
            v = np.where(m <= 32, np.cos(2*np.pi*((m*s1) % 64)/64), -np.sin(2*np.pi*(((m-32)*s1) % 64)/64))
            T.append(bf16(v).reshape(-1).view(np.uint32))
    ri = (q >> 1)[:, None]; d1 = 8 * (q & 1)[:, None] + kk[None, :]; th = 2*np.pi*((d1 * n[:, None]) % 16)/16
    T.append(bf16(np.where(ri == 0, np.cos(th), np.sin(th))).reshape(-1).view(np.uint32))
    T.append(bf16(np.where(ri == 0, -np.sin(th), np.cos(th))).reshape(-1).view(np.uint32))
    d2 = 16 * (kk >> 2)[None, :] + 4 * q[:, None] + (kk & 3)[None, :]
    for T2 in range(2):
        e2 = (16 * T2 + n)[:, None]; ph = 2*np.pi*((d2 * e2) % 32)/32
        T.append(bf16(np.cos(ph)).reshape(-1).view(np.uint32)); T.append(bf16(np.sin(ph)).reshape(-1).view(np.uint32))
    for fn in (np.cos, np.sin):
        for Tt in range(2):
            dd = 16 * Tt + 4 * q[:, None] + np.arange(4)[None, :]
            T.append(fn(2*np.pi*(dd * n[:, None])/512).astype(np.float32).reshape(-1).view(np.uint32))
    return np.concatenate(T)
TF64, TF16, TH32, TTW = 0, 8192, 10240, 14336

class Gen:
    def __init__(s, stop=None, stamps=False, force_slow=False, fine=None):
        s.finel = 0
        if fine and fine[-1] == '1': fine = fine[:-1]; s.finel = 1
        s.fine = fine; s.lay = 0; s.pretouch = False; s.cpf = False; s.nt = ''; s.adf = ' sc1'; s.t1 = 1; s.t2 = 1; s.w1e = 0; s.gx0 = 5; s.gx1 = 1; s.wsoff = 0; s.stf = ''; s.ldf = ' sc1'; s.htouch = 0; s.pf1 = 1; s.pf2 = 1; s.nw2b = 28; s.every = 7
        s.a = Asm(); s.stop = stop; s.stamps = stamps; s.nst = 0; s.lab = 0; s.force_slow = force_slow
    def label(s, p='L'):
        s.lab += 1; return f'{p}_{s.lab}'
    def fstamp(s, name, grp):
        if s.fine == grp and s.lay == s.finel: s.stamp(name)
    def stamp(s, name=''):
        if not s.stamps: return
        if s.fine and name not in ('start', 'end') and not name.startswith(s.fine) and name not in ('beta poll', 'gamma poll', 'bar done'): return
        k = 60 + 2 * s.nst; s.nst += 1
        assert k + 1 <= 97
        s.a(f's_memrealtime s[{k}:{k+1}]\ns_waitcnt lgkmcnt(0)')
    def dual(s, fn):
        a = s.a; l1 = s.label('SLOW'); l2 = s.label('JOIN')
        a(f's_cmp_eq_u32 s43, 0\ns_cbranch_scc1 {l1}')
        fn(s.stf); a(f's_branch {l2}\n{l1}:'); fn(' sc1'); a(f'{l2}:')
    def poll(s, vaddr, vtmp, sexp, maskxcc=False):
        a = s.a; lp = s.label('POLL'); dn = s.label('PD')
        a(f's_mov_b32 s58, 0x40000\n{lp}:')
        a(f'buffer_load_dword v{vtmp}, v{vaddr}, s[28:31], 0 offen sc1\ns_waitcnt vmcnt(0)')
        if maskxcc:
            a(f'v_and_b32 v{vtmp+1}, 0xfffffff0, v{vtmp}\nv_cmp_ne_u32 vcc, s{sexp}, v{vtmp+1}')
        else:
            a(f'v_cmp_ne_u32 vcc, s{sexp}, v{vtmp}')
        a(f's_nop 4\ns_cbranch_vccz {dn}\ns_sub_u32 s58, s58, 1\ns_cmp_lg_u32 s58, 0\ns_cbranch_scc1 {lp}\n{dn}:')
    def wave_signal(s, arr, soff):
        a = s.a
        a(f's_add_u32 s57, s42, {16*arr}\nv_mov_b32 v222, s57\nv_mov_b32 v223, s{soff}\ns_waitcnt vmcnt(0)\ns_mov_b64 exec, 1')
        s.dual(lambda f: a(f'buffer_store_dword v222, v223, s[28:31], 0 offen{f}'))
        a('s_mov_b64 exec, -1')
    def signal(s, arr, soff_expr_sgpr, phase, dual=True, xcc=False, vm=0):
        a = s.a; sk = s.label('SIG')
        a(f's_waitcnt vmcnt({vm})\ns_barrier')
        a(f's_cmp_lg_u32 s41, 0\ns_cbranch_scc1 {sk}')
        a(f's_add_u32 s57, s42, {16*phase}')
        if xcc: a('s_add_u32 s57, s57, s59')
        a(f'v_mov_b32 v5, s57\nv_mov_b32 v6, {FLO + arr*0x8000}\nv_add_u32 v6, s{soff_expr_sgpr}, v6')
        a('s_mov_b64 exec, 1')
        if dual: s.dual(lambda f: a(f'buffer_store_dword v5, v6, s[28:31], 0 offen{f}'))
        else: a('buffer_store_dword v5, v6, s[28:31], 0 offen sc1')
        a(f's_mov_b64 exec, -1\n{sk}:')

    def prologue(s):
        a = s.a
        a(f'''
s_cmp_ge_u32 s2, 256
s_cbranch_scc1 END
s_load_dwordx4 s[4:7], s[0:1], 0
s_load_dwordx2 s[12:13], s[0:1], 16
s_load_dwordx4 s[16:19], s[0:1], 48
s_load_dwordx4 s[24:27], s[0:1], 64
s_load_dwordx2 s[28:29], s[0:1], 80
s_getreg_b32 s59, hwreg(HW_REG_XCC_ID, 0, 4)
s_getpc_b64 s[44:45]
PCL:
s_add_u32 s44, s44, TABLE-PCL
s_addc_u32 s45, s45, 0
v_lshrrev_b32 v5, 6, v0
v_and_b32 v0, 63, v0
s_and_b32 s36, s2, 7
s_lshr_b32 s37, s2, 3
v_readfirstlane_b32 s41, v5
s_lshr_b32 s47, s37, 3
s_lshl_b32 s38, s36, 2
s_add_u32 s38, s38, s47
s_and_b32 s39, s37, 7
s_and_b32 s40, s37, 15
s_lshr_b32 s47, s37, 4
s_lshl_b32 s47, s47, 1
s_lshl_b32 s46, s36, 2
s_add_u32 s46, s46, s47
s_lshr_b32 s47, s41, 1
s_add_u32 s46, s46, s47
v_and_b32 v1, 15, v0
v_lshrrev_b32 v2, 4, v0
v_bfe_u32 v3, v0, 2, 2
v_and_b32 v4, 3, v0
s_waitcnt lgkmcnt(0)
s_mov_b32 s8, s6
s_mov_b32 s9, s7
s_mov_b32 s32, s26
s_mov_b32 s33, s27
s_mov_b32 s20, s18
s_mov_b32 s21, s19
s_mov_b32 s6, 0x200000
s_mov_b32 s7, 0x20000
s_mov_b32 s10, 0x800000
s_mov_b32 s11, 0x20000
s_mov_b32 s14, 0x800000
s_mov_b32 s15, 0x20000
s_mov_b32 s18, 1835008
s_mov_b32 s19, 0x20000
s_mov_b32 s22, 1835008
s_mov_b32 s23, 0x20000
s_mov_b32 s26, 0x200000
s_mov_b32 s27, 0x20000
s_mov_b32 s30, {WSZ}
s_mov_b32 s31, 0x20000
s_mov_b32 s34, 256
s_mov_b32 s35, 0x20000
s_mov_b32 s43, 0
s_add_u32 s28, s28, {s.wsoff}
s_addc_u32 s29, s29, 0
''')
        s.stamp('start')
        if s.stamps: a('s_memtime s[98:99]\ns_waitcnt lgkmcnt(0)')
        sk = s.label('NON')
        a(f'''
s_cmp_lg_u32 s2, 0
s_cbranch_scc1 {sk}
s_cmp_lg_u32 s41, 0
s_cbranch_scc1 {sk}
s_memrealtime s[56:57]
s_waitcnt lgkmcnt(0)
s_lshl_b32 s56, s56, 8
s_or_b32 s56, s56, 0x80000000
v_mov_b32 v5, s56
v_mov_b32 v6, 0
s_mov_b64 exec, 1
buffer_store_dword v5, v6, s[32:35], 0 offen sc1
s_mov_b64 exec, -1
{sk}:''')
    def alpha_consts(s, base, t=5):
        a = s.a
        a(f's_lshr_b32 s47, s41, 1\ns_lshl_b32 s47, s47, 12\nv_lshlrev_b32 v{t}, 4, v0\nv_add_u32 v{t}, s47, v{t}')
        for k in range(4): a(f'global_load_dwordx4 v[{base+4*k}:{base+4*k+3}], v{t}, s[44:45] offset:{1024*k}')
    def alpha_in1(s):
        a = s.a
        a(f'''
v_lshrrev_b32 v6, 2, v0
v_bfe_u32 v7, v6, 3, 1
s_lshl_b32 s47, s41, 1
v_add_u32 v7, s47, v7
v_lshrrev_b32 v8, 2, v7
v_and_b32 v7, 3, v7
v_lshl_add_u32 v8, v7, 4, v8
v_and_b32 v7, 7, v6
v_lshl_add_u32 v8, v7, 1, v8
v_lshlrev_b32 v8, 5, v8
v_add_u32 v8, s38, v8
v_lshlrev_b32 v8, 10, v8
v_lshl_add_u32 v8, v4, 4, v8
s_lshl_b32 s47, s39, 7''')
        for i in range(16):
            a(f'buffer_load_dwordx4 v[{16+4*i}:{19+4*i}], v8, s[4:7], s47 offen')
            if i < 15: a('s_add_u32 s47, s47, 64\ns_and_b32 s47, s47, 1023')
    def alpha_ln1(s):
        a = s.a
        a('s_mov_b32 s47, 0x3f803f80\nv_mov_b32 v9, 0\nv_mov_b32 v10, 0\nv_mov_b32 v11, 0\nv_mov_b32 v12, 0')
        for i in range(0, 64, 2):
            a(f'v_dot2_f32_bf16 v9, v{16+i}, s47, v9\nv_dot2_f32_bf16 v10, v{16+i}, v{16+i}, v10')
            a(f'v_dot2_f32_bf16 v11, v{17+i}, s47, v11\nv_dot2_f32_bf16 v12, v{17+i}, v{17+i}, v12')
        a('''v_add_f32 v9, v9, v11
v_add_f32 v10, v10, v12
v_add_f32_dpp v9, v9, v9 quad_perm:[1,0,3,2] row_mask:0xf bank_mask:0xf
v_add_f32_dpp v10, v10, v10 quad_perm:[1,0,3,2] row_mask:0xf bank_mask:0xf
v_add_f32_dpp v9, v9, v9 quad_perm:[2,3,0,1] row_mask:0xf bank_mask:0xf
v_add_f32_dpp v10, v10, v10 quad_perm:[2,3,0,1] row_mask:0xf bank_mask:0xf''')
        s.finish_stats(9, 10)
        for i in range(8):
            r = 16 + i
            a(f'''v_lshlrev_b32 v11, 16, v{r}
v_and_b32 v12, 0xffff0000, v{r}
v_fma_f32 v11, v11, v9, v10
v_fma_f32 v12, v12, v9, v10
v_cvt_pk_bf16_f32 v{r}, v11, v12''')
        a(f'''
v_lshrrev_b32 v6, 2, v0
s_mul_i32 s47, s41, 12288
s_add_u32 s47, s47, {LS}
v_bfe_u32 v11, v6, 1, 1
v_bfe_u32 v12, v6, 3, 1
v_lshl_or_b32 v11, v12, 1, v11
v_lshlrev_b32 v11, 5, v11
v_lshl_add_u32 v11, v4, 3, v11
v_lshl_add_u32 v11, v6, 7, v11
v_add_u32 v11, s47, v11
v_xor_b32 v12, 32, v11
v_xor_b32 v13, 64, v11
v_xor_b32 v14, 96, v11
ds_write_b64 v11, v[16:17]
ds_write_b64 v12, v[18:19]
ds_write_b64 v13, v[20:21]
ds_write_b64 v14, v[22:23]''')
    def finish_stats(s, vs, vq):
        s.a(f'''
v_mul_f32 v{vs}, 0x3b000000, v{vs}
v_mul_f32 v{vq}, 0x3b000000, v{vq}
v_fma_f32 v{vq}, -v{vs}, v{vs}, v{vq}
v_max_f32 v{vq}, 0, v{vq}
v_add_f32 v{vq}, 0x3727c5ac, v{vq}
v_rsq_f32 v{vq}, v{vq}
s_nop 0
v_mul_f32 v{vs}, v{vs}, v{vq}
v_sub_f32 v{vs}, 0, v{vs}
v_swap_b32 v{vs}, v{vq}''')
    def alpha_core(s, cb, adoff):
        a = s.a
        a(f'''
s_and_b32 s47, s41, 1
s_lshl_b32 s47, s47, 1
v_lshrrev_b32 v6, 1, v3
v_and_b32 v7, 1, v2
v_lshl_or_b32 v6, v7, 1, v6
v_xor_b32 v6, s47, v6
v_lshlrev_b32 v6, 5, v6
v_lshl_add_u32 v6, v4, 3, v6
v_and_b32 v7, 1, v2
v_lshl_add_u32 v7, v7, 3, v3
v_lshl_add_u32 v6, v7, 7, v6
v_lshrrev_b32 v7, 1, v2
v_mul_u32_u24 v7, 12288, v7
v_add_u32 v6, v7, v6
v_add_u32 v6, {LS}, v6
v_xor_b32 v7, 32, v6''')
        A = 96
        for dt in range(2):
            for ks in range(2):
                for h in range(2):
                    r = A + 8*dt + 4*ks + 2*h
                    a(f'ds_read_b64_tr_b16 v[{r}:{r+1}], v{6+dt} offset:{24576*ks+512*h}')
        a(f'''
s_lshr_b32 s47, s41, 1
s_lshl_b32 s47, s47, 20
s_lshl_b32 s48, s38, 10
s_add_u32 s47, s47, s48
s_lshl_b32 s48, s39, 7
s_add_u32 s47, s47, s48
s_and_b32 s48, s41, 1
s_lshl_b32 s48, s48, 6
s_add_u32 s47, s47, s48
s_add_u32 s47, s47, {adoff}
v_lshlrev_b32 v8, 15, v1
v_lshl_add_u32 v8, v2, 4, v8
s_add_u32 s48, s47, 0x80000
s_waitcnt lgkmcnt(0)''')
        C = 112
        for mt in range(2):
            for dt in range(2):
                c = C + 8*mt + 4*dt
                for ks in range(2):
                    src = '0' if ks == 0 else f'v[{c}:{c+3}]'
                    a(f'v_mfma_f32_16x16x32_bf16 v[{c}:{c+3}], v[{A+8*dt+4*ks}:{A+8*dt+4*ks+3}], v[{cb+8*mt+4*ks}:{cb+8*mt+4*ks+3}], {src}')
        for mt in range(2):
            c = C + 8*mt
            for k in range(4): a(f'v_cvt_pk_bf16_f32 v{c+k}, v{c+2*k}, v{c+2*k+1}')
            a(f'buffer_store_dwordx4 v[{c}:{c+3}], v8, s[28:31], s{47+mt} offen sc1')
    def get_nonce(s):
        a = s.a; lp = s.label('NP'); dn = s.label('ND')
        a(f'''s_mov_b32 s58, 0x40000
v_mov_b32 v5, 0
{lp}:
buffer_load_dword v6, v5, s[32:35], 0 offen sc1
s_waitcnt vmcnt(0)
v_readfirstlane_b32 s42, v6
s_cmp_lg_u32 s42, 0
s_cbranch_scc1 {dn}
s_sub_u32 s58, s58, 1
s_cmp_lg_u32 s58, 0
s_cbranch_scc1 {lp}
{dn}:''')
    def g_load(s):
        a = s.a
        a('''
s_lshr_b32 s47, s39, 2
s_and_b32 s48, s39, 3
s_lshl_b32 s48, s48, 4
s_add_u32 s47, s47, s48
s_lshl_b32 s47, s47, 5
s_add_u32 s47, s47, s38
s_lshl_b32 s47, s47, 12
v_lshrrev_b32 v5, 1, v1
v_lshlrev_b32 v5, 18, v5
v_lshl_add_u32 v5, v2, 4, v5
buffer_load_dwordx4 v[80:83], v5, s[8:11], s47 offen
buffer_load_dwordx4 v[84:87], v5, s[12:15], s47 offen''')
    def g_make(s):
        a = s.a
        a('''
s_cmp_eq_u32 s38, 0
s_cselect_b32 s50, 0, -1
s_cmp_ge_u32 s39, 4
s_cselect_b32 s51, 0x80008000, 0
s_xor_b32 s52, s51, 0x80008000
v_and_b32 v5, 1, v1
v_cmp_eq_u32 vcc, 1, v5''')
        for k in range(4):
            a(f'''v_cndmask_b32 v6, v{80+k}, v{84+k}, vcc
v_xor_b32 v7, s52, v{84+k}
v_xor_b32 v8, s51, v{80+k}
v_cndmask_b32 v7, v7, v8, vcc
v_and_b32 v7, s50, v7
v_accvgpr_write_b32 a{224+k}, v6
v_accvgpr_write_b32 a{228+k}, v7''')
    def w1_load(s):
        a = s.a
        for k in range(7):
            a(f'''v_lshlrev_b32 v5, 4, v0
v_add_u32 v5, {1024*k}, v5
v_mul_u32_u24 v6, 0x4925, v5
v_lshrrev_b32 v6, 22, v6
v_mul_u32_u24 v7, 224, v6
v_sub_u32 v5, v5, v7
v_mul_u32_u24 v6, 3584, v6
v_add_u32 v{88+k}, v5, v6''')
    def w1_issue(s):
        a = s.a
        a(f'''s_mul_i32 s54, s40, 224
s_mul_i32 s55, s41, {4*32*3584}
s_add_u32 s54, s54, s55''')
        for blk in range(4):
            for k in range(7):
                r = 112 + 28*blk + 4*k
                a(f'buffer_load_dwordx4 a[{r}:{r+3}], v{88+k}, s[16:19], s54 offen{s.nt}')
            if blk < 3: a(f's_add_u32 s54, s54, {32*3584}')
    def w1_transpose(s):
        a = s.a
        a(f'''s_mul_i32 s47, s41, {4*7168}
s_add_u32 s47, s47, {LW1}
v_lshlrev_b32 v86, 4, v0
v_add_u32 v86, s47, v86
v_lshl_add_u32 v87, v2, 2, v3
v_mul_u32_u24 v87, 224, v87
v_lshl_add_u32 v87, v4, 3, v87
v_add_u32 v87, s47, v87''')
        for blk in range(4):
            for k in range(7):
                r = 112 + 28*blk + 4*k
                a(f'ds_write_b128 v86, a[{r}:{r+3}] offset:{7168*blk + 1024*k}')
            for ft in range(7):
                for h in range(2):
                    r = 112 + 28*blk + 4*ft + 2*h
                    a(f'ds_read_b64_tr_b16 a[{r}:{r+1}], v87 offset:{7168*blk + 32*ft + 3584*h}')
        for blk in range(4):
            a(f's_waitcnt lgkmcnt({0 if blk == 3 else 0})') if blk == 0 else None
            for k in range(7):
                r = 112 + 28*blk + 4*k
                a(f'ds_write_b128 v86, a[{r}:{r+3}] offset:{7168*blk + 1024*k}')
    def touch(s, srd, vd):
        s.a(f'''s_mul_i32 s54, s37, 57344
s_lshl_b32 s55, s41, 14
s_add_u32 s54, s54, s55
v_lshlrev_b32 v{vd}, 7, v0
buffer_load_dword v{vd+1}, v{vd}, s[{srd}:{srd+3}], s54 offen''')
        sk = s.label('TCH')
        s.a(f'''s_cmp_eq_u32 s41, 3
s_cselect_b32 s55, 0, 8192
s_add_u32 s54, s54, s55
buffer_load_dword v{vd+2}, v{vd}, s[{srd}:{srd+3}], s54 offen''')
    def h_touch(s, s0, s1, v0, v1):
        s.a(f'''v_min_u32 v{v0}, 55, v0
v_lshlrev_b32 v{v0}, 7, v{v0}
s_mul_i32 s{s0}, s38, 229376
s_mul_i32 s{s1}, s41, 7168
s_add_u32 s{s0}, s{s0}, s{s1}
s_mul_i32 s{s1}, s39, 28672
s_add_u32 s{s0}, s{s0}, s{s1}
s_add_u32 s{s0}, s{s0}, {HO}
buffer_load_dword v{v1}, v{v0}, s[28:31], s{s0} offen sc1''')
    def w1_items(s):
        it = []
        for blk in range(4):
            for k in range(7):
                r = 112 + 28*blk + 4*k
                it.append(f'buffer_load_dwordx4 a[{r}:{r+3}], v{88+k}, s[16:19], s54 offen' + (f'\nv_add_u32 v{88+k}, {32*3584}, v{88+k}' if blk < 3 else ''))
        return it
    def w1_store(s):
        a = s.a
        a(f'''s_mul_i32 s47, s41, {4*7168}
s_add_u32 s47, s47, {LW1}
v_lshlrev_b32 v5, 4, v0
v_add_u32 v5, s47, v5''')
        for blk in range(4):
            for k in range(7):
                r = 112 + 28*blk + 4*k
                a(f'ds_write_b128 v5, a[{r}:{r+3}] offset:{7168*blk + 1024*k}')
    def w2_setup(s, i0, vt, st):
        s.a(f'''v_lshrrev_b32 v{vt}, 3, v0
v_lshlrev_b32 v{vt}, 10, v{vt}
v_and_b32 v{vt+1}, 7, v0
v_lshl_add_u32 v{vt}, v{vt+1}, 4, v{vt}
s_mul_i32 s{st}, s41, {448*1024}
s_lshl_b32 s49, s39, 7
s_add_u32 s{st}, s{st}, s49
s_add_u32 s{st}, s{st}, {8192*i0}''')
    def w2_issue(s, i0, i1, vt, st):
        for i in range(i0, i1):
            s.a(f'buffer_load_dwordx4 a[{4*i}:{4*i+3}], v{vt}, s[20:23], s{st} offen{s.nt}\ns_add_u32 s{st}, s{st}, 8192')
    def w2t_ops(s, ks):
        ops = [f'ds_write_b128 v230, a[{16*ks+4*k}:{16*ks+4*k+3}] offset:{1024*k}' for k in range(4)]
        for nt in range(4):
            for h in range(2):
                r = 16*ks + 4*nt + 2*h
                ops.append(f'ds_read_b64_tr_b16 a[{r}:{r+1}], v{231+nt} offset:{2048*h}')
        return ops
    def w2_transpose(s, ks0, ks1, lbase):
        a = s.a
        a(f'''
s_lshl_b32 s47, s41, 12
s_add_u32 s47, s47, {lbase}
v_bfe_u32 v230, v0, 1, 2
v_bfe_u32 v231, v0, 4, 2
v_xor_b32 v230, v230, v231
v_lshlrev_b32 v230, 5, v230
v_and_b32 v231, 1, v0
v_lshl_add_u32 v230, v231, 4, v230
v_lshrrev_b32 v231, 3, v0
v_lshl_add_u32 v230, v231, 7, v230
v_add_u32 v230, s47, v230
v_and_b32 v231, 1, v2
v_lshrrev_b32 v232, 1, v3
v_lshl_or_b32 v231, v231, 1, v232
v_lshlrev_b32 v231, 5, v231
v_lshl_add_u32 v231, v4, 3, v231
v_lshl_add_u32 v232, v2, 2, v3
v_lshl_add_u32 v231, v232, 7, v231
v_add_u32 v231, s47, v231
v_xor_b32 v232, 32, v231
v_xor_b32 v233, 64, v231
v_xor_b32 v234, 96, v231''')
        for ks in range(ks0, ks1):
            for op in s.w2t_ops(ks): a(op)
    def beta_consts(s):
        a = s.a
        a(f'v_lshlrev_b32 v5, 4, v0\nv_add_u32 v5, {TF16}, v5\nv_add_u32 v6, 4096, v5')
        for k in range(10):
            r = 8 + 4*k
            if k < 4: a(f'global_load_dwordx4 v[{r}:{r+3}], v5, s[44:45] offset:{1024*k}')
            elif k < 8: a(f'global_load_dwordx4 v[{r}:{r+3}], v6, s[44:45] offset:{1024*(k-4)}')
        a('v_add_u32 v6, 4096, v6')
        for k in (8, 9):
            r = 8 + 4*k
            a(f'global_load_dwordx4 v[{r}:{r+3}], v6, s[44:45] offset:{1024*(k-8)}')
    def beta_addr(s, layer):
        a = s.a
        a(f'''
s_lshl_b32 s47, s41, 8
v_lshlrev_b32 v48, 10, v2
v_lshl_add_u32 v48, v1, 4, v48
v_add_u32 v48, s47, v48
s_lshl_b32 s47, s41, 13
s_add_u32 s47, s47, {LS}
v_lshrrev_b32 v49, 1, v1
v_xor_b32 v49, v49, v2
v_lshlrev_b32 v49, 5, v49
v_and_b32 v50, 1, v1
v_lshl_add_u32 v49, v50, 4, v49
v_lshl_add_u32 v49, v2, 8, v49
v_add_u32 v49, s47, v49
v_xor_b32 v50, 128, v49
v_and_b32 v51, 1, v2
v_lshl_or_b32 v51, v51, 2, v3
v_lshlrev_b32 v51, 5, v51
v_lshl_add_u32 v51, v4, 3, v51
v_lshl_add_u32 v52, v2, 3, v3
v_lshl_add_u32 v51, v52, 8, v51
v_add_u32 v51, s47, v51''')
        for dt in range(1, 8): a(f'v_xor_b32 v{51+dt}, {32*dt}, v51')
        UB = LS + 32768
        a(f'''
s_lshl_b32 s47, s41, 8
s_lshr_b32 s48, s41, 1
s_lshl_b32 s48, s48, 5
s_add_u32 s47, s47, s48
v_lshlrev_b32 v59, 3, v2
v_add_u32 v59, s47, v59
v_lshlrev_b32 v60, 3, v1
v_xor_b32 v59, v59, v60
v_lshl_add_u32 v59, v1, 10, v59
v_add_u32 v59, {UB}, v59
v_xor_b32 v60, 32, v59
v_xor_b32 v61, 64, v59
v_xor_b32 v62, 96, v59''')
        a(f'''
s_lshl_b32 s47, s41, 2
v_lshrrev_b32 v63, 1, v2
v_add_u32 v63, s47, v63
v_and_b32 v64, 1, v2
v_mul_u32_u24 v64, 544, v64
v_lshl_add_u32 v64, v3, 6, v64
v_lshl_add_u32 v64, v4, 3, v64
v_lshlrev_b32 v65, 3, v63
v_xor_b32 v64, v64, v65
v_lshl_add_u32 v63, v63, 10, v64
v_add_u32 v63, {UB}, v63
v_xor_b32 v64, 32, v63
v_xor_b32 v65, 16, v63
v_add_u32 v65, 2048, v65
v_xor_b32 v66, 32, v65''')
        a(f'''
v_lshlrev_b32 v67, 5, v1
v_lshl_add_u32 v67, v2, 3, v67
s_lshl_b32 s47, s38, 16
s_lshl_b32 s48, s39, 13
s_add_u32 s47, s47, s48
s_lshl_b32 s48, s41, 11
s_add_u32 s47, s47, s48
v_add_u32 v68, s47, v67''')
        if layer == 0:
            a('''
s_lshr_b32 s47, s39, 2
s_and_b32 s48, s39, 3
s_lshl_b32 s48, s48, 4
s_add_u32 s47, s47, s48
s_lshl_b32 s48, s41, 2
s_add_u32 s47, s47, s48
s_lshl_b32 s47, s47, 5
s_add_u32 s47, s47, s38
s_lshl_b32 s47, s47, 10
v_add_u32 v69, s47, v67
v_add_u32 v70, 0x10000, v69''')
        XI = LS + 8448
        a(f'''
s_lshl_b32 s47, s41, 1
v_lshrrev_b32 v71, 1, v1
v_xor_b32 v72, s47, v71
v_lshlrev_b32 v72, 4, v72
v_lshl_add_u32 v72, v71, 9, v72
v_lshl_add_u32 v72, v2, 7, v72
v_and_b32 v71, 1, v1
v_lshl_add_u32 v71, v71, 3, v72
v_add_u32 v71, {XI}, v71
v_xor_b32 v72, 16, v71''')
        a(f'''
s_lshl_b32 s47, s41, 2
v_lshrrev_b32 v73, 5, v0
v_add_u32 v73, s47, v73
v_and_b32 v74, 7, v0
v_xor_b32 v75, v74, v73
v_and_b32 v75, 7, v75
v_lshlrev_b32 v75, 4, v75
v_lshl_add_u32 v75, v73, 9, v75
v_bfe_u32 v84, v0, 3, 2
v_lshl_add_u32 v75, v84, 7, v75
v_lshlrev_b32 v73, 10, v73
v_lshl_add_u32 v73, v84, 8, v73
v_lshl_add_u32 v73, v74, 4, v73
s_lshl_b32 s47, s38, 16
s_lshr_b32 s48, s39, 1
s_lshl_b32 s48, s48, 14
s_add_u32 s47, s47, s48
s_and_b32 s48, s39, 1
s_lshl_b32 s48, s48, 7
s_add_u32 s47, s47, s48
v_add_u32 v74, s47, v73
v_add_u32 v73, {XI}, v75
v_xor_b32 v85, 32, v73''')
    def beta_resid(s, layer):
        a = s.a
        for rr in range(2):
            for T2 in range(2):
                r = 76 + 4*rr + 2*T2
                if layer == 0: a(f'buffer_load_dwordx2 v[{r}:{r+1}], v{69+rr}, s[4:7], 0 offen offset:{512*T2}')
                else: a(f'buffer_load_dwordx2 v[{r}:{r+1}], v68, s[28:31], s49 offen offset:{1024*rr+512*T2}{s.ldf}')
    def beta_main(s, layer):
        a = s.a
        ad = AD0 if layer == 0 else AD1
        a(f'''
s_sub_u32 s47, 32, s38
s_cmp_lt_u32 s39, 4
s_cselect_b32 s47, s38, s47
s_add_u32 s48, s47, 32
s_cmp_eq_u32 s38, 0
s_cselect_b32 s48, 0, s48
s_lshl_b32 s47, s47, 15
s_lshl_b32 s48, s48, 15
s_add_u32 s47, s47, {ad}
s_add_u32 s48, s48, {ad}
s_mov_b32 s49, {X2O}''')
        D = 96
        for p in range(2):
            for i in range(8):
                r = D + 32*p + 4*i
                a(f'buffer_load_dwordx4 v[{r}:{r+3}], v48, s[28:31], s{47+p} offen{s.adf}')
                if i < 7: a(f's_add_u32 s{47+p}, s{47+p}, 4096')
        nw = 0; nr = 0; spr = []
        if layer == 0:
            s.beta_resid(layer); nr = 4
            if s.pf2 == 2: s.touch(20, 246); nw += 2
            if s.t2 == 2:
                s.h_touch(48, 49, 246, 247); nw += 1
            if s.t1:
                a(f'''s_lshr_b32 s47, s39, 1
s_lshl_b32 s47, s47, 14
s_and_b32 s48, s39, 1
s_lshl_b32 s48, s48, 7
s_add_u32 s47, s47, s48
s_lshl_b32 s48, s41, 12
s_add_u32 s47, s47, s48
s_add_u32 s47, s47, {XNO}
s_lshl_b32 s48, s39, 13
s_lshl_b32 s49, s41, 11
s_add_u32 s48, s48, s49
s_add_u32 s48, s48, {X1O}
v_lshlrev_b32 v246, 8, v1
v_add_u32 v246, s47, v246
v_lshlrev_b32 v247, 7, v1
v_add_u32 v247, s48, v247
v_and_b32 v248, 1, v2
v_cmp_eq_u32 vcc, 1, v248
v_cndmask_b32 v246, v246, v247, vcc
s_lshl_b32 s47, s38, 16
buffer_load_dword v249, v246, s[28:31], s47 offen sc1''')
                nw += 1
            a(f's_mul_i32 s54, s40, 224\ns_mul_i32 s55, s41, {4*32*3584}\ns_add_u32 s54, s54, s55')
            s.w2_setup(0, 86, 55)
            if not s.w1e: spr.extend(s.w1_items())
            for i in range(s.nw2b):
                spr.append(f'buffer_load_dwordx4 a[{4*i}:{4*i+3}], v86, s[20:23], s55 offen\nv_add_u32 v86, 8192, v86')
        T = 160
        C = 192
        for p in range(2):
            a(f's_waitcnt vmcnt({(8 if p == 0 else 0) + nr + nw + a.nspr * (p == 1 and layer == 0)})')
            if p == 0 and spr: a.sprinkle(spr, s.every)
            if p == 0: s.fstamp('beta AD0 arrived', 'beta')
            for i in range(8):
                r = D + 32*p + 4*i
                a(f'ds_write_b128 v{49 + ((i>>1)&1)}, v[{r}:{r+3}] offset:{1024*i}')
            for dt in range(8):
                for h in range(2):
                    r = T + 4*dt + 2*h
                    a(f'ds_read_b64_tr_b16 v[{r}:{r+1}], v{51+dt} offset:{1024*h}')
            for dt in range(8):
                a(f's_waitcnt lgkmcnt({14-2*dt})')
                src = '0' if p == 0 else f'v[{C+4*dt}:{C+4*dt+3}]'
                a(f'v_mfma_f32_16x16x32_bf16 v[{C+4*dt}:{C+4*dt+3}], v[{T+4*dt}:{T+4*dt+3}], a[{224+4*p}:{227+4*p}], {src}')
        for dt in range(8):
            c = C + 4*dt
            a(f'v_cvt_pk_bf16_f32 v{c}, v{c}, v{c+1}\nv_cvt_pk_bf16_f32 v{c+1}, v{c+2}, v{c+3}')
            a(f'ds_write_b64 v{59+(dt&3)}, v[{c}:{c+1}] offset:{128*(dt>>2)}')
        if layer == 0:
            a(f's_lshl_b32 s47, s41, 13\ns_add_u32 s47, s47, {LS}\ns_lshr_b32 s48, s41, 1\ns_mul_i32 s48, s48, 8188\ns_add_u32 s47, s47, s48\nv_mov_b32 v96, s47\nv_mov_b32 v97, s53\nds_write_b32 v96, v97')
        a('s_waitcnt lgkmcnt(0)\ns_barrier')
        if layer == 0:
            a(f'v_lshlrev_b32 v96, 13, v4\nv_lshrrev_b32 v97, 1, v4\nv_mul_u32_u24 v97, 8188, v97\nv_add_u32 v96, v96, v97\nv_add_u32 v96, {LS}, v96\nds_read_b32 v97, v96\ns_waitcnt lgkmcnt(0)\nv_cmp_ne_u32 vcc, 0, v97\ns_nop 4\ns_cmp_eq_u64 vcc, 0\ns_cselect_b32 s43, 1, 0')
            if s.force_slow: a('s_mov_b32 s43, 0')
        if layer == 1: s.beta_resid(layer)
        s.fstamp('beta U done', 'beta')
        for rr in range(2):
            for Tt in range(2):
                for h in range(2):
                    r = D + 8*rr + 4*Tt + 2*h
                    a(f'ds_read_b64_tr_b16 v[{r}:{r+1}], v{63+2*rr+Tt} offset:{256*h}')
        P = 112
        for rr in range(2):
            a(f's_waitcnt lgkmcnt({4 if rr == 0 else 0})')
            for Tt in range(2):
                for ci in range(2):
                    p = P + 16*rr + 8*Tt + 4*ci
                    a(f'v_mfma_f32_16x16x32_bf16 v[{p}:{p+3}], v[{D+8*rr+4*Tt}:{D+8*rr+4*Tt+3}], v[{8+4*ci}:{11+4*ci}], 0')
        Q = 144
        for rr in range(2):
            for Tt in range(2):
                pr = P + 16*rr + 8*Tt; pi = pr + 4
                for jj in range(0, 4, 2):
                    tc = 32 + 4*Tt + jj; ts = 40 + 4*Tt + jj; t0 = 160 + 8*Tt + jj; t1 = t0 + 4
                    a(f'''v_pk_mul_f32 v[{t0}:{t0+1}], v[{pr+jj}:{pr+jj+1}], v[{tc}:{tc+1}]
v_pk_mul_f32 v[{t1}:{t1+1}], v[{pi+jj}:{pi+jj+1}], v[{tc}:{tc+1}]
v_pk_fma_f32 v[{t0}:{t0+1}], v[{pi+jj}:{pi+jj+1}], v[{ts}:{ts+1}], v[{t0}:{t0+1}]
v_pk_fma_f32 v[{t1}:{t1+1}], v[{pr+jj}:{pr+jj+1}], v[{ts}:{ts+1}], v[{t1}:{t1+1}] neg_lo:[1,0,0] neg_hi:[1,0,0]''')
                t0 = 160 + 8*Tt
                a(f'''v_cvt_pk_bf16_f32 v{Q+8*rr+2*Tt}, v{t0}, v{t0+1}
v_cvt_pk_bf16_f32 v{Q+8*rr+2*Tt+1}, v{t0+2}, v{t0+3}
v_cvt_pk_bf16_f32 v{Q+8*rr+4+2*Tt}, v{t0+4}, v{t0+5}
v_cvt_pk_bf16_f32 v{Q+8*rr+4+2*Tt+1}, v{t0+6}, v{t0+7}''')
        s.fstamp('beta twiddle done', 'beta')
        Y = 176
        for rr in range(2):
            for T2 in range(2):
                y = Y + 8*rr + 4*T2
                a(f'v_mfma_f32_16x16x32_bf16 v[{y}:{y+3}], v[{Q+8*rr}:{Q+8*rr+3}], v[{16+8*T2}:{19+8*T2}], 0')
            for T2 in range(2):
                y = Y + 8*rr + 4*T2
                a(f'v_mfma_f32_16x16x32_bf16 v[{y}:{y+3}], v[{Q+8*rr+4}:{Q+8*rr+7}], v[{20+8*T2}:{23+8*T2}], v[{y}:{y+3}]')
        a(f's_waitcnt vmcnt({min(63, nw + (a.nspr if layer == 0 else 0))})')
        for rr in range(2):
            for T2 in range(2):
                y = Y + 8*rr + 4*T2; x = 76 + 4*rr + 2*T2
                for k in range(2):
                    a(f'''v_lshlrev_b32 v96, 16, v{x+k}
v_and_b32 v97, 0xffff0000, v{x+k}
v_add_f32 v{y+2*k}, v{y+2*k}, v96
v_add_f32 v{y+2*k+1}, v{y+2*k+1}, v97''')
            y = Y + 8*rr; S_, Q_ = 100 + 2*rr, 101 + 2*rr
            a(f'v_add_f32 v{S_}, v{y}, v{y+1}\nv_mul_f32 v{Q_}, v{y}, v{y}\nv_fma_f32 v{Q_}, v{y+1}, v{y+1}, v{Q_}')
            for k in range(2, 8): a(f'v_add_f32 v{S_}, v{S_}, v{y+k}\nv_fma_f32 v{Q_}, v{y+k}, v{y+k}, v{Q_}')
        s.wave_reduce([100, 101, 102, 103], 104, rows=True)
        for rr in range(2):
            s.finish_stats(100 + 2*rr, 101 + 2*rr)
        for rr in range(2):
            y = Y + 8*rr
            for k in range(4): a(f'v_cvt_pk_bf16_f32 v{208+4*rr+k}, v{y+2*k}, v{y+2*k+1}')
            for k in range(8): a(f'v_fma_f32 v{y+k}, v{y+k}, v{100+2*rr}, v{101+2*rr}')
            for k in range(4): a(f'v_cvt_pk_bf16_f32 v{216+4*rr+k}, v{y+2*k}, v{y+2*k+1}')
        a.flush()
        a(f's_mov_b32 s47, {X1O + LAYOFF*layer}\ns_mov_b32 s48, {XNO + LAYOFF*layer}')
        s.fstamp('beta epilogue done', 'beta')
        for rr in range(2):
            for T2 in range(2):
                a(f'ds_write_b64 v{71+rr}, v[{216+4*rr+2*T2}:{217+4*rr+2*T2}] offset:{4096*T2}')
        def st1(f):
            for rr in range(2):
                for T2 in range(2):
                    a(f'buffer_store_dwordx2 v[{208+4*rr+2*T2}:{209+4*rr+2*T2}], v68, s[28:31], s47 offen offset:{1024*rr+512*T2}{f}')
        s.dual(st1)
        a('s_waitcnt lgkmcnt(0)\ns_barrier')
        a('ds_read_b128 v[216:219], v73\nds_read_b128 v[220:223], v85 offset:1024')
        def st2(f):
            a(f's_waitcnt lgkmcnt(1)\nbuffer_store_dwordx4 v[216:219], v74, s[28:31], s48 offen{f}')
            a(f's_waitcnt lgkmcnt(0)\nbuffer_store_dwordx4 v[220:223], v74, s[28:31], s48 offen offset:2048{f}')
        s.dual(st2)
        s.fstamp('beta stores issued', 'beta')
    def wave_reduce(s, rs, t, rows):
        a = s.a
        if rows:
            for ctl in ('quad_perm:[1,0,3,2]', 'quad_perm:[2,3,0,1]', 'row_half_mirror', 'row_mirror'):
                for r in rs: a(f'v_add_f32_dpp v{r}, v{r}, v{r} {ctl} row_mask:0xf bank_mask:0xf')
        for sw in ('v_permlane16_swap_b32', 'v_permlane32_swap_b32'):
            for k, r in enumerate(rs): a(f'v_mov_b32 v{t+k}, v{r}')
            for k, r in enumerate(rs): a(f'{sw} v{r}, v{t+k}')
            for k, r in enumerate(rs): a(f'v_add_f32 v{r}, v{r}, v{t+k}')
    def gamma(s):
        a = s.a
        XB, A, C = 8, 136, 192
        a(f'''
v_lshlrev_b32 v5, 4, v0
s_lshl_b32 s47, s46, 16
s_and_b32 s48, s41, 1
s_lshl_b32 s48, s48, 15
s_add_u32 s47, s47, s48
s_add_u32 s47, s47, {XNO + LAYOFF*s.lay}
s_add_u32 s48, s47, 16384''')
        issued = []
        def ldx(ks):
            for rt in range(2):
                r = XB + 8*ks + 4*rt
                a(f'buffer_load_dwordx4 v[{r}:{r+3}], v5, s[28:31], s{47+rt} offen offset:{1024*(ks&3)}{s.ldf}'); issued.append(ks)
            if (ks & 3) == 3 and ks < 15: a('s_add_u32 s47, s47, 4096\ns_add_u32 s48, s48, 4096')
        nx0 = 4 if s.lay == 0 else s.gx0
        for ks in range(nx0): ldx(ks)
        nx = [nx0]; nw2 = [s.nw2b]; th = [0]
        if s.lay == 0: s.w2_setup(s.nw2b, 250, 55)
        a(f'''v_lshl_add_u32 v252, v2, 2, v3
v_mul_u32_u24 v252, 224, v252
v_lshl_add_u32 v252, v4, 3, v252
v_add_u32 v252, {LW1}, v252
v_add_u32 v253, 57344, v252''')
        def rd(n, h):
            ks = n // 7; ft = n % 7; b = 252 if ks < 8 else 253; o = 7168*(ks & 7) + 32*ft
            r = A + 4*(n % 8)
            a(f'ds_read_b64_tr_b16 v[{r+2*h}:{r+2*h+1}], v{b} offset:{o + 3584*h}')
        for n in range(7): rd(n, 0); rd(n, 1)
        for ks in range(16):
            last = max(k for k, t in enumerate(issued) if t == ks)
            a(f's_waitcnt vmcnt({len(issued) - 1 - last})')
            if ks in (0, 6): s.fstamp(f'gamma ks{ks}', 'gamma')
            for ft in range(7):
                n = 7*ks + ft
                a(f's_waitcnt lgkmcnt({2*min(6, 111-n)})')
                r = A + 4*(n % 8)
                for rt in range(2):
                    c = C + 8*ft + 4*rt
                    src = '0' if ks == 0 else f'v[{c}:{c+3}]'
                    a(f'v_mfma_f32_16x16x32_bf16 v[{c}:{c+3}], v[{r}:{r+3}], v[{XB+8*ks+4*rt}:{XB+8*ks+4*rt+3}], {src}')
                    if n + 7 < 112: rd(n + 7, rt)
                if ft in (1, 4):
                    if s.lay == 1 and ft == 4 and s.gx1: pass
                    elif nx[0] < 16: ldx(nx[0]); nx[0] += 1
                    elif s.lay == 0 and s.t2 == 1 and not th[0]:
                        th[0] = 1
                        s.h_touch(52, 53, 254, 255); issued.append('t')
                    elif s.lay == 0 and nw2[0] < 56:
                        k = min(max(1, (56 - s.nw2b + 18) // 19), 56 - nw2[0])
                        s.w2_issue(nw2[0], nw2[0] + k, 250, 55); issued.extend(['w']*k); nw2[0] += k
        if s.lay == s.finel: s.stamp('gamma mfma done')
        if s.lay == 0:
            s.w2_issue(nw2[0], 56, 250, 55)
        P = 8
        for ft in range(7):
            for rt in range(2):
                c = C + 8*ft + 4*rt; p = P + 16*rt + 2*ft
                a(f'v_cvt_pk_bf16_f32 v{p}, v{c}, v{c+1}\nv_cvt_pk_bf16_f32 v{p+1}, v{c+2}, v{c+3}')
                a(f'v_pk_max_i16 v{p}, v{p}, 0\nv_pk_max_i16 v{p+1}, v{p+1}, 0')
        a(f'''
s_mul_i32 s47, s46, 229376
s_and_b32 s48, s41, 1
s_mul_i32 s48, s48, {2*57344}
s_add_u32 s47, s47, s48
s_mul_i32 s48, s40, 7
s_lshr_b32 s48, s48, 1
s_lshl_b32 s48, s48, 10
s_add_u32 s47, s47, s48
s_add_u32 s47, s47, {HO + LAYOFF*s.lay}
s_add_u32 s48, s47, 57344''')
        a('v_lshlrev_b32 v250, 3, v0')
        od = s.label('ODD'); jn = s.label('GJ')
        a(f's_bitcmp1_b32 s40, 0\ns_cbranch_scc1 {od}')
        def st_even(f):
            for rt in range(2):
                p = P + 16*rt
                for k in range(3): a(f'buffer_store_dwordx4 v[{p+4*k}:{p+4*k+3}], v5, s[28:31], s{47+rt} offen offset:{1024*k}{f}')
                a(f'buffer_store_dwordx2 v[{p+12}:{p+13}], v250, s[28:31], s{47+rt} offen offset:3072{f}')
        s.dual(st_even)
        a(f's_branch {jn}\n{od}:')
        def st_odd(f):
            for rt in range(2):
                p = P + 16*rt
                a(f'buffer_store_dwordx2 v[{p}:{p+1}], v250, s[28:31], s{47+rt} offen offset:512{f}')
                for k in range(3): a(f'buffer_store_dwordx4 v[{p+2+4*k}:{p+5+4*k}], v5, s[28:31], s{47+rt} offen offset:{1024*(k+1)}{f}')
        s.dual(st_odd)
        a(f'{jn}:')
    def delta_addr(s):
        a = s.a
        a('''
s_lshl_b32 s47, s38, 16
s_lshl_b32 s48, s41, 14
s_add_u32 s47, s47, s48
s_lshl_b32 s48, s39, 7
s_add_u32 s47, s47, s48
v_lshlrev_b32 v6, 10, v1
v_lshl_add_u32 v6, v2, 3, v6
v_add_u32 v6, s47, v6
v_lshlrev_b32 v5, 4, v0''')
    def delta(s, layer):
        a = s.a
        C, R, X = 8, 72, 200
        a(f's_mov_b32 s49, {X1O + LAYOFF*layer}\nv_lshlrev_b32 v7, 3, v0')
        a(f's_mul_i32 s47, s38, 229376\ns_mul_i32 s48, s41, 14336\ns_add_u32 s47, s47, s48\ns_add_u32 s47, s47, {HO + LAYOFF*layer}')
        for sl in range(4):
            a(f's_add_u32 s48, s41, {sl}\ns_and_b32 s48, s48, 3\ns_mul_i32 s48, s48, 57344\ns_add_u32 s{50+sl}, s47, s48')
        issued = []
        def ld(st):
            for sl in range(4):
                r = R + 16*(st & 7) + 4*sl
                if st in (3, 10):
                    a(f'buffer_load_dwordx2 v[{r}:{r+1}], v7, s[28:31], s{50+sl} offen offset:{1024*(st&3)}{s.ldf}')
                    a(f'buffer_load_dwordx2 v[{r+2}:{r+3}], v7, s[28:31], s{50+sl} offen offset:{1024*(st&3)+512}{s.ldf}')
                    issued.extend([st, st])
                else:
                    a(f'buffer_load_dwordx4 v[{r}:{r+3}], v5, s[28:31], s{50+sl} offen offset:{1024*(st&3)}{s.ldf}')
                    issued.append(st)
            if (st & 3) == 3:
                for sl in range(4): a(f's_add_u32 s{50+sl}, s{50+sl}, 4096')
        for st in range(3): ld(st)
        nl = [3]
        for st in range(14):
            last = max(k for k, t in enumerate(issued) if t == st)
            ops = []
            if layer == 0:
                a(f's_waitcnt vmcnt({len(issued) - 1 - last}) lgkmcnt({12 if st < 13 else 0})')
                if st + 2 < 14: ops = s.w2t_ops(st + 2)
            else:
                a(f's_waitcnt vmcnt({len(issued) - 1 - last})')
            if st in (0, 4, 8): s.fstamp(f'delta st{st}', 'delta')
            for sl in range(4):
                for nt in range(4):
                    c = C + 16*sl + 4*nt; r = R + 16*(st & 7) + 4*sl
                    src = '0' if st == 0 else f'v[{c}:{c+3}]'
                    a(f'v_mfma_f32_16x16x32_bf16 v[{c}:{c+3}], a[{16*st+4*nt}:{16*st+4*nt+3}], v[{r}:{r+3}], {src}')
                    if ops: a(ops.pop(0))
            for _ in range(2):
                if nl[0] < 14 and nl[0] <= st + 8: ld(nl[0]); nl[0] += 1
            if st == 6:
                for nt in range(4):
                    a(f'buffer_load_dwordx2 v[{X+2*nt}:{X+2*nt+1}], v6, s[28:31], s49 offen offset:{32*nt}{s.ldf}'); issued.append('x')
                if layer == 0: s.alpha_consts(208, 228); issued.extend(['c']*4)
        if layer == s.finel: s.stamp('delta mfma done')
        if layer == 0: a('s_barrier')
        a(f'v_add_u32 v72, {LS}, v5')
        for sl in range(1, 4):
            a(f's_add_u32 s47, s41, {sl}\ns_and_b32 s47, s47, 3\ns_mul_i32 s47, s47, 12288\nv_add_u32 v{72+sl}, s47, v72')
        a('s_mul_i32 s47, s41, 12288\nv_add_u32 v72, s47, v72')
        for sl in range(1, 4):
            for nt in range(4):
                c = C + 16*sl + 4*nt
                a(f'ds_write_b128 v{72+sl}, v[{c}:{c+3}] offset:{4096*(sl-1)+1024*nt}')
        a('s_waitcnt lgkmcnt(0)\ns_barrier')
        for sl in range(1, 4):
            for nt in range(4):
                c = C + 16*sl + 4*nt
                a(f'ds_read_b128 v[{c}:{c+3}], v72 offset:{4096*(sl-1)+1024*nt}')
        a('s_waitcnt vmcnt(0)')
        for nt in range(4):
            for k in range(2):
                a(f'''v_lshlrev_b32 v76, 16, v{X+2*nt+k}
v_and_b32 v77, 0xffff0000, v{X+2*nt+k}
v_add_f32 v{C+4*nt+2*k}, v{C+4*nt+2*k}, v76
v_add_f32 v{C+4*nt+2*k+1}, v{C+4*nt+2*k+1}, v77''')
        for sl in range(1, 4):
            a(f's_waitcnt lgkmcnt({4*(3-sl)})')
            for k in range(16): a(f'v_add_f32 v{C+k}, v{C+k}, v{C+16*sl+k}')
        for k in range(8): a(f'v_cvt_pk_bf16_f32 v{X+k}, v{C+2*k}, v{C+2*k+1}')
        if layer == 1:
            a('''
s_lshl_b32 s47, s41, 1
v_lshrrev_b32 v7, 3, v1
v_add_u32 v7, s47, v7
v_lshrrev_b32 v76, 2, v7
v_and_b32 v7, 3, v7
v_lshl_add_u32 v76, v7, 4, v76
v_and_b32 v7, 7, v1
v_lshl_add_u32 v76, v7, 1, v76
v_lshlrev_b32 v76, 5, v76
v_add_u32 v76, s38, v76
v_lshlrev_b32 v76, 10, v76
v_lshl_add_u32 v76, v2, 3, v76
s_lshl_b32 s47, s39, 7''')
            for nt in range(4): a(f'buffer_store_dwordx2 v[{X+2*nt}:{X+2*nt+1}], v76, s[24:27], s47 offen offset:{32*nt}')
            return
        a(f'v_add_f32 v76, v{C}, v{C+1}\nv_mul_f32 v77, v{C}, v{C}\nv_fma_f32 v77, v{C+1}, v{C+1}, v77')
        for k in range(2, 16): a(f'v_add_f32 v76, v76, v{C+k}\nv_fma_f32 v77, v{C+k}, v{C+k}, v77')
        s.wave_reduce([76, 77], 78, rows=False)
        a(f'''
s_lshl_b32 s47, s38, 13
s_lshl_b32 s48, s41, 11
s_add_u32 s47, s47, s48
s_add_u32 s47, s47, {STO}
s_lshl_b32 s48, s39, 4
s_add_u32 s48, s48, s47
v_lshlrev_b32 v80, 7, v1
s_mov_b32 s49, {X2O}
s_add_u32 s56, s42, 48
v_mov_b32 v78, v77
v_mov_b32 v77, s56
v_mov_b32 v79, s56''')
        def st(f):
            a('s_mov_b64 exec, 0xffff')
            a(f'buffer_store_dwordx4 v[76:79], v80, s[28:31], s48 offen{f}')
            a('s_mov_b64 exec, -1')
        s.dual(st)
    def delta_norm(s):
        a = s.a
        C = 8
        lp = s.label('SP'); dn = s.label('SD')
        a(f'''v_lshl_add_u32 v80, v2, 5, v80
s_mov_b32 s58, 0x40000
{lp}:
buffer_load_dwordx4 v[72:75], v80, s[28:31], s47 offen sc1
buffer_load_dwordx4 v[76:79], v80, s[28:31], s47 offen offset:16 sc1
s_waitcnt vmcnt(0)
v_cmp_ne_u32 vcc, s56, v73
v_cmp_ne_u32 s[48:49], s56, v75
s_nop 1
s_or_b64 vcc, vcc, s[48:49]
v_cmp_ne_u32 s[48:49], s56, v77
s_nop 1
s_or_b64 vcc, vcc, s[48:49]
v_cmp_ne_u32 s[48:49], s56, v79
s_nop 1
s_or_b64 vcc, vcc, s[48:49]
s_cbranch_vccz {dn}
s_sub_u32 s58, s58, 1
s_cmp_lg_u32 s58, 0
s_cbranch_scc1 {lp}
{dn}:
v_add_f32 v76, v72, v76
v_add_f32 v77, v74, v78''')
        s.stamp('stats poll')
        def stx(f):
            for nt in range(4): a(f'buffer_store_dwordx2 v[{200+2*nt}:{201+2*nt}], v6, s[28:31], s57 offen offset:{32*nt}{f}')
        a(f's_mov_b32 s57, {X2O}')
        s.dual(stx)
        s.wave_reduce([76, 77], 78, rows=False)
        s.finish_stats(76, 77)
        for k in range(0, 16, 2): a(f'v_fma_f32 v{C+k}, v{C+k}, v76, v77\nv_fma_f32 v{C+k+1}, v{C+k+1}, v76, v77\nv_cvt_pk_bf16_f32 v{C+k//2}, v{C+k}, v{C+k+1}')
        for nt in range(4):
            a(f'ds_write_b64 v{226 if nt < 2 else 227}, v[{C+2*nt}:{C+2*nt+1}] offset:{16*(nt&1)}')
    def xtile_addr(s):
        s.a(f'''
s_mul_i32 s48, s41, 12288
s_add_u32 s48, s48, {LS}
v_bfe_u32 v226, v1, 1, 1
v_bfe_u32 v227, v1, 3, 1
v_lshl_or_b32 v226, v227, 1, v226
v_and_b32 v227, 1, v2
v_xor_b32 v226, v226, v227
v_lshlrev_b32 v226, 5, v226
v_lshrrev_b32 v227, 1, v2
v_lshl_add_u32 v226, v227, 3, v226
v_lshl_add_u32 v226, v1, 7, v226
v_add_u32 v226, s48, v226
v_xor_b32 v227, 64, v226''')
    def bar_addr(s, arr, v):
        s.a(f'''
v_lshrrev_b32 v{v}, 1, v0
v_and_b32 v{v+1}, 3, v{v}
v_lshrrev_b32 v{v}, 2, v{v}
v_lshl_add_u32 v{v}, v{v+1}, 6, v{v}
v_and_b32 v{v+1}, 1, v0
v_lshl_add_u32 v{v}, v{v+1}, 3, v{v}
s_lshl_b32 s47, s41, 4
v_add_u32 v{v}, s47, v{v}
v_lshlrev_b32 v{v}, 6, v{v}
v_add_u32 v{v}, {FLO + arr*0x8000}, v{v}''')
    def barrier0(s):
        a = s.a; pf = s.label('PF'); jn = s.label('PJ'); lp = s.label('BP'); dn = s.label('BD')
        a(f's_mov_b32 s53, 0\ns_cmp_ge_u32 s41, 2\ns_cbranch_scc1 {pf}')
        s.bar_addr(0, 222)
        a(f'''s_mov_b32 s56, s42
s_mov_b32 s58, 0x40000
{lp}:
buffer_load_dword v223, v222, s[28:31], 0 offen sc1
buffer_load_dword v224, v222, s[28:31], 0 offen offset:2048 sc1
s_waitcnt vmcnt(0)
v_and_b32 v225, 0xfffffff0, v223
v_and_b32 v226, 0xfffffff0, v224
v_cmp_ne_u32 vcc, s56, v225
v_cmp_ne_u32 s[48:49], s56, v226
s_nop 4
s_or_b64 vcc, vcc, s[48:49]
s_cbranch_vccz {dn}
s_sub_u32 s58, s58, 1
s_cmp_lg_u32 s58, 0
s_cbranch_scc1 {lp}
{dn}:
v_and_b32 v223, 15, v223
v_and_b32 v224, 15, v224
v_cmp_ne_u32 vcc, s59, v223
v_cmp_ne_u32 s[48:49], s59, v224
s_nop 4
s_or_b64 vcc, vcc, s[48:49]
s_lshl_b32 s47, s36, 3
s_lshl_b64 s[48:49], 0xff, s47
s_and_b64 s[48:49], s[48:49], vcc
s_cmp_lg_u64 s[48:49], 0
s_cselect_b32 s53, 1, 0
s_branch {jn}
{pf}:''')
        if s.pf1 == 2:
            a('''s_mul_i32 s54, s37, 57344
s_sub_u32 s55, s41, 2
s_lshl_b32 s55, s55, 15
s_add_u32 s54, s54, s55
s_cmp_eq_u32 s41, 3
s_cselect_b32 s55, 0, 8192
v_lshlrev_b32 v240, 7, v0
buffer_load_dword v241, v240, s[16:19], s54 offen
s_add_u32 s54, s54, 8192
buffer_load_dword v242, v240, s[16:19], s54 offen
s_add_u32 s54, s54, 8192
buffer_load_dword v243, v240, s[16:19], s54 offen
s_add_u32 s54, s54, s55
buffer_load_dword v244, v240, s[16:19], s54 offen''')
        a(f'{jn}:\ns_barrier')
    def grp16_base(s, arr, dst):
        s.a(f'''s_lshr_b32 s{dst}, s37, 4
s_lshl_b32 s48, s36, 1
s_add_u32 s{dst}, s{dst}, s48
s_lshl_b32 s{dst}, s{dst}, 8
s_add_u32 s{dst}, s{dst}, {FLO + arr*0x8000}''')
    def grp16_poll(s, arr):
        s.grp16_base(arr, 47)
        s.a(f'''s_lshl_b32 s48, s41, 6
s_add_u32 s47, s47, s48
v_lshlrev_b32 v222, 2, v1
v_add_u32 v222, s47, v222
s_add_u32 s56, s42, {16*arr}''')
        s.poll(222, 223, 56)
    def grp16_signal(s, arr):
        s.grp16_base(arr, 54)
        s.a('s_lshl_b32 s48, s40, 4\ns_add_u32 s54, s54, s48\ns_lshl_b32 s48, s41, 2\ns_add_u32 s54, s54, s48')
        s.wave_signal(arr, 54)
    def dump_stamps(s):
        if not s.stamps: return
        a = s.a
        a(f's_lshl_b32 s47, s2, 2\ns_add_u32 s47, s47, s41\ns_lshl_b32 s47, s47, 7\ns_add_u32 s47, s47, {DBO}\nv_mov_b32 v5, s47\ns_mov_b64 exec, 1')
        for k in range(s.nst):
            a(f'v_mov_b32 v6, s{60+2*k}\nbuffer_store_dword v6, v5, s[28:31], 0 offen offset:{4*k}')
        for k, r in enumerate((43, 59, 53, 98, 100)):
            a(f'v_mov_b32 v6, s{r}\nbuffer_store_dword v6, v5, s[28:31], 0 offen offset:{4*(24+k)}')
        a('s_mov_b64 exec, -1')
    def build(s):
        a = s.a
        s.prologue()
        s.alpha_in1(); s.alpha_consts(128); s.g_load()
        npre = 0
        if s.pretouch:
            a(f'v_lshlrev_b32 v95, 20, v0\nv_min_u32 v95, {WSZ - 4}, v95\nbuffer_load_dword v96, v95, s[28:31], 0 offen\nv_and_b32 v95, 1, v0\nv_lshlrev_b32 v95, 20, v95\nbuffer_load_dword v96, v95, s[24:27], 0 offen')
            npre = 2
        if s.cpf:
            a(f'''s_lshl_b32 s47, s37, 12
s_lshl_b32 s48, s41, 10
s_add_u32 s47, s47, s48
v_lshlrev_b32 v95, 4, v0
v_add_u32 v95, s47, v95
v_min_u32 v95, TABLE-{KN}_kernel+{len(tables())*4 - 16}, v95
s_sub_u32 s48, s44, TABLE-{KN}_kernel
s_subb_u32 s49, s45, 0
global_load_dwordx4 v[248:251], v95, s[48:49]''')
            npre += 1
        if s.htouch:
            if s.htouch == 1:
                a(f'v_min_u32 v238, 6, v0\nv_lshlrev_b32 v238, 12, v238\ns_mov_b32 s55, 0')
            else:
                a(f'v_min_u32 v238, 55, v0\nv_lshlrev_b32 v238, 7, v238\ns_mul_i32 s55, s41, 7168')
            a(f's_mul_i32 s54, s38, 229376\ns_add_u32 s54, s54, s55\ns_mul_i32 s55, s39, 28672\ns_add_u32 s54, s54, s55\ns_add_u32 s54, s54, {HO}\nbuffer_load_dword v239, v238, s[28:31], s54 offen sc1')
            npre += 1
        if s.pf1 == 1: s.touch(16, 240); npre += 2
        if s.pf2 == 1: s.touch(20, 244); npre += 2
        s.w1_load()
        if s.w1e:
            a(f's_mul_i32 s54, s40, 224\ns_mul_i32 s55, s41, {4*32*3584}\ns_add_u32 s54, s54, s55')
            it = s.w1_items()
            for x in it[:s.w1e]: a(x)
            npre += s.w1e
        a(f's_waitcnt vmcnt({6 + npre})')
        s.stamp('x arrived')
        if s.w1e:
            for x in it[s.w1e:]: a(x)
            npre += 28 - s.w1e
        a('v_mov_b32 v95, 0\nbuffer_load_dword v95, v95, s[32:35], 0 offen sc1')
        s.alpha_ln1()
        a(f's_waitcnt vmcnt({3 + npre}) lgkmcnt(0)\ns_barrier')
        s.alpha_core(128, AD0)
        s.fstamp('alpha stores issued', 'alpha')
        a('s_waitcnt vmcnt(0)')
        dn = s.label('ND')
        a(f'''v_readfirstlane_b32 s42, v95
s_cmp_lg_u32 s42, 0
s_cbranch_scc1 {dn}''')
        s.get_nonce()
        a(f'{dn}:')
        a('s_lshl_b32 s54, s2, 6')
        s.signal(0, 54, 0, dual=False, xcc=True, vm=0)
        s.stamp('sig0')
        s.g_make()
        if s.w1e: s.w1_store()
        s.beta_consts(); s.beta_addr(0)
        for layer in range(2):
            arr = 4*layer; s.lay = layer
            if layer == 1:
                a('s_waitcnt lgkmcnt(0)\ns_barrier')
                s.alpha_core(208, AD1)
                a('s_lshl_b32 s54, s2, 6')
                s.signal(4, 54, 4, dual=False)
                s.stamp('sig4')
                s.beta_consts(); s.beta_addr(1)
            if layer == 0: s.barrier0()
            else:
                s.bar_addr(arr, 222)
                a(f's_add_u32 s56, s42, {16*arr}')
                s.poll(222, 223, 56)
            s.stamp('bar done')
            s.beta_main(layer)
            s.grp16_signal(arr + 1)
            if layer == s.finel: s.stamp('beta sig')
            if s.stop == f'beta{layer}': return s.end()
            if layer == 0 and not s.w1e: s.w1_store()
            s.grp16_poll(arr + 1)
            if layer == 0 and not s.w1e: a('s_waitcnt lgkmcnt(0)\ns_barrier')
            s.stamp('beta poll')
            s.gamma()
            s.grp16_signal(arr + 2)
            if layer == s.finel: s.stamp('gamma sig')
            if s.stop == f'gamma{layer}': return s.end()
            if layer == 0: s.w2_transpose(0, 2, LS + 32768)
            s.delta_addr()
            if layer == 0: s.xtile_addr()
            s.grp16_poll(arr + 2)
            s.stamp('gamma poll')
            s.delta(layer)
            if layer == 0:
                s.delta_norm()
                if s.stop == 'delta0': return s.end()
        return s.end()
    def end(s):
        a = s.a
        s.stamp('end')
        if s.stamps: a('s_memtime s[100:101]\ns_waitcnt lgkmcnt(0)')
        s.dump_stamps()
        a('END:\ns_endpgm')
        body, nn = a.finish()
        tab = tables()
        t = '\n'.join('.long ' + ','.join('0x%08x' % x for x in tab[i:i+8]) for i in range(0, len(tab), 8))
        hdr = open('cdna_kernels/' + KN + '.s.ref').read().split('; Override')[0]
        txt = hdr + f'''; Single persistent kernel: LN + FFT-factorised FNet mixing + FFN GEMMs, 256 workgroups (one per CU).
; @launch grid=(256,1,1) block=(256,1,1) lds=163840
.amdgcn_target "amdgcn-amd-amdhsa--gfx950"
.text
.globl {KN}_kernel
.p2align 8
.type {KN}_kernel,@function
{KN}_kernel:
{body}
.p2align 8
.type TABLE,@object
TABLE:
{t}
.size TABLE, {len(tab)*4}
.section .rodata,"a"
.p2align 6
.amdhsa_kernel {KN}_kernel
  .amdhsa_next_free_vgpr 512
  .amdhsa_next_free_sgpr 102
  .amdhsa_accum_offset 256
  .amdhsa_group_segment_fixed_size 0
  .amdhsa_kernarg_size 88
  .amdhsa_user_sgpr_count 2
  .amdhsa_user_sgpr_kernarg_segment_ptr 1
  .amdhsa_system_sgpr_workgroup_id_x 1
  .amdhsa_float_denorm_mode_32 3
.end_amdhsa_kernel
'''
        return txt
if __name__ == '__main__':
    import argparse
    ap = argparse.ArgumentParser(); ap.add_argument('out'); ap.add_argument('--stop'); ap.add_argument('--stamps', action='store_true'); ap.add_argument('--slow', action='store_true'); ap.add_argument('--fine'); ap.add_argument('--pre', action='store_true'); ap.add_argument('--cpf', action='store_true'); ap.add_argument('--nt', action='store_true'); ap.add_argument('--adsc1', action='store_true'); ap.add_argument('--wsoff', type=lambda x: int(x, 0), default=0); ap.add_argument('--gx0', type=int, default=4); ap.add_argument('--gx1', type=int, default=0); ap.add_argument('--w1e', type=int, default=1); ap.add_argument('--t1', type=int, default=0); ap.add_argument('--t2', type=int, default=1); ap.add_argument('--stf', default=''); ap.add_argument('--htouch', type=int, default=0); ap.add_argument('--pf1', type=int, default=0); ap.add_argument('--pf2', type=int, default=0); ap.add_argument('--nw2b', type=int, default=28); ap.add_argument('--every', type=int, default=12)
    o = ap.parse_args()
    g = Gen(o.stop, o.stamps, o.slow, o.fine); g.pretouch = o.pre; g.cpf = o.cpf; g.nt = ' nt' if o.nt else ''; g.adf = ' sc1'; g.t1 = o.t1; g.t2 = o.t2; g.pf1 = o.pf1; g.w1e = o.w1e; g.gx0 = o.gx0; g.gx1 = o.gx1; g.wsoff = o.wsoff; g.stf = (' ' + o.stf.replace('+', ' ')) if o.stf else ''; g.htouch = o.htouch; g.pf2 = o.pf2; g.nw2b = o.nw2b; g.every = o.every
    open(o.out, 'w').write(g.build())
```

```python
import sys, numpy as np
sys.path.insert(0, 'work')
from asmlib import Asm
KN = "interleave_layers__spectral_fnet__dense_activation_relu__prompt"
AD0, AD1, X1O, X2O, XNO, HO, STO, FLO, DBO = 0x0, 0x200000, 0x400000, 0x400000, 0x800000, 0xA00000, 0x1200000, 0x1300000, 0x1380000
WSZ = 0x1400000
LAYOFF = 0
LW1 = 0; LS = 114688
def bf16(x):
    u = np.ascontiguousarray(x, dtype=np.float32).view(np.uint32)
    return ((u + 0x7FFF + ((u >> 16) & 1)) >> 16).astype(np.uint16)
def s1_of_rho(r): return ((r >> 3) >> 2) + 16 * ((r >> 3) & 3) + 2 * (r & 7)
def tables():
    l = np.arange(64); n = l & 15; q = l >> 4; kk = np.arange(8)
    T = []
    for mt in range(4):
        for ks in range(2):
            m = (16 * mt + n)[:, None]; rho = 32 * ks + 8 * q[:, None] + kk[None, :]; s1 = s1_of_rho(rho)
            v = np.where(m <= 32, np.cos(2*np.pi*((m*s1) % 64)/64), -np.sin(2*np.pi*(((m-32)*s1) % 64)/64))
            T.append(bf16(v).reshape(-1).view(np.uint32))
    ri = (q >> 1)[:, None]; d1 = 8 * (q & 1)[:, None] + kk[None, :]; th = 2*np.pi*((d1 * n[:, None]) % 16)/16
    T.append(bf16(np.where(ri == 0, np.cos(th), np.sin(th))).reshape(-1).view(np.uint32))
    T.append(bf16(np.where(ri == 0, -np.sin(th), np.cos(th))).reshape(-1).view(np.uint32))
    d2 = 16 * (kk >> 2)[None, :] + 4 * q[:, None] + (kk & 3)[None, :]
    for T2 in range(2):
        e2 = (16 * T2 + n)[:, None]; ph = 2*np.pi*((d2 * e2) % 32)/32
        T.append(bf16(np.cos(ph)).reshape(-1).view(np.uint32)); T.append(bf16(np.sin(ph)).reshape(-1).view(np.uint32))
    for fn in (np.cos, np.sin):
        for Tt in range(2):
            dd = 16 * Tt + 4 * q[:, None] + np.arange(4)[None, :]
            T.append(fn(2*np.pi*(dd * n[:, None])/512).astype(np.float32).reshape(-1).view(np.uint32))
    return np.concatenate(T)
TF64, TF16, TH32, TTW = 0, 8192, 10240, 14336

class Gen:
    def __init__(s, stop=None, stamps=False, force_slow=False, fine=None):
        s.finel = 0
        if fine and fine[-1] == '1': fine = fine[:-1]; s.finel = 1
        s.fine = fine; s.lay = 0; s.pretouch = False; s.cpf = False; s.nt = ''; s.adf = ' sc1'; s.t1 = 1; s.t2 = 1; s.w1e = 0; s.gx0 = 5; s.gx1 = 1; s.wsoff = 0; s.stf = ''; s.ldf = ' sc1'; s.htouch = 0; s.pf1 = 1; s.pf2 = 1; s.nw2b = 28; s.every = 7
        s.a = Asm(); s.stop = stop; s.stamps = stamps; s.nst = 0; s.lab = 0; s.force_slow = force_slow
    def label(s, p='L'):
        s.lab += 1; return f'{p}_{s.lab}'
    def fstamp(s, name, grp):
        if s.fine == grp and s.lay == s.finel: s.stamp(name)
    def stamp(s, name=''):
        if not s.stamps: return
        if s.fine and name not in ('start', 'end') and not name.startswith(s.fine) and name not in ('beta poll', 'gamma poll', 'bar done'): return
        k = 60 + 2 * s.nst; s.nst += 1
        assert k + 1 <= 97
        s.a(f's_memrealtime s[{k}:{k+1}]\ns_waitcnt lgkmcnt(0)')
    def dual(s, fn):
        a = s.a; l1 = s.label('SLOW'); l2 = s.label('JOIN')
        a(f's_cmp_eq_u32 s43, 0\ns_cbranch_scc1 {l1}')
        fn(s.stf); a(f's_branch {l2}\n{l1}:'); fn(' sc1'); a(f'{l2}:')
    def poll(s, vaddr, vtmp, sexp, maskxcc=False):
        a = s.a; lp = s.label('POLL'); dn = s.label('PD')
        a(f's_mov_b32 s58, 0x40000\n{lp}:')
        a(f'buffer_load_dword v{vtmp}, v{vaddr}, s[28:31], 0 offen sc1\ns_waitcnt vmcnt(0)')
        if maskxcc:
            a(f'v_and_b32 v{vtmp+1}, 0xfffffff0, v{vtmp}\nv_cmp_ne_u32 vcc, s{sexp}, v{vtmp+1}')
        else:
            a(f'v_cmp_ne_u32 vcc, s{sexp}, v{vtmp}')
        a(f's_nop 4\ns_cbranch_vccz {dn}\ns_sub_u32 s58, s58, 1\ns_cmp_lg_u32 s58, 0\ns_cbranch_scc1 {lp}\n{dn}:')
    def wave_signal(s, arr, soff):
        a = s.a
        a(f's_add_u32 s57, s42, {16*arr}\nv_mov_b32 v222, s57\nv_mov_b32 v223, s{soff}\ns_waitcnt vmcnt(0)\ns_mov_b64 exec, 1')
        s.dual(lambda f: a(f'buffer_store_dword v222, v223, s[28:31], 0 offen{f}'))
        a('s_mov_b64 exec, -1')
    def signal(s, arr, soff_expr_sgpr, phase, dual=True, xcc=False, vm=0):
        a = s.a; sk = s.label('SIG')
        a(f's_waitcnt vmcnt({vm})\ns_barrier')
        a(f's_cmp_lg_u32 s41, 0\ns_cbranch_scc1 {sk}')
        a(f's_add_u32 s57, s42, {16*phase}')
        if xcc: a('s_add_u32 s57, s57, s59')
        a(f'v_mov_b32 v5, s57\nv_mov_b32 v6, {FLO + arr*0x8000}\nv_add_u32 v6, s{soff_expr_sgpr}, v6')
        a('s_mov_b64 exec, 1')
        if dual: s.dual(lambda f: a(f'buffer_store_dword v5, v6, s[28:31], 0 offen{f}'))
        else: a('buffer_store_dword v5, v6, s[28:31], 0 offen sc1')
        a(f's_mov_b64 exec, -1\n{sk}:')

    def prologue(s):
        a = s.a
        a(f'''
s_cmp_ge_u32 s2, 256
s_cbranch_scc1 END
s_load_dwordx4 s[4:7], s[0:1], 0
s_load_dwordx2 s[12:13], s[0:1], 16
s_load_dwordx4 s[16:19], s[0:1], 48
s_load_dwordx4 s[24:27], s[0:1], 64
s_load_dwordx2 s[28:29], s[0:1], 80
s_getreg_b32 s59, hwreg(HW_REG_XCC_ID, 0, 4)
s_getpc_b64 s[44:45]
PCL:
s_add_u32 s44, s44, TABLE-PCL
s_addc_u32 s45, s45, 0
v_lshrrev_b32 v5, 6, v0
v_and_b32 v0, 63, v0
s_and_b32 s36, s2, 7
s_lshr_b32 s37, s2, 3
v_readfirstlane_b32 s41, v5
s_lshr_b32 s47, s37, 3
s_lshl_b32 s38, s36, 2
s_add_u32 s38, s38, s47
s_and_b32 s39, s37, 7
s_and_b32 s40, s37, 15
s_lshr_b32 s47, s37, 4
s_lshl_b32 s47, s47, 1
s_lshl_b32 s46, s36, 2
s_add_u32 s46, s46, s47
s_lshr_b32 s47, s41, 1
s_add_u32 s46, s46, s47
v_and_b32 v1, 15, v0
v_lshrrev_b32 v2, 4, v0
v_bfe_u32 v3, v0, 2, 2
v_and_b32 v4, 3, v0
s_waitcnt lgkmcnt(0)
s_mov_b32 s8, s6
s_mov_b32 s9, s7
s_mov_b32 s32, s26
s_mov_b32 s33, s27
s_mov_b32 s20, s18
s_mov_b32 s21, s19
s_mov_b32 s6, 0x200000
s_mov_b32 s7, 0x20000
s_mov_b32 s10, 0x800000
s_mov_b32 s11, 0x20000
s_mov_b32 s14, 0x800000
s_mov_b32 s15, 0x20000
s_mov_b32 s18, 1835008
s_mov_b32 s19, 0x20000
s_mov_b32 s22, 1835008
s_mov_b32 s23, 0x20000
s_mov_b32 s26, 0x200000
s_mov_b32 s27, 0x20000
s_mov_b32 s30, {WSZ}
s_mov_b32 s31, 0x20000
s_mov_b32 s34, 256
s_mov_b32 s35, 0x20000
s_mov_b32 s43, 0
s_add_u32 s28, s28, {s.wsoff}
s_addc_u32 s29, s29, 0
''')
        s.stamp('start')
        if s.stamps: a('s_memtime s[98:99]\ns_waitcnt lgkmcnt(0)')
        sk = s.label('NON')
        a(f'''
s_cmp_lg_u32 s2, 0
s_cbranch_scc1 {sk}
s_cmp_lg_u32 s41, 0
s_cbranch_scc1 {sk}
s_memrealtime s[56:57]
s_waitcnt lgkmcnt(0)
s_lshl_b32 s56, s56, 8
s_or_b32 s56, s56, 0x80000000
v_mov_b32 v5, s56
v_mov_b32 v6, 0
s_mov_b64 exec, 1
buffer_store_dword v5, v6, s[32:35], 0 offen sc1
s_mov_b64 exec, -1
{sk}:''')
    def alpha_consts(s, base, t=5):
        a = s.a
        a(f's_lshr_b32 s47, s41, 1\ns_lshl_b32 s47, s47, 12\nv_lshlrev_b32 v{t}, 4, v0\nv_add_u32 v{t}, s47, v{t}')
        for k in range(4): a(f'global_load_dwordx4 v[{base+4*k}:{base+4*k+3}], v{t}, s[44:45] offset:{1024*k}')
    def alpha_in1(s):
        a = s.a
        a(f'''
v_lshrrev_b32 v6, 2, v0
v_bfe_u32 v7, v6, 3, 1
s_lshl_b32 s47, s41, 1
v_add_u32 v7, s47, v7
v_lshrrev_b32 v8, 2, v7
v_and_b32 v7, 3, v7
v_lshl_add_u32 v8, v7, 4, v8
v_and_b32 v7, 7, v6
v_lshl_add_u32 v8, v7, 1, v8
v_lshlrev_b32 v8, 5, v8
v_add_u32 v8, s38, v8
v_lshlrev_b32 v8, 10, v8
v_lshl_add_u32 v8, v4, 4, v8
s_lshl_b32 s47, s39, 7''')
        for i in range(16):
            a(f'buffer_load_dwordx4 v[{16+4*i}:{19+4*i}], v8, s[4:7], s47 offen')
            if i < 15: a('s_add_u32 s47, s47, 64\ns_and_b32 s47, s47, 1023')
    def alpha_ln1(s):
        a = s.a
        a('s_mov_b32 s47, 0x3f803f80\nv_mov_b32 v9, 0\nv_mov_b32 v10, 0\nv_mov_b32 v11, 0\nv_mov_b32 v12, 0')
        for i in range(0, 64, 2):
            a(f'v_dot2_f32_bf16 v9, v{16+i}, s47, v9\nv_dot2_f32_bf16 v10, v{16+i}, v{16+i}, v10')
            a(f'v_dot2_f32_bf16 v11, v{17+i}, s47, v11\nv_dot2_f32_bf16 v12, v{17+i}, v{17+i}, v12')
        a('''v_add_f32 v9, v9, v11
v_add_f32 v10, v10, v12
v_add_f32_dpp v9, v9, v9 quad_perm:[1,0,3,2] row_mask:0xf bank_mask:0xf
v_add_f32_dpp v10, v10, v10 quad_perm:[1,0,3,2] row_mask:0xf bank_mask:0xf
v_add_f32_dpp v9, v9, v9 quad_perm:[2,3,0,1] row_mask:0xf bank_mask:0xf
v_add_f32_dpp v10, v10, v10 quad_perm:[2,3,0,1] row_mask:0xf bank_mask:0xf''')
        s.finish_stats(9, 10)
        for i in range(8):
            r = 16 + i
            a(f'''v_lshlrev_b32 v11, 16, v{r}
v_and_b32 v12, 0xffff0000, v{r}
v_fma_f32 v11, v11, v9, v10
v_fma_f32 v12, v12, v9, v10
v_cvt_pk_bf16_f32 v{r}, v11, v12''')
        a(f'''
v_lshrrev_b32 v6, 2, v0
s_mul_i32 s47, s41, 12288
s_add_u32 s47, s47, {LS}
v_bfe_u32 v11, v6, 1, 1
v_bfe_u32 v12, v6, 3, 1
v_lshl_or_b32 v11, v12, 1, v11
v_lshlrev_b32 v11, 5, v11
v_lshl_add_u32 v11, v4, 3, v11
v_lshl_add_u32 v11, v6, 7, v11
v_add_u32 v11, s47, v11
v_xor_b32 v12, 32, v11
v_xor_b32 v13, 64, v11
v_xor_b32 v14, 96, v11
ds_write_b64 v11, v[16:17]
ds_write_b64 v12, v[18:19]
ds_write_b64 v13, v[20:21]
ds_write_b64 v14, v[22:23]''')
    def finish_stats(s, vs, vq):
        s.a(f'''
v_mul_f32 v{vs}, 0x3b000000, v{vs}
v_mul_f32 v{vq}, 0x3b000000, v{vq}
v_fma_f32 v{vq}, -v{vs}, v{vs}, v{vq}
v_max_f32 v{vq}, 0, v{vq}
v_add_f32 v{vq}, 0x3727c5ac, v{vq}
v_rsq_f32 v{vq}, v{vq}
s_nop 0
v_mul_f32 v{vs}, v{vs}, v{vq}
v_sub_f32 v{vs}, 0, v{vs}
v_swap_b32 v{vs}, v{vq}''')
    def alpha_core(s, cb, adoff):
        a = s.a
        a(f'''
s_and_b32 s47, s41, 1
s_lshl_b32 s47, s47, 1
v_lshrrev_b32 v6, 1, v3
v_and_b32 v7, 1, v2
v_lshl_or_b32 v6, v7, 1, v6
v_xor_b32 v6, s47, v6
v_lshlrev_b32 v6, 5, v6
v_lshl_add_u32 v6, v4, 3, v6
v_and_b32 v7, 1, v2
v_lshl_add_u32 v7, v7, 3, v3
v_lshl_add_u32 v6, v7, 7, v6
v_lshrrev_b32 v7, 1, v2
v_mul_u32_u24 v7, 12288, v7
v_add_u32 v6, v7, v6
v_add_u32 v6, {LS}, v6
v_xor_b32 v7, 32, v6''')
        A = 96
        for dt in range(2):
            for ks in range(2):
                for h in range(2):
                    r = A + 8*dt + 4*ks + 2*h
                    a(f'ds_read_b64_tr_b16 v[{r}:{r+1}], v{6+dt} offset:{24576*ks+512*h}')
        a(f'''
s_lshr_b32 s47, s41, 1
s_lshl_b32 s47, s47, 20
s_lshl_b32 s48, s38, 10
s_add_u32 s47, s47, s48
s_lshl_b32 s48, s39, 7
s_add_u32 s47, s47, s48
s_and_b32 s48, s41, 1
s_lshl_b32 s48, s48, 6
s_add_u32 s47, s47, s48
s_add_u32 s47, s47, {adoff}
v_lshlrev_b32 v8, 15, v1
v_lshl_add_u32 v8, v2, 4, v8
s_add_u32 s48, s47, 0x80000
s_waitcnt lgkmcnt(0)''')
        C = 112
        for mt in range(2):
            for dt in range(2):
                c = C + 8*mt + 4*dt
                for ks in range(2):
                    src = '0' if ks == 0 else f'v[{c}:{c+3}]'
                    a(f'v_mfma_f32_16x16x32_bf16 v[{c}:{c+3}], v[{A+8*dt+4*ks}:{A+8*dt+4*ks+3}], v[{cb+8*mt+4*ks}:{cb+8*mt+4*ks+3}], {src}')
        for mt in range(2):
            c = C + 8*mt
            for k in range(4): a(f'v_cvt_pk_bf16_f32 v{c+k}, v{c+2*k}, v{c+2*k+1}')
            a(f'buffer_store_dwordx4 v[{c}:{c+3}], v8, s[28:31], s{47+mt} offen sc1')
    def get_nonce(s):
        a = s.a; lp = s.label('NP'); dn = s.label('ND')
        a(f'''s_mov_b32 s58, 0x40000
v_mov_b32 v5, 0
{lp}:
buffer_load_dword v6, v5, s[32:35], 0 offen sc1
s_waitcnt vmcnt(0)
v_readfirstlane_b32 s42, v6
s_cmp_lg_u32 s42, 0
s_cbranch_scc1 {dn}
s_sub_u32 s58, s58, 1
s_cmp_lg_u32 s58, 0
s_cbranch_scc1 {lp}
{dn}:''')
    def g_load(s):
        a = s.a
        a('''
s_lshr_b32 s47, s39, 2
s_and_b32 s48, s39, 3
s_lshl_b32 s48, s48, 4
s_add_u32 s47, s47, s48
s_lshl_b32 s47, s47, 5
s_add_u32 s47, s47, s38
s_lshl_b32 s47, s47, 12
v_lshrrev_b32 v5, 1, v1
v_lshlrev_b32 v5, 18, v5
v_lshl_add_u32 v5, v2, 4, v5
buffer_load_dwordx4 v[80:83], v5, s[8:11], s47 offen
buffer_load_dwordx4 v[84:87], v5, s[12:15], s47 offen''')
    def g_make(s):
        a = s.a
        a('''
s_cmp_eq_u32 s38, 0
s_cselect_b32 s50, 0, -1
s_cmp_ge_u32 s39, 4
s_cselect_b32 s51, 0x80008000, 0
s_xor_b32 s52, s51, 0x80008000
v_and_b32 v5, 1, v1
v_cmp_eq_u32 vcc, 1, v5''')
        for k in range(4):
            a(f'''v_cndmask_b32 v6, v{80+k}, v{84+k}, vcc
v_xor_b32 v7, s52, v{84+k}
v_xor_b32 v8, s51, v{80+k}
v_cndmask_b32 v7, v7, v8, vcc
v_and_b32 v7, s50, v7
v_accvgpr_write_b32 a{224+k}, v6
v_accvgpr_write_b32 a{228+k}, v7''')
    def w1_load(s):
        a = s.a
        for k in range(7):
            a(f'''v_lshlrev_b32 v5, 4, v0
v_add_u32 v5, {1024*k}, v5
v_mul_u32_u24 v6, 0x4925, v5
v_lshrrev_b32 v6, 22, v6
v_mul_u32_u24 v7, 224, v6
v_sub_u32 v5, v5, v7
v_mul_u32_u24 v6, 3584, v6
v_add_u32 v{88+k}, v5, v6''')
    def w1_issue(s):
        a = s.a
        a(f'''s_mul_i32 s54, s40, 224
s_mul_i32 s55, s41, {4*32*3584}
s_add_u32 s54, s54, s55''')
        for blk in range(4):
            for k in range(7):
                r = 112 + 28*blk + 4*k
                a(f'buffer_load_dwordx4 a[{r}:{r+3}], v{88+k}, s[16:19], s54 offen{s.nt}')
            if blk < 3: a(f's_add_u32 s54, s54, {32*3584}')
    def w1_transpose(s):
        a = s.a
        a(f'''s_mul_i32 s47, s41, {4*7168}
s_add_u32 s47, s47, {LW1}
v_lshlrev_b32 v86, 4, v0
v_add_u32 v86, s47, v86
v_lshl_add_u32 v87, v2, 2, v3
v_mul_u32_u24 v87, 224, v87
v_lshl_add_u32 v87, v4, 3, v87
v_add_u32 v87, s47, v87''')
        for blk in range(4):
            for k in range(7):
                r = 112 + 28*blk + 4*k
                a(f'ds_write_b128 v86, a[{r}:{r+3}] offset:{7168*blk + 1024*k}')
            for ft in range(7):
                for h in range(2):
                    r = 112 + 28*blk + 4*ft + 2*h
                    a(f'ds_read_b64_tr_b16 a[{r}:{r+1}], v87 offset:{7168*blk + 32*ft + 3584*h}')
        for blk in range(4):
            a(f's_waitcnt lgkmcnt({0 if blk == 3 else 0})') if blk == 0 else None
            for k in range(7):
                r = 112 + 28*blk + 4*k
                a(f'ds_write_b128 v86, a[{r}:{r+3}] offset:{7168*blk + 1024*k}')
    def touch(s, srd, vd):
        s.a(f'''s_mul_i32 s54, s37, 57344
s_lshl_b32 s55, s41, 14
s_add_u32 s54, s54, s55
v_lshlrev_b32 v{vd}, 7, v0
buffer_load_dword v{vd+1}, v{vd}, s[{srd}:{srd+3}], s54 offen''')
        sk = s.label('TCH')
        s.a(f'''s_cmp_eq_u32 s41, 3
s_cselect_b32 s55, 0, 8192
s_add_u32 s54, s54, s55
buffer_load_dword v{vd+2}, v{vd}, s[{srd}:{srd+3}], s54 offen''')
    def h_touch(s, s0, s1, v0, v1):
        s.a(f'''v_min_u32 v{v0}, 55, v0
v_lshlrev_b32 v{v0}, 7, v{v0}
s_mul_i32 s{s0}, s38, 229376
s_mul_i32 s{s1}, s41, 7168
s_add_u32 s{s0}, s{s0}, s{s1}
s_mul_i32 s{s1}, s39, 28672
s_add_u32 s{s0}, s{s0}, s{s1}
s_add_u32 s{s0}, s{s0}, {HO}
buffer_load_dword v{v1}, v{v0}, s[28:31], s{s0} offen sc1''')
    def w1_items(s):
        it = []
        for blk in range(4):
            for k in range(7):
                r = 112 + 28*blk + 4*k
                it.append(f'buffer_load_dwordx4 a[{r}:{r+3}], v{88+k}, s[16:19], s54 offen' + (f'\nv_add_u32 v{88+k}, {32*3584}, v{88+k}' if blk < 3 else ''))
        return it
    def w1_store(s):
        a = s.a
        a(f'''s_mul_i32 s47, s41, {4*7168}
s_add_u32 s47, s47, {LW1}
v_lshlrev_b32 v5, 4, v0
v_add_u32 v5, s47, v5''')
        for blk in range(4):
            for k in range(7):
                r = 112 + 28*blk + 4*k
                a(f'ds_write_b128 v5, a[{r}:{r+3}] offset:{7168*blk + 1024*k}')
    def w2_setup(s, i0, vt, st):
        s.a(f'''v_lshrrev_b32 v{vt}, 3, v0
v_lshlrev_b32 v{vt}, 10, v{vt}
v_and_b32 v{vt+1}, 7, v0
v_lshl_add_u32 v{vt}, v{vt+1}, 4, v{vt}
s_mul_i32 s{st}, s41, {448*1024}
s_lshl_b32 s49, s39, 7
s_add_u32 s{st}, s{st}, s49
s_add_u32 s{st}, s{st}, {8192*i0}''')
    def w2_issue(s, i0, i1, vt, st):
        for i in range(i0, i1):
            s.a(f'buffer_load_dwordx4 a[{4*i}:{4*i+3}], v{vt}, s[20:23], s{st} offen{s.nt}\ns_add_u32 s{st}, s{st}, 8192')
    def w2t_ops(s, ks):
        ops = [f'ds_write_b128 v230, a[{16*ks+4*k}:{16*ks+4*k+3}] offset:{1024*k}' for k in range(4)]
        for nt in range(4):
            for h in range(2):
                r = 16*ks + 4*nt + 2*h
                ops.append(f'ds_read_b64_tr_b16 a[{r}:{r+1}], v{231+nt} offset:{2048*h}')
        return ops
    def w2_transpose(s, ks0, ks1, lbase):
        a = s.a
        a(f'''
s_lshl_b32 s47, s41, 12
s_add_u32 s47, s47, {lbase}
v_bfe_u32 v230, v0, 1, 2
v_bfe_u32 v231, v0, 4, 2
v_xor_b32 v230, v230, v231
v_lshlrev_b32 v230, 5, v230
v_and_b32 v231, 1, v0
v_lshl_add_u32 v230, v231, 4, v230
v_lshrrev_b32 v231, 3, v0
v_lshl_add_u32 v230, v231, 7, v230
v_add_u32 v230, s47, v230
v_and_b32 v231, 1, v2
v_lshrrev_b32 v232, 1, v3
v_lshl_or_b32 v231, v231, 1, v232
v_lshlrev_b32 v231, 5, v231
v_lshl_add_u32 v231, v4, 3, v231
v_lshl_add_u32 v232, v2, 2, v3
v_lshl_add_u32 v231, v232, 7, v231
v_add_u32 v231, s47, v231
v_xor_b32 v232, 32, v231
v_xor_b32 v233, 64, v231
v_xor_b32 v234, 96, v231''')
        for ks in range(ks0, ks1):
            for op in s.w2t_ops(ks): a(op)
    def beta_consts(s):
        a = s.a
        a(f'v_lshlrev_b32 v5, 4, v0\nv_add_u32 v5, {TF16}, v5\nv_add_u32 v6, 4096, v5')
        for k in range(10):
            r = 8 + 4*k
            if k < 4: a(f'global_load_dwordx4 v[{r}:{r+3}], v5, s[44:45] offset:{1024*k}')
            elif k < 8: a(f'global_load_dwordx4 v[{r}:{r+3}], v6, s[44:45] offset:{1024*(k-4)}')
        a('v_add_u32 v6, 4096, v6')
        for k in (8, 9):
            r = 8 + 4*k
            a(f'global_load_dwordx4 v[{r}:{r+3}], v6, s[44:45] offset:{1024*(k-8)}')
    def beta_addr(s, layer):
        a = s.a
        a(f'''
s_lshl_b32 s47, s41, 8
v_lshlrev_b32 v48, 10, v2
v_lshl_add_u32 v48, v1, 4, v48
v_add_u32 v48, s47, v48
s_lshl_b32 s47, s41, 13
s_add_u32 s47, s47, {LS}
v_lshrrev_b32 v49, 1, v1
v_xor_b32 v49, v49, v2
v_lshlrev_b32 v49, 5, v49
v_and_b32 v50, 1, v1
v_lshl_add_u32 v49, v50, 4, v49
v_lshl_add_u32 v49, v2, 8, v49
v_add_u32 v49, s47, v49
v_xor_b32 v50, 128, v49
v_and_b32 v51, 1, v2
v_lshl_or_b32 v51, v51, 2, v3
v_lshlrev_b32 v51, 5, v51
v_lshl_add_u32 v51, v4, 3, v51
v_lshl_add_u32 v52, v2, 3, v3
v_lshl_add_u32 v51, v52, 8, v51
v_add_u32 v51, s47, v51''')
        for dt in range(1, 8): a(f'v_xor_b32 v{51+dt}, {32*dt}, v51')
        UB = LS + 32768
        a(f'''
s_lshl_b32 s47, s41, 8
s_lshr_b32 s48, s41, 1
s_lshl_b32 s48, s48, 5
s_add_u32 s47, s47, s48
v_lshlrev_b32 v59, 3, v2
v_add_u32 v59, s47, v59
v_lshlrev_b32 v60, 3, v1
v_xor_b32 v59, v59, v60
v_lshl_add_u32 v59, v1, 10, v59
v_add_u32 v59, {UB}, v59
v_xor_b32 v60, 32, v59
v_xor_b32 v61, 64, v59
v_xor_b32 v62, 96, v59''')
        a(f'''
s_lshl_b32 s47, s41, 2
v_lshrrev_b32 v63, 1, v2
v_add_u32 v63, s47, v63
v_and_b32 v64, 1, v2
v_mul_u32_u24 v64, 544, v64
v_lshl_add_u32 v64, v3, 6, v64
v_lshl_add_u32 v64, v4, 3, v64
v_lshlrev_b32 v65, 3, v63
v_xor_b32 v64, v64, v65
v_lshl_add_u32 v63, v63, 10, v64
v_add_u32 v63, {UB}, v63
v_xor_b32 v64, 32, v63
v_xor_b32 v65, 16, v63
v_add_u32 v65, 2048, v65
v_xor_b32 v66, 32, v65''')
        a(f'''
v_lshlrev_b32 v67, 5, v1
v_lshl_add_u32 v67, v2, 3, v67
s_lshl_b32 s47, s38, 16
s_lshl_b32 s48, s39, 13
s_add_u32 s47, s47, s48
s_lshl_b32 s48, s41, 11
s_add_u32 s47, s47, s48
v_add_u32 v68, s47, v67''')
        if layer == 0:
            a('''
s_lshr_b32 s47, s39, 2
s_and_b32 s48, s39, 3
s_lshl_b32 s48, s48, 4
s_add_u32 s47, s47, s48
s_lshl_b32 s48, s41, 2
s_add_u32 s47, s47, s48
s_lshl_b32 s47, s47, 5
s_add_u32 s47, s47, s38
s_lshl_b32 s47, s47, 10
v_add_u32 v69, s47, v67
v_add_u32 v70, 0x10000, v69''')
        XI = LS + 8448
        a(f'''
s_lshl_b32 s47, s41, 1
v_lshrrev_b32 v71, 1, v1
v_xor_b32 v72, s47, v71
v_lshlrev_b32 v72, 4, v72
v_lshl_add_u32 v72, v71, 9, v72
v_lshl_add_u32 v72, v2, 7, v72
v_and_b32 v71, 1, v1
v_lshl_add_u32 v71, v71, 3, v72
v_add_u32 v71, {XI}, v71
v_xor_b32 v72, 16, v71''')
        a(f'''
s_lshl_b32 s47, s41, 2
v_lshrrev_b32 v73, 5, v0
v_add_u32 v73, s47, v73
v_and_b32 v74, 7, v0
v_xor_b32 v75, v74, v73
v_and_b32 v75, 7, v75
v_lshlrev_b32 v75, 4, v75
v_lshl_add_u32 v75, v73, 9, v75
v_bfe_u32 v84, v0, 3, 2
v_lshl_add_u32 v75, v84, 7, v75
v_lshlrev_b32 v73, 10, v73
v_lshl_add_u32 v73, v84, 8, v73
v_lshl_add_u32 v73, v74, 4, v73
s_lshl_b32 s47, s38, 16
s_lshr_b32 s48, s39, 1
s_lshl_b32 s48, s48, 14
s_add_u32 s47, s47, s48
s_and_b32 s48, s39, 1
s_lshl_b32 s48, s48, 7
s_add_u32 s47, s47, s48
v_add_u32 v74, s47, v73
v_add_u32 v73, {XI}, v75
v_xor_b32 v85, 32, v73''')
    def beta_resid(s, layer):
        a = s.a
        for rr in range(2):
            for T2 in range(2):
                r = 76 + 4*rr + 2*T2
                if layer == 0: a(f'buffer_load_dwordx2 v[{r}:{r+1}], v{69+rr}, s[4:7], 0 offen offset:{512*T2}')
                else: a(f'buffer_load_dwordx2 v[{r}:{r+1}], v68, s[28:31], s49 offen offset:{1024*rr+512*T2}{s.ldf}')
    def beta_main(s, layer):
        a = s.a
        ad = AD0 if layer == 0 else AD1
        a(f'''
s_sub_u32 s47, 32, s38
s_cmp_lt_u32 s39, 4
s_cselect_b32 s47, s38, s47
s_add_u32 s48, s47, 32
s_cmp_eq_u32 s38, 0
s_cselect_b32 s48, 0, s48
s_lshl_b32 s47, s47, 15
s_lshl_b32 s48, s48, 15
s_add_u32 s47, s47, {ad}
s_add_u32 s48, s48, {ad}
s_mov_b32 s49, {X2O}''')
        D = 96
        for p in range(2):
            for i in range(8):
                r = D + 32*p + 4*i
                a(f'buffer_load_dwordx4 v[{r}:{r+3}], v48, s[28:31], s{47+p} offen{s.adf}')
                if i < 7: a(f's_add_u32 s{47+p}, s{47+p}, 4096')
        nw = 0; nr = 0; spr = []
        if layer == 0:
            s.beta_resid(layer); nr = 4
            if s.pf2 == 2: s.touch(20, 246); nw += 2
            if s.t2 == 2:
                s.h_touch(48, 49, 246, 247); nw += 1
            if s.t1:
                a(f'''s_lshr_b32 s47, s39, 1
s_lshl_b32 s47, s47, 14
s_and_b32 s48, s39, 1
s_lshl_b32 s48, s48, 7
s_add_u32 s47, s47, s48
s_lshl_b32 s48, s41, 12
s_add_u32 s47, s47, s48
s_add_u32 s47, s47, {XNO}
s_lshl_b32 s48, s39, 13
s_lshl_b32 s49, s41, 11
s_add_u32 s48, s48, s49
s_add_u32 s48, s48, {X1O}
v_lshlrev_b32 v246, 8, v1
v_add_u32 v246, s47, v246
v_lshlrev_b32 v247, 7, v1
v_add_u32 v247, s48, v247
v_and_b32 v248, 1, v2
v_cmp_eq_u32 vcc, 1, v248
v_cndmask_b32 v246, v246, v247, vcc
s_lshl_b32 s47, s38, 16
buffer_load_dword v249, v246, s[28:31], s47 offen sc1''')
                nw += 1
            a(f's_mul_i32 s54, s40, 224\ns_mul_i32 s55, s41, {4*32*3584}\ns_add_u32 s54, s54, s55')
            s.w2_setup(0, 86, 55)
            if not s.w1e: spr.extend(s.w1_items())
            for i in range(s.nw2b):
                spr.append(f'buffer_load_dwordx4 a[{4*i}:{4*i+3}], v86, s[20:23], s55 offen\nv_add_u32 v86, 8192, v86')
        T = 160
        C = 192
        for p in range(2):
            a(f's_waitcnt vmcnt({(8 if p == 0 else 0) + nr + nw + a.nspr * (p == 1 and layer == 0)})')
            if p == 0 and spr: a.sprinkle(spr, s.every)
            if p == 0: s.fstamp('beta AD0 arrived', 'beta')
            for i in range(8):
                r = D + 32*p + 4*i
                a(f'ds_write_b128 v{49 + ((i>>1)&1)}, v[{r}:{r+3}] offset:{1024*i}')
            for dt in range(8):
                for h in range(2):
                    r = T + 4*dt + 2*h
                    a(f'ds_read_b64_tr_b16 v[{r}:{r+1}], v{51+dt} offset:{1024*h}')
            for dt in range(8):
                a(f's_waitcnt lgkmcnt({14-2*dt})')
                src = '0' if p == 0 else f'v[{C+4*dt}:{C+4*dt+3}]'
                a(f'v_mfma_f32_16x16x32_bf16 v[{C+4*dt}:{C+4*dt+3}], v[{T+4*dt}:{T+4*dt+3}], a[{224+4*p}:{227+4*p}], {src}')
        for dt in range(8):
            c = C + 4*dt
            a(f'v_cvt_pk_bf16_f32 v{c}, v{c}, v{c+1}\nv_cvt_pk_bf16_f32 v{c+1}, v{c+2}, v{c+3}')
            a(f'ds_write_b64 v{59+(dt&3)}, v[{c}:{c+1}] offset:{128*(dt>>2)}')
        if layer == 0:
            a(f's_lshl_b32 s47, s41, 13\ns_add_u32 s47, s47, {LS}\ns_lshr_b32 s48, s41, 1\ns_mul_i32 s48, s48, 8188\ns_add_u32 s47, s47, s48\nv_mov_b32 v96, s47\nv_mov_b32 v97, s53\nds_write_b32 v96, v97')
        a('s_waitcnt lgkmcnt(0)\ns_barrier')
        if layer == 0:
            a(f'v_lshlrev_b32 v96, 13, v4\nv_lshrrev_b32 v97, 1, v4\nv_mul_u32_u24 v97, 8188, v97\nv_add_u32 v96, v96, v97\nv_add_u32 v96, {LS}, v96\nds_read_b32 v97, v96\ns_waitcnt lgkmcnt(0)\nv_cmp_ne_u32 vcc, 0, v97\ns_nop 4\ns_cmp_eq_u64 vcc, 0\ns_cselect_b32 s43, 1, 0')
            if s.force_slow: a('s_mov_b32 s43, 0')
        if layer == 1: s.beta_resid(layer)
        s.fstamp('beta U done', 'beta')
        for rr in range(2):
            for Tt in range(2):
                for h in range(2):
                    r = D + 8*rr + 4*Tt + 2*h
                    a(f'ds_read_b64_tr_b16 v[{r}:{r+1}], v{63+2*rr+Tt} offset:{256*h}')
        P = 112
        for rr in range(2):
            a(f's_waitcnt lgkmcnt({4 if rr == 0 else 0})')
            for Tt in range(2):
                for ci in range(2):
                    p = P + 16*rr + 8*Tt + 4*ci
                    a(f'v_mfma_f32_16x16x32_bf16 v[{p}:{p+3}], v[{D+8*rr+4*Tt}:{D+8*rr+4*Tt+3}], v[{8+4*ci}:{11+4*ci}], 0')
        Q = 144
        for rr in range(2):
            for Tt in range(2):
                pr = P + 16*rr + 8*Tt; pi = pr + 4
                for jj in range(0, 4, 2):
                    tc = 32 + 4*Tt + jj; ts = 40 + 4*Tt + jj; t0 = 160 + 8*Tt + jj; t1 = t0 + 4
                    a(f'''v_pk_mul_f32 v[{t0}:{t0+1}], v[{pr+jj}:{pr+jj+1}], v[{tc}:{tc+1}]
v_pk_mul_f32 v[{t1}:{t1+1}], v[{pi+jj}:{pi+jj+1}], v[{tc}:{tc+1}]
v_pk_fma_f32 v[{t0}:{t0+1}], v[{pi+jj}:{pi+jj+1}], v[{ts}:{ts+1}], v[{t0}:{t0+1}]
v_pk_fma_f32 v[{t1}:{t1+1}], v[{pr+jj}:{pr+jj+1}], v[{ts}:{ts+1}], v[{t1}:{t1+1}] neg_lo:[1,0,0] neg_hi:[1,0,0]''')
                t0 = 160 + 8*Tt
                a(f'''v_cvt_pk_bf16_f32 v{Q+8*rr+2*Tt}, v{t0}, v{t0+1}
v_cvt_pk_bf16_f32 v{Q+8*rr+2*Tt+1}, v{t0+2}, v{t0+3}
v_cvt_pk_bf16_f32 v{Q+8*rr+4+2*Tt}, v{t0+4}, v{t0+5}
v_cvt_pk_bf16_f32 v{Q+8*rr+4+2*Tt+1}, v{t0+6}, v{t0+7}''')
        s.fstamp('beta twiddle done', 'beta')
        Y = 176
        for rr in range(2):
            for T2 in range(2):
                y = Y + 8*rr + 4*T2
                a(f'v_mfma_f32_16x16x32_bf16 v[{y}:{y+3}], v[{Q+8*rr}:{Q+8*rr+3}], v[{16+8*T2}:{19+8*T2}], 0')
            for T2 in range(2):
                y = Y + 8*rr + 4*T2
                a(f'v_mfma_f32_16x16x32_bf16 v[{y}:{y+3}], v[{Q+8*rr+4}:{Q+8*rr+7}], v[{20+8*T2}:{23+8*T2}], v[{y}:{y+3}]')
        a(f's_waitcnt vmcnt({min(63, nw + (a.nspr if layer == 0 else 0))})')
        for rr in range(2):
            for T2 in range(2):
                y = Y + 8*rr + 4*T2; x = 76 + 4*rr + 2*T2
                for k in range(2):
                    a(f'''v_lshlrev_b32 v96, 16, v{x+k}
v_and_b32 v97, 0xffff0000, v{x+k}
v_add_f32 v{y+2*k}, v{y+2*k}, v96
v_add_f32 v{y+2*k+1}, v{y+2*k+1}, v97''')
            y = Y + 8*rr; S_, Q_ = 100 + 2*rr, 101 + 2*rr
            a(f'v_add_f32 v{S_}, v{y}, v{y+1}\nv_mul_f32 v{Q_}, v{y}, v{y}\nv_fma_f32 v{Q_}, v{y+1}, v{y+1}, v{Q_}')
            for k in range(2, 8): a(f'v_add_f32 v{S_}, v{S_}, v{y+k}\nv_fma_f32 v{Q_}, v{y+k}, v{y+k}, v{Q_}')
        s.wave_reduce([100, 101, 102, 103], 104, rows=True)
        for rr in range(2):
            s.finish_stats(100 + 2*rr, 101 + 2*rr)
        for rr in range(2):
            y = Y + 8*rr
            for k in range(4): a(f'v_cvt_pk_bf16_f32 v{208+4*rr+k}, v{y+2*k}, v{y+2*k+1}')
            for k in range(8): a(f'v_fma_f32 v{y+k}, v{y+k}, v{100+2*rr}, v{101+2*rr}')
            for k in range(4): a(f'v_cvt_pk_bf16_f32 v{216+4*rr+k}, v{y+2*k}, v{y+2*k+1}')
        a.flush()
        a(f's_mov_b32 s47, {X1O + LAYOFF*layer}\ns_mov_b32 s48, {XNO + LAYOFF*layer}')
        s.fstamp('beta epilogue done', 'beta')
        for rr in range(2):
            for T2 in range(2):
                a(f'ds_write_b64 v{71+rr}, v[{216+4*rr+2*T2}:{217+4*rr+2*T2}] offset:{4096*T2}')
        def st1(f):
            for rr in range(2):
                for T2 in range(2):
                    a(f'buffer_store_dwordx2 v[{208+4*rr+2*T2}:{209+4*rr+2*T2}], v68, s[28:31], s47 offen offset:{1024*rr+512*T2}{f}')
        s.dual(st1)
        a('s_waitcnt lgkmcnt(0)\ns_barrier')
        a('ds_read_b128 v[216:219], v73\nds_read_b128 v[220:223], v85 offset:1024')
        def st2(f):
            a(f's_waitcnt lgkmcnt(1)\nbuffer_store_dwordx4 v[216:219], v74, s[28:31], s48 offen{f}')
            a(f's_waitcnt lgkmcnt(0)\nbuffer_store_dwordx4 v[220:223], v74, s[28:31], s48 offen offset:2048{f}')
        s.dual(st2)
        s.fstamp('beta stores issued', 'beta')
    def wave_reduce(s, rs, t, rows):
        a = s.a
        if rows:
            for ctl in ('quad_perm:[1,0,3,2]', 'quad_perm:[2,3,0,1]', 'row_half_mirror', 'row_mirror'):
                for r in rs: a(f'v_add_f32_dpp v{r}, v{r}, v{r} {ctl} row_mask:0xf bank_mask:0xf')
        for sw in ('v_permlane16_swap_b32', 'v_permlane32_swap_b32'):
            for k, r in enumerate(rs): a(f'v_mov_b32 v{t+k}, v{r}')
            for k, r in enumerate(rs): a(f'{sw} v{r}, v{t+k}')
            for k, r in enumerate(rs): a(f'v_add_f32 v{r}, v{r}, v{t+k}')
    def gamma(s):
        a = s.a
        XB, A, C = 8, 136, 192
        a(f'''
v_lshlrev_b32 v5, 4, v0
s_lshl_b32 s47, s46, 16
s_and_b32 s48, s41, 1
s_lshl_b32 s48, s48, 15
s_add_u32 s47, s47, s48
s_add_u32 s47, s47, {XNO + LAYOFF*s.lay}
s_add_u32 s48, s47, 16384''')
        issued = []
        def ldx(ks):
            for rt in range(2):
                r = XB + 8*ks + 4*rt
                a(f'buffer_load_dwordx4 v[{r}:{r+3}], v5, s[28:31], s{47+rt} offen offset:{1024*(ks&3)}{s.ldf}'); issued.append(ks)
            if (ks & 3) == 3 and ks < 15: a('s_add_u32 s47, s47, 4096\ns_add_u32 s48, s48, 4096')
        nx0 = 4 if s.lay == 0 else s.gx0
        for ks in range(nx0): ldx(ks)
        nx = [nx0]; nw2 = [s.nw2b]; th = [0]
        if s.lay == 0: s.w2_setup(s.nw2b, 250, 55)
        a(f'''v_lshl_add_u32 v252, v2, 2, v3
v_mul_u32_u24 v252, 224, v252
v_lshl_add_u32 v252, v4, 3, v252
v_add_u32 v252, {LW1}, v252
v_add_u32 v253, 57344, v252''')
        def rd(n, h):
            ks = n // 7; ft = n % 7; b = 252 if ks < 8 else 253; o = 7168*(ks & 7) + 32*ft
            r = A + 4*(n % 8)
            a(f'ds_read_b64_tr_b16 v[{r+2*h}:{r+2*h+1}], v{b} offset:{o + 3584*h}')
        P = 8
        def pack(ft):
            for rt in range(2):
                c = C + 8*ft + 4*rt; p = P + 16*rt + 2*ft
                a(f'v_cvt_pk_bf16_f32 v{p}, v{c}, v{c+1}\nv_cvt_pk_bf16_f32 v{p+1}, v{c+2}, v{c+3}')
                a(f'v_pk_max_i16 v{p}, v{p}, 0\nv_pk_max_i16 v{p+1}, v{p+1}, 0')
        for n in range(7): rd(n, 0); rd(n, 1)
        for ks in range(16):
            last = max(k for k, t in enumerate(issued) if t == ks)
            a(f's_waitcnt vmcnt({len(issued) - 1 - last})')
            if ks in (0, 6): s.fstamp(f'gamma ks{ks}', 'gamma')
            if ks == 12:
                a(f'''s_mul_i32 s47, s46, 229376
s_and_b32 s48, s41, 1
s_mul_i32 s48, s48, {2*57344}
s_add_u32 s47, s47, s48
s_mul_i32 s48, s40, 7
s_lshr_b32 s48, s48, 1
s_lshl_b32 s48, s48, 10
s_add_u32 s47, s47, s48
s_add_u32 s47, s47, {HO + LAYOFF*s.lay}
s_add_u32 s48, s47, 57344
v_lshlrev_b32 v249, 3, v0''')
            for ft in range(7):
                n = 7*ks + ft
                a(f's_waitcnt lgkmcnt({2*min(6, 111-n)})')
                r = A + 4*(n % 8)
                for rt in range(2):
                    c = C + 8*ft + 4*rt
                    src = '0' if ks == 0 else f'v[{c}:{c+3}]'
                    a(f'v_mfma_f32_16x16x32_bf16 v[{c}:{c+3}], v[{r}:{r+3}], v[{XB+8*ks+4*rt}:{XB+8*ks+4*rt+3}], {src}')
                    if n + 7 < 112: rd(n + 7, rt)
                if ks == 15 and ft >= 2: pack(ft - 2)
                if ft in (1, 4):
                    if s.lay == 1 and ft == 4 and s.gx1: pass
                    elif nx[0] < 16: ldx(nx[0]); nx[0] += 1
                    elif s.lay == 0 and s.t2 == 1 and not th[0]:
                        th[0] = 1
                        s.h_touch(52, 53, 254, 255); issued.append('t')
                    elif s.lay == 0 and nw2[0] < 56:
                        k = min(max(1, (56 - s.nw2b + 18) // 19), 56 - nw2[0])
                        s.w2_issue(nw2[0], nw2[0] + k, 250, 55); issued.extend(['w']*k); nw2[0] += k
        pack(5); pack(6)
        if s.lay == s.finel: s.stamp('gamma mfma done')
        if s.lay == 0:
            s.w2_issue(nw2[0], 56, 250, 55)
        od = s.label('ODD'); jn = s.label('GJ')
        a(f's_bitcmp1_b32 s40, 0\ns_cbranch_scc1 {od}')
        def st_even(f):
            for rt in range(2):
                p = P + 16*rt
                for k in range(3): a(f'buffer_store_dwordx4 v[{p+4*k}:{p+4*k+3}], v5, s[28:31], s{47+rt} offen offset:{1024*k}{f}')
                a(f'buffer_store_dwordx2 v[{p+12}:{p+13}], v249, s[28:31], s{47+rt} offen offset:3072{f}')
        s.dual(st_even)
        a(f's_branch {jn}\n{od}:')
        def st_odd(f):
            for rt in range(2):
                p = P + 16*rt
                a(f'buffer_store_dwordx2 v[{p}:{p+1}], v249, s[28:31], s{47+rt} offen offset:512{f}')
                for k in range(3): a(f'buffer_store_dwordx4 v[{p+2+4*k}:{p+5+4*k}], v5, s[28:31], s{47+rt} offen offset:{1024*(k+1)}{f}')
        s.dual(st_odd)
        a(f'{jn}:')
    def delta_addr(s):
        a = s.a
        a('''
s_lshl_b32 s47, s38, 16
s_lshl_b32 s48, s41, 14
s_add_u32 s47, s47, s48
s_lshl_b32 s48, s39, 7
s_add_u32 s47, s47, s48
v_lshlrev_b32 v6, 10, v1
v_lshl_add_u32 v6, v2, 3, v6
v_add_u32 v6, s47, v6
v_lshlrev_b32 v5, 4, v0''')
    def delta(s, layer):
        a = s.a
        C, R, X = 8, 72, 200
        a(f's_mov_b32 s49, {X1O + LAYOFF*layer}\nv_lshlrev_b32 v7, 3, v0')
        a(f's_mul_i32 s47, s38, 229376\ns_mul_i32 s48, s41, 14336\ns_add_u32 s47, s47, s48\ns_add_u32 s47, s47, {HO + LAYOFF*layer}')
        for sl in range(4):
            a(f's_add_u32 s48, s41, {sl}\ns_and_b32 s48, s48, 3\ns_mul_i32 s48, s48, 57344\ns_add_u32 s{50+sl}, s47, s48')
        issued = []
        def ld(st):
            for sl in range(4):
                r = R + 16*(st & 7) + 4*sl
                if st in (3, 10):
                    a(f'buffer_load_dwordx2 v[{r}:{r+1}], v7, s[28:31], s{50+sl} offen offset:{1024*(st&3)}{s.ldf}')
                    a(f'buffer_load_dwordx2 v[{r+2}:{r+3}], v7, s[28:31], s{50+sl} offen offset:{1024*(st&3)+512}{s.ldf}')
                    issued.extend([st, st])
                else:
                    a(f'buffer_load_dwordx4 v[{r}:{r+3}], v5, s[28:31], s{50+sl} offen offset:{1024*(st&3)}{s.ldf}')
                    issued.append(st)
            if (st & 3) == 3:
                for sl in range(4): a(f's_add_u32 s{50+sl}, s{50+sl}, 4096')
        for st in range(3): ld(st)
        nl = [3]
        def red_w(sl):
            for nt in range(4):
                c = C + 16*sl + 4*nt
                a(f'ds_write_b128 v{72+sl}, v[{c}:{c+3}] offset:{4096*(sl-1)+1024*nt}')
        for st in range(14):
            last = max(k for k, t in enumerate(issued) if t == st)
            ops = []
            if layer == 0:
                a(f's_waitcnt vmcnt({len(issued) - 1 - last}) lgkmcnt({12 if st < 13 else 0})')
                if st + 2 < 14: ops = s.w2t_ops(st + 2)
                if st == 13: a('s_barrier')
            else:
                a(f's_waitcnt vmcnt({len(issued) - 1 - last})')
            if st in (0, 4, 8): s.fstamp(f'delta st{st}', 'delta')
            for sl in ((0, 1, 2, 3) if st < 13 else (1, 2, 3, 0)):
                for nt in range(4):
                    c = C + 16*sl + 4*nt; r = R + 16*(st & 7) + 4*sl
                    src = '0' if st == 0 else f'v[{c}:{c+3}]'
                    a(f'v_mfma_f32_16x16x32_bf16 v[{c}:{c+3}], a[{16*st+4*nt}:{16*st+4*nt+3}], v[{r}:{r+3}], {src}')
                    if ops: a(ops.pop(0))
                if st == 13 and sl in (2, 3, 0): red_w({2: 1, 3: 2, 0: 3}[sl])
            for _ in range(2):
                if nl[0] < 14 and nl[0] <= st + 8: ld(nl[0]); nl[0] += 1
            if st == 6:
                for nt in range(4):
                    a(f'buffer_load_dwordx2 v[{X+2*nt}:{X+2*nt+1}], v6, s[28:31], s49 offen offset:{32*nt}{s.ldf}'); issued.append('x')
                if layer == 0: s.alpha_consts(208, 228); issued.extend(['c']*4)
            if st == 10:
                a(f'v_add_u32 v72, {LS}, v5')
                for sl in range(1, 4):
                    a(f's_add_u32 s47, s41, {sl}\ns_and_b32 s47, s47, 3\ns_mul_i32 s47, s47, 12288\nv_add_u32 v{72+sl}, s47, v72')
                a('s_mul_i32 s47, s41, 12288\nv_add_u32 v72, s47, v72')
                if layer == 0:
                    a(f'''s_lshl_b32 s47, s38, 13
s_lshl_b32 s48, s41, 11
s_add_u32 s47, s47, s48
s_add_u32 s47, s47, {STO}
s_lshl_b32 s48, s39, 4
s_add_u32 s48, s48, s47
v_lshlrev_b32 v80, 7, v1
s_add_u32 s56, s42, 48
v_mov_b32 v81, s56''')
                else:
                    a('''s_lshl_b32 s47, s41, 1
v_lshrrev_b32 v7, 3, v1
v_add_u32 v7, s47, v7
v_lshrrev_b32 v76, 2, v7
v_and_b32 v7, 3, v7
v_lshl_add_u32 v76, v7, 4, v76
v_and_b32 v7, 7, v1
v_lshl_add_u32 v76, v7, 1, v76
v_lshlrev_b32 v76, 5, v76
v_add_u32 v76, s38, v76
v_lshlrev_b32 v76, 10, v76
v_lshl_add_u32 v82, v2, 3, v76
s_lshl_b32 s47, s39, 7''')
        if layer == s.finel: s.stamp('delta mfma done')
        s.fstamp('dtail mfma done', 'dtail')
        a('s_waitcnt lgkmcnt(0)\ns_barrier')
        s.fstamp('dtail bar2', 'dtail')
        for sl in range(1, 4):
            for nt in range(4):
                c = C + 16*sl + 4*nt
                a(f'ds_read_b128 v[{c}:{c+3}], v72 offset:{4096*(sl-1)+1024*nt}')
        a('s_waitcnt vmcnt(0)')
        for nt in range(4):
            for k in range(2):
                a(f'''v_lshlrev_b32 v76, 16, v{X+2*nt+k}
v_and_b32 v77, 0xffff0000, v{X+2*nt+k}
v_add_f32 v{C+4*nt+2*k}, v{C+4*nt+2*k}, v76
v_add_f32 v{C+4*nt+2*k+1}, v{C+4*nt+2*k+1}, v77''')
        for sl in range(1, 4):
            a(f's_waitcnt lgkmcnt({4*(3-sl)})')
            for k in range(16): a(f'v_add_f32 v{C+k}, v{C+k}, v{C+16*sl+k}')
        s.fstamp('dtail reduced', 'dtail')
        for k in range(8): a(f'v_cvt_pk_bf16_f32 v{X+k}, v{C+2*k}, v{C+2*k+1}')
        if layer == 1:
            for nt in range(4): a(f'buffer_store_dwordx2 v[{X+2*nt}:{X+2*nt+1}], v82, s[24:27], s47 offen offset:{32*nt}')
            return
        a(f'v_add_f32 v76, v{C}, v{C+1}\nv_mul_f32 v78, v{C}, v{C}\nv_fma_f32 v78, v{C+1}, v{C+1}, v78')
        for k in range(2, 16): a(f'v_add_f32 v76, v76, v{C+k}\nv_fma_f32 v78, v{C+k}, v{C+k}, v78')
        s.wave_reduce([76, 78], 82, rows=False)
        a('v_mov_b32 v77, v81\nv_mov_b32 v79, v81')
        def st(f):
            a('s_mov_b64 exec, 0xffff')
            a(f'buffer_store_dwordx4 v[76:79], v80, s[28:31], s48 offen{f}')
            a('s_mov_b64 exec, -1')
        s.dual(st)
        s.fstamp('dtail granule', 'dtail')
    def delta_norm(s):
        a = s.a
        C = 8
        lp = s.label('SP'); dn = s.label('SD')
        a(f'''v_lshl_add_u32 v80, v2, 5, v80
s_mov_b32 s58, 0x40000
{lp}:
buffer_load_dwordx4 v[72:75], v80, s[28:31], s47 offen sc1
buffer_load_dwordx4 v[76:79], v80, s[28:31], s47 offen offset:16 sc1
s_waitcnt vmcnt(0)
v_cmp_ne_u32 vcc, s56, v73
v_cmp_ne_u32 s[48:49], s56, v75
s_nop 1
s_or_b64 vcc, vcc, s[48:49]
v_cmp_ne_u32 s[48:49], s56, v77
s_nop 1
s_or_b64 vcc, vcc, s[48:49]
v_cmp_ne_u32 s[48:49], s56, v79
s_nop 1
s_or_b64 vcc, vcc, s[48:49]
s_cbranch_vccz {dn}
s_sub_u32 s58, s58, 1
s_cmp_lg_u32 s58, 0
s_cbranch_scc1 {lp}
{dn}:
v_add_f32 v76, v72, v76
v_add_f32 v77, v74, v78''')
        s.stamp('stats poll')
        s.fstamp('dtail stats', 'dtail')
        def stx(f):
            for nt in range(4): a(f'buffer_store_dwordx2 v[{200+2*nt}:{201+2*nt}], v6, s[28:31], s57 offen offset:{32*nt}{f}')
        a(f's_mov_b32 s57, {X2O}')
        s.dual(stx)
        s.wave_reduce([76, 77], 78, rows=False)
        s.finish_stats(76, 77)
        for k in range(0, 16, 2): a(f'v_fma_f32 v{C+k}, v{C+k}, v76, v77\nv_fma_f32 v{C+k+1}, v{C+k+1}, v76, v77\nv_cvt_pk_bf16_f32 v{C+k//2}, v{C+k}, v{C+k+1}')
        for nt in range(4):
            a(f'ds_write_b64 v{226 if nt < 2 else 227}, v[{C+2*nt}:{C+2*nt+1}] offset:{16*(nt&1)}')
    def xtile_addr(s):
        s.a(f'''
s_mul_i32 s48, s41, 12288
s_add_u32 s48, s48, {LS}
v_bfe_u32 v226, v1, 1, 1
v_bfe_u32 v227, v1, 3, 1
v_lshl_or_b32 v226, v227, 1, v226
v_and_b32 v227, 1, v2
v_xor_b32 v226, v226, v227
v_lshlrev_b32 v226, 5, v226
v_lshrrev_b32 v227, 1, v2
v_lshl_add_u32 v226, v227, 3, v226
v_lshl_add_u32 v226, v1, 7, v226
v_add_u32 v226, s48, v226
v_xor_b32 v227, 64, v226''')
    def bar_addr(s, arr, v):
        s.a(f'''
v_lshrrev_b32 v{v}, 1, v0
v_and_b32 v{v+1}, 3, v{v}
v_lshrrev_b32 v{v}, 2, v{v}
v_lshl_add_u32 v{v}, v{v+1}, 6, v{v}
v_and_b32 v{v+1}, 1, v0
v_lshl_add_u32 v{v}, v{v+1}, 3, v{v}
s_lshl_b32 s47, s41, 4
v_add_u32 v{v}, s47, v{v}
v_lshlrev_b32 v{v}, 6, v{v}
v_add_u32 v{v}, {FLO + arr*0x8000}, v{v}''')
    def barrier0(s):
        a = s.a; pf = s.label('PF'); jn = s.label('PJ'); lp = s.label('BP'); dn = s.label('BD')
        a(f's_mov_b32 s53, 0\ns_cmp_ge_u32 s41, 2\ns_cbranch_scc1 {pf}')
        s.bar_addr(0, 222)
        a(f'''s_mov_b32 s56, s42
s_mov_b32 s58, 0x40000
{lp}:
buffer_load_dword v223, v222, s[28:31], 0 offen sc1
buffer_load_dword v224, v222, s[28:31], 0 offen offset:2048 sc1
s_waitcnt vmcnt(0)
v_and_b32 v225, 0xfffffff0, v223
v_and_b32 v226, 0xfffffff0, v224
v_cmp_ne_u32 vcc, s56, v225
v_cmp_ne_u32 s[48:49], s56, v226
s_nop 4
s_or_b64 vcc, vcc, s[48:49]
s_cbranch_vccz {dn}
s_sub_u32 s58, s58, 1
s_cmp_lg_u32 s58, 0
s_cbranch_scc1 {lp}
{dn}:
v_and_b32 v223, 15, v223
v_and_b32 v224, 15, v224
v_cmp_ne_u32 vcc, s59, v223
v_cmp_ne_u32 s[48:49], s59, v224
s_nop 4
s_or_b64 vcc, vcc, s[48:49]
s_lshl_b32 s47, s36, 3
s_lshl_b64 s[48:49], 0xff, s47
s_and_b64 s[48:49], s[48:49], vcc
s_cmp_lg_u64 s[48:49], 0
s_cselect_b32 s53, 1, 0
s_branch {jn}
{pf}:''')
        if s.pf1 == 2:
            a('''s_mul_i32 s54, s37, 57344
s_sub_u32 s55, s41, 2
s_lshl_b32 s55, s55, 15
s_add_u32 s54, s54, s55
s_cmp_eq_u32 s41, 3
s_cselect_b32 s55, 0, 8192
v_lshlrev_b32 v240, 7, v0
buffer_load_dword v241, v240, s[16:19], s54 offen
s_add_u32 s54, s54, 8192
buffer_load_dword v242, v240, s[16:19], s54 offen
s_add_u32 s54, s54, 8192
buffer_load_dword v243, v240, s[16:19], s54 offen
s_add_u32 s54, s54, s55
buffer_load_dword v244, v240, s[16:19], s54 offen''')
        a(f'{jn}:\ns_barrier')
    def grp16_base(s, arr, dst):
        s.a(f'''s_lshr_b32 s{dst}, s37, 4
s_lshl_b32 s48, s36, 1
s_add_u32 s{dst}, s{dst}, s48
s_lshl_b32 s{dst}, s{dst}, 8
s_add_u32 s{dst}, s{dst}, {FLO + arr*0x8000}''')
    def grp16_poll(s, arr):
        s.grp16_base(arr, 47)
        s.a(f'''s_lshl_b32 s48, s41, 6
s_add_u32 s47, s47, s48
v_lshlrev_b32 v222, 2, v1
v_add_u32 v222, s47, v222
s_add_u32 s56, s42, {16*arr}''')
        s.poll(222, 223, 56)
    def grp16_signal(s, arr):
        s.grp16_base(arr, 54)
        s.a('s_lshl_b32 s48, s40, 4\ns_add_u32 s54, s54, s48\ns_lshl_b32 s48, s41, 2\ns_add_u32 s54, s54, s48')
        s.wave_signal(arr, 54)
    def dump_stamps(s):
        if not s.stamps: return
        a = s.a
        a(f's_lshl_b32 s47, s2, 2\ns_add_u32 s47, s47, s41\ns_lshl_b32 s47, s47, 7\ns_add_u32 s47, s47, {DBO}\nv_mov_b32 v5, s47\ns_mov_b64 exec, 1')
        for k in range(s.nst):
            a(f'v_mov_b32 v6, s{60+2*k}\nbuffer_store_dword v6, v5, s[28:31], 0 offen offset:{4*k}')
        for k, r in enumerate((43, 59, 53, 98, 100)):
            a(f'v_mov_b32 v6, s{r}\nbuffer_store_dword v6, v5, s[28:31], 0 offen offset:{4*(24+k)}')
        a('s_mov_b64 exec, -1')
    def build(s):
        a = s.a
        s.prologue()
        s.alpha_in1(); s.alpha_consts(128); s.g_load()
        npre = 0
        if s.pretouch:
            a(f'v_lshlrev_b32 v95, 20, v0\nv_min_u32 v95, {WSZ - 4}, v95\nbuffer_load_dword v96, v95, s[28:31], 0 offen\nv_and_b32 v95, 1, v0\nv_lshlrev_b32 v95, 20, v95\nbuffer_load_dword v96, v95, s[24:27], 0 offen')
            npre = 2
        if s.cpf:
            a(f'''s_lshl_b32 s47, s37, 12
s_lshl_b32 s48, s41, 10
s_add_u32 s47, s47, s48
v_lshlrev_b32 v95, 4, v0
v_add_u32 v95, s47, v95
v_min_u32 v95, TABLE-{KN}_kernel+{len(tables())*4 - 16}, v95
s_sub_u32 s48, s44, TABLE-{KN}_kernel
s_subb_u32 s49, s45, 0
global_load_dwordx4 v[248:251], v95, s[48:49]''')
            npre += 1
        if s.htouch:
            if s.htouch == 1:
                a(f'v_min_u32 v238, 6, v0\nv_lshlrev_b32 v238, 12, v238\ns_mov_b32 s55, 0')
            else:
                a(f'v_min_u32 v238, 55, v0\nv_lshlrev_b32 v238, 7, v238\ns_mul_i32 s55, s41, 7168')
            a(f's_mul_i32 s54, s38, 229376\ns_add_u32 s54, s54, s55\ns_mul_i32 s55, s39, 28672\ns_add_u32 s54, s54, s55\ns_add_u32 s54, s54, {HO}\nbuffer_load_dword v239, v238, s[28:31], s54 offen sc1')
            npre += 1
        if s.pf1 == 1: s.touch(16, 240); npre += 2
        if s.pf2 == 1: s.touch(20, 244); npre += 2
        s.w1_load()
        if s.w1e:
            a(f's_mul_i32 s54, s40, 224\ns_mul_i32 s55, s41, {4*32*3584}\ns_add_u32 s54, s54, s55')
            it = s.w1_items()
            for x in it[:s.w1e]: a(x)
            npre += s.w1e
        a(f's_waitcnt vmcnt({6 + npre})')
        s.stamp('x arrived')
        if s.w1e:
            for x in it[s.w1e:]: a(x)
            npre += 28 - s.w1e
        a('v_mov_b32 v95, 0\nbuffer_load_dword v95, v95, s[32:35], 0 offen sc1')
        s.alpha_ln1()
        a(f's_waitcnt vmcnt({3 + npre}) lgkmcnt(0)\ns_barrier')
        s.alpha_core(128, AD0)
        s.fstamp('alpha stores issued', 'alpha')
        a('s_waitcnt vmcnt(0)')
        dn = s.label('ND')
        a(f'''v_readfirstlane_b32 s42, v95
s_cmp_lg_u32 s42, 0
s_cbranch_scc1 {dn}''')
        s.get_nonce()
        a(f'{dn}:')
        a('s_lshl_b32 s54, s2, 6')
        s.signal(0, 54, 0, dual=False, xcc=True, vm=0)
        s.stamp('sig0')
        s.g_make()
        if s.w1e: s.w1_store()
        s.beta_consts(); s.beta_addr(0)
        for layer in range(2):
            arr = 4*layer; s.lay = layer
            if layer == 1:
                a('s_waitcnt lgkmcnt(0)\ns_barrier')
                s.lay = 0; s.fstamp('dtail xtile', 'dtail')
                s.alpha_core(208, AD1)
                s.fstamp('dtail AD issued', 'dtail'); s.lay = 1
                a('s_lshl_b32 s54, s2, 6')
                s.signal(4, 54, 4, dual=False)
                s.stamp('sig4')
                s.lay = 0; s.fstamp('dtail sig4', 'dtail'); s.lay = 1
                s.beta_consts(); s.beta_addr(1)
            if layer == 0: s.barrier0()
            else:
                s.bar_addr(arr, 222)
                a(f's_add_u32 s56, s42, {16*arr}')
                s.poll(222, 223, 56)
            s.stamp('bar done')
            s.beta_main(layer)
            s.grp16_signal(arr + 1)
            if layer == s.finel: s.stamp('beta sig')
            if s.stop == f'beta{layer}': return s.end()
            if layer == 0 and not s.w1e: s.w1_store()
            s.grp16_poll(arr + 1)
            if layer == 0 and not s.w1e: a('s_waitcnt lgkmcnt(0)\ns_barrier')
            s.stamp('beta poll')
            s.gamma()
            s.grp16_signal(arr + 2)
            if layer == s.finel: s.stamp('gamma sig')
            if s.stop == f'gamma{layer}': return s.end()
            if layer == 0: s.w2_transpose(0, 2, LS + 32768)
            s.delta_addr()
            if layer == 0: s.xtile_addr()
            s.grp16_poll(arr + 2)
            s.stamp('gamma poll')
            s.delta(layer)
            if layer == 0:
                s.delta_norm()
                if s.stop == 'delta0': return s.end()
        return s.end()
    def end(s):
        a = s.a
        s.stamp('end')
        if s.stamps: a('s_memtime s[100:101]\ns_waitcnt lgkmcnt(0)')
        s.dump_stamps()
        a('END:\ns_endpgm')
        body, nn = a.finish()
        tab = tables()
        t = '\n'.join('.long ' + ','.join('0x%08x' % x for x in tab[i:i+8]) for i in range(0, len(tab), 8))
        hdr = open('cdna_kernels/' + KN + '.s.ref').read().split('; Override')[0]
        txt = hdr + f'''; Single persistent kernel: LN + FFT-factorised FNet mixing + FFN GEMMs, 256 workgroups (one per CU).
; @launch grid=(256,1,1) block=(256,1,1) lds=163840
.amdgcn_target "amdgcn-amd-amdhsa--gfx950"
.text
.globl {KN}_kernel
.p2align 8
.type {KN}_kernel,@function
{KN}_kernel:
{body}
.p2align 8
.type TABLE,@object
TABLE:
{t}
.size TABLE, {len(tab)*4}
.section .rodata,"a"
.p2align 6
.amdhsa_kernel {KN}_kernel
  .amdhsa_next_free_vgpr 512
  .amdhsa_next_free_sgpr 102
  .amdhsa_accum_offset 256
  .amdhsa_group_segment_fixed_size 0
  .amdhsa_kernarg_size 88
  .amdhsa_user_sgpr_count 2
  .amdhsa_user_sgpr_kernarg_segment_ptr 1
  .amdhsa_system_sgpr_workgroup_id_x 1
  .amdhsa_float_denorm_mode_32 3
.end_amdhsa_kernel
'''
        return txt
if __name__ == '__main__':
    import argparse
    ap = argparse.ArgumentParser(); ap.add_argument('out'); ap.add_argument('--stop'); ap.add_argument('--stamps', action='store_true'); ap.add_argument('--slow', action='store_true'); ap.add_argument('--fine'); ap.add_argument('--pre', action='store_true'); ap.add_argument('--cpf', action='store_true'); ap.add_argument('--nt', action='store_true'); ap.add_argument('--adsc1', action='store_true'); ap.add_argument('--wsoff', type=lambda x: int(x, 0), default=0); ap.add_argument('--gx0', type=int, default=4); ap.add_argument('--gx1', type=int, default=0); ap.add_argument('--w1e', type=int, default=1); ap.add_argument('--t1', type=int, default=0); ap.add_argument('--t2', type=int, default=1); ap.add_argument('--stf', default=''); ap.add_argument('--htouch', type=int, default=0); ap.add_argument('--pf1', type=int, default=0); ap.add_argument('--pf2', type=int, default=0); ap.add_argument('--nw2b', type=int, default=28); ap.add_argument('--every', type=int, default=12)
    o = ap.parse_args()
    g = Gen(o.stop, o.stamps, o.slow, o.fine); g.pretouch = o.pre; g.cpf = o.cpf; g.nt = ' nt' if o.nt else ''; g.adf = ' sc1'; g.t1 = o.t1; g.t2 = o.t2; g.pf1 = o.pf1; g.w1e = o.w1e; g.gx0 = o.gx0; g.gx1 = o.gx1; g.wsoff = o.wsoff; g.stf = (' ' + o.stf.replace('+', ' ')) if o.stf else ''; g.htouch = o.htouch; g.pf2 = o.pf2; g.nw2b = o.nw2b; g.every = o.every
    open(o.out, 'w').write(g.build())
```

```python
import sys, numpy as np
sys.path.insert(0, 'work')
from asmlib import Asm
KN = "interleave_layers__spectral_fnet__dense_activation_relu__prompt"
AD0, AD1, X1O, X2O, XNO, HO, STO, FLO, DBO = 0x0, 0x200000, 0x400000, 0x400000, 0x800000, 0xA00000, 0x1200000, 0x1300000, 0x1380000
WSZ = 0x1400000
LAYOFF = 0
LW1 = 0; LS = 114688
def bf16(x):
    u = np.ascontiguousarray(x, dtype=np.float32).view(np.uint32)
    return ((u + 0x7FFF + ((u >> 16) & 1)) >> 16).astype(np.uint16)
def s1_of_rho(r): return ((r >> 3) >> 2) + 16 * ((r >> 3) & 3) + 2 * (r & 7)
def tables():
    l = np.arange(64); n = l & 15; q = l >> 4; kk = np.arange(8)
    T = []
    for mt in range(4):
        for ks in range(2):
            m = (16 * mt + n)[:, None]; rho = 32 * ks + 8 * q[:, None] + kk[None, :]; s1 = s1_of_rho(rho)
            v = np.where(m <= 32, np.cos(2*np.pi*((m*s1) % 64)/64), -np.sin(2*np.pi*(((m-32)*s1) % 64)/64))
            T.append(bf16(v).reshape(-1).view(np.uint32))
    ri = (q >> 1)[:, None]; d1 = 8 * (q & 1)[:, None] + kk[None, :]; th = 2*np.pi*((d1 * n[:, None]) % 16)/16
    T.append(bf16(np.where(ri == 0, np.cos(th), np.sin(th))).reshape(-1).view(np.uint32))
    T.append(bf16(np.where(ri == 0, -np.sin(th), np.cos(th))).reshape(-1).view(np.uint32))
    d2 = 16 * (kk >> 2)[None, :] + 4 * q[:, None] + (kk & 3)[None, :]
    for T2 in range(2):
        e2 = (16 * T2 + n)[:, None]; ph = 2*np.pi*((d2 * e2) % 32)/32
        T.append(bf16(np.cos(ph)).reshape(-1).view(np.uint32)); T.append(bf16(np.sin(ph)).reshape(-1).view(np.uint32))
    for fn in (np.cos, np.sin):
        for Tt in range(2):
            dd = 16 * Tt + 4 * q[:, None] + np.arange(4)[None, :]
            T.append(fn(2*np.pi*(dd * n[:, None])/512).astype(np.float32).reshape(-1).view(np.uint32))
    return np.concatenate(T)
TF64, TF16, TH32, TTW = 0, 8192, 10240, 14336

class Gen:
    def __init__(s, stop=None, stamps=False, force_slow=False, fine=None):
        s.finel = 0
        if fine and fine[-1] == '1': fine = fine[:-1]; s.finel = 1
        s.fine = fine; s.lay = 0; s.pretouch = False; s.cpf = False; s.nt = ''; s.adf = ' sc1'; s.t1 = 1; s.t2 = 1; s.w1e = 0; s.gx0 = 5; s.gx1 = 1; s.wsoff = 0; s.stf = ''; s.ldf = ' sc1'; s.htouch = 0; s.pf1 = 1; s.pf2 = 1; s.nw2b = 28; s.every = 7; s.dma = 1
        s.a = Asm(); s.stop = stop; s.stamps = stamps; s.nst = 0; s.lab = 0; s.force_slow = force_slow
    def label(s, p='L'):
        s.lab += 1; return f'{p}_{s.lab}'
    def fstamp(s, name, grp):
        if s.fine == grp and s.lay == s.finel: s.stamp(name)
    def stamp(s, name=''):
        if not s.stamps: return
        if s.fine and name not in ('start', 'end') and not name.startswith(s.fine) and name not in ('beta poll', 'gamma poll', 'bar done'): return
        k = 60 + 2 * s.nst; s.nst += 1
        assert k + 1 <= 97
        s.a(f's_memrealtime s[{k}:{k+1}]\ns_waitcnt lgkmcnt(0)')
    def dual(s, fn):
        a = s.a; l1 = s.label('SLOW'); l2 = s.label('JOIN')
        a(f's_cmp_eq_u32 s43, 0\ns_cbranch_scc1 {l1}')
        fn(s.stf); a(f's_branch {l2}\n{l1}:'); fn(' sc1'); a(f'{l2}:')
    def poll(s, vaddr, vtmp, sexp, maskxcc=False):
        a = s.a; lp = s.label('POLL'); dn = s.label('PD')
        a(f's_mov_b32 s58, 0x40000\n{lp}:')
        a(f'buffer_load_dword v{vtmp}, v{vaddr}, s[28:31], 0 offen sc1\ns_waitcnt vmcnt(0)')
        if maskxcc:
            a(f'v_and_b32 v{vtmp+1}, 0xfffffff0, v{vtmp}\nv_cmp_ne_u32 vcc, s{sexp}, v{vtmp+1}')
        else:
            a(f'v_cmp_ne_u32 vcc, s{sexp}, v{vtmp}')
        a(f's_nop 4\ns_cbranch_vccz {dn}\ns_sub_u32 s58, s58, 1\ns_cmp_lg_u32 s58, 0\ns_cbranch_scc1 {lp}\n{dn}:')
    def wave_signal(s, arr, soff):
        a = s.a
        a(f's_add_u32 s57, s42, {16*arr}\nv_mov_b32 v222, s57\nv_mov_b32 v223, s{soff}\ns_waitcnt vmcnt(0)\ns_mov_b64 exec, 1')
        s.dual(lambda f: a(f'buffer_store_dword v222, v223, s[28:31], 0 offen{f}'))
        a('s_mov_b64 exec, -1')
    def signal(s, arr, soff_expr_sgpr, phase, dual=True, xcc=False, vm=0):
        a = s.a; sk = s.label('SIG')
        a(f's_waitcnt vmcnt({vm})\ns_barrier')
        a(f's_cmp_lg_u32 s41, 0\ns_cbranch_scc1 {sk}')
        a(f's_add_u32 s57, s42, {16*phase}')
        if xcc: a('s_add_u32 s57, s57, s59')
        a(f'v_mov_b32 v5, s57\nv_mov_b32 v6, {FLO + arr*0x8000}\nv_add_u32 v6, s{soff_expr_sgpr}, v6')
        a('s_mov_b64 exec, 1')
        if dual: s.dual(lambda f: a(f'buffer_store_dword v5, v6, s[28:31], 0 offen{f}'))
        else: a('buffer_store_dword v5, v6, s[28:31], 0 offen sc1')
        a(f's_mov_b64 exec, -1\n{sk}:')

    def prologue(s):
        a = s.a
        a(f'''
s_cmp_ge_u32 s2, 256
s_cbranch_scc1 END
s_load_dwordx4 s[4:7], s[0:1], 0
s_load_dwordx2 s[12:13], s[0:1], 16
s_load_dwordx4 s[16:19], s[0:1], 48
s_load_dwordx4 s[24:27], s[0:1], 64
s_load_dwordx2 s[28:29], s[0:1], 80
s_getreg_b32 s59, hwreg(HW_REG_XCC_ID, 0, 4)
s_getpc_b64 s[44:45]
PCL:
s_add_u32 s44, s44, TABLE-PCL
s_addc_u32 s45, s45, 0
v_lshrrev_b32 v5, 6, v0
v_and_b32 v0, 63, v0
s_and_b32 s36, s2, 7
s_lshr_b32 s37, s2, 3
v_readfirstlane_b32 s41, v5
s_lshr_b32 s47, s37, 4
s_lshl_b32 s46, s36, 1
s_add_u32 s46, s46, s47
s_sub_u32 s48, 32, s46
s_cmp_eq_u32 s46, 0
s_cselect_b32 s48, 16, s48
s_bitcmp1_b32 s37, 3
s_cselect_b32 s38, s48, s46
s_and_b32 s39, s37, 7
s_and_b32 s40, s37, 15
s_bitcmp1_b32 s41, 1
s_cselect_b32 s46, s48, s46
v_and_b32 v1, 15, v0
v_lshrrev_b32 v2, 4, v0
v_bfe_u32 v3, v0, 2, 2
v_and_b32 v4, 3, v0
s_waitcnt lgkmcnt(0)
s_mov_b32 s8, s6
s_mov_b32 s9, s7
s_mov_b32 s32, s26
s_mov_b32 s33, s27
s_mov_b32 s20, s18
s_mov_b32 s21, s19
s_mov_b32 s6, 0x200000
s_mov_b32 s7, 0x20000
s_mov_b32 s10, 0x800000
s_mov_b32 s11, 0x20000
s_mov_b32 s14, 0x800000
s_mov_b32 s15, 0x20000
s_mov_b32 s18, 1835008
s_mov_b32 s19, 0x20000
s_mov_b32 s22, 1835008
s_mov_b32 s23, 0x20000
s_mov_b32 s26, 0x200000
s_mov_b32 s27, 0x20000
s_mov_b32 s30, {WSZ}
s_mov_b32 s31, 0x20000
s_mov_b32 s34, 256
s_mov_b32 s35, 0x20000
s_mov_b32 s43, 0
s_add_u32 s28, s28, {s.wsoff}
s_addc_u32 s29, s29, 0
''')
        s.stamp('start')
        if s.stamps: a('s_memtime s[98:99]\ns_waitcnt lgkmcnt(0)')
        sk = s.label('NON')
        a(f'''
s_cmp_lg_u32 s2, 0
s_cbranch_scc1 {sk}
s_cmp_lg_u32 s41, 0
s_cbranch_scc1 {sk}
s_memrealtime s[56:57]
s_waitcnt lgkmcnt(0)
s_lshl_b32 s56, s56, 8
s_or_b32 s56, s56, 0x80000000
v_mov_b32 v5, s56
v_mov_b32 v6, 0
s_mov_b64 exec, 1
buffer_store_dword v5, v6, s[32:35], 0 offen sc1
s_mov_b64 exec, -1
{sk}:''')
    def alpha_consts(s, base, t=5):
        a = s.a
        a(f's_lshr_b32 s47, s41, 1\ns_lshl_b32 s47, s47, 12\nv_lshlrev_b32 v{t}, 4, v0\nv_add_u32 v{t}, s47, v{t}')
        for k in range(4): a(f'global_load_dwordx4 v[{base+4*k}:{base+4*k+3}], v{t}, s[44:45] offset:{1024*k}')
    def alpha_in1(s):
        a = s.a
        a(f'''
v_lshrrev_b32 v6, 2, v0
v_bfe_u32 v7, v6, 3, 1
s_lshl_b32 s47, s41, 1
v_add_u32 v7, s47, v7
v_lshrrev_b32 v8, 2, v7
v_and_b32 v7, 3, v7
v_lshl_add_u32 v8, v7, 4, v8
v_and_b32 v7, 7, v6
v_lshl_add_u32 v8, v7, 1, v8
v_lshlrev_b32 v8, 5, v8
v_add_u32 v8, s38, v8
v_lshlrev_b32 v8, 10, v8
v_lshl_add_u32 v8, v4, 4, v8
s_lshl_b32 s47, s39, 7''')
        for i in range(16):
            a(f'buffer_load_dwordx4 v[{16+4*i}:{19+4*i}], v8, s[4:7], s47 offen')
            if i < 15: a('s_add_u32 s47, s47, 64\ns_and_b32 s47, s47, 1023')
    def alpha_ln1(s):
        a = s.a
        a('s_mov_b32 s47, 0x3f803f80\nv_mov_b32 v9, 0\nv_mov_b32 v10, 0\nv_mov_b32 v11, 0\nv_mov_b32 v12, 0')
        for i in range(0, 64, 2):
            a(f'v_dot2_f32_bf16 v9, v{16+i}, s47, v9\nv_dot2_f32_bf16 v10, v{16+i}, v{16+i}, v10')
            a(f'v_dot2_f32_bf16 v11, v{17+i}, s47, v11\nv_dot2_f32_bf16 v12, v{17+i}, v{17+i}, v12')
        a('''v_add_f32 v9, v9, v11
v_add_f32 v10, v10, v12
v_add_f32_dpp v9, v9, v9 quad_perm:[1,0,3,2] row_mask:0xf bank_mask:0xf
v_add_f32_dpp v10, v10, v10 quad_perm:[1,0,3,2] row_mask:0xf bank_mask:0xf
v_add_f32_dpp v9, v9, v9 quad_perm:[2,3,0,1] row_mask:0xf bank_mask:0xf
v_add_f32_dpp v10, v10, v10 quad_perm:[2,3,0,1] row_mask:0xf bank_mask:0xf''')
        s.finish_stats(9, 10)
        for i in range(8):
            r = 16 + i
            a(f'''v_lshlrev_b32 v11, 16, v{r}
v_and_b32 v12, 0xffff0000, v{r}
v_fma_f32 v11, v11, v9, v10
v_fma_f32 v12, v12, v9, v10
v_cvt_pk_bf16_f32 v{r}, v11, v12''')
        a(f'''
v_lshrrev_b32 v6, 2, v0
s_mul_i32 s47, s41, 12288
s_add_u32 s47, s47, {LS}
v_bfe_u32 v11, v6, 1, 1
v_bfe_u32 v12, v6, 3, 1
v_lshl_or_b32 v11, v12, 1, v11
v_lshlrev_b32 v11, 5, v11
v_lshl_add_u32 v11, v4, 3, v11
v_lshl_add_u32 v11, v6, 7, v11
v_add_u32 v11, s47, v11
v_xor_b32 v12, 32, v11
v_xor_b32 v13, 64, v11
v_xor_b32 v14, 96, v11
ds_write_b64 v11, v[16:17]
ds_write_b64 v12, v[18:19]
ds_write_b64 v13, v[20:21]
ds_write_b64 v14, v[22:23]''')
    def finish_stats(s, vs, vq):
        s.a(f'''
v_mul_f32 v{vs}, 0x3b000000, v{vs}
v_mul_f32 v{vq}, 0x3b000000, v{vq}
v_fma_f32 v{vq}, -v{vs}, v{vs}, v{vq}
v_max_f32 v{vq}, 0, v{vq}
v_add_f32 v{vq}, 0x3727c5ac, v{vq}
v_rsq_f32 v{vq}, v{vq}
s_nop 0
v_mul_f32 v{vs}, v{vs}, v{vq}
v_sub_f32 v{vs}, 0, v{vs}
v_swap_b32 v{vs}, v{vq}''')
    def alpha_core(s, cb, adoff):
        a = s.a
        a(f'''
s_and_b32 s47, s41, 1
s_lshl_b32 s47, s47, 1
v_lshrrev_b32 v6, 1, v3
v_and_b32 v7, 1, v2
v_lshl_or_b32 v6, v7, 1, v6
v_xor_b32 v6, s47, v6
v_lshlrev_b32 v6, 5, v6
v_lshl_add_u32 v6, v4, 3, v6
v_and_b32 v7, 1, v2
v_lshl_add_u32 v7, v7, 3, v3
v_lshl_add_u32 v6, v7, 7, v6
v_lshrrev_b32 v7, 1, v2
v_mul_u32_u24 v7, 12288, v7
v_add_u32 v6, v7, v6
v_add_u32 v6, {LS}, v6
v_xor_b32 v7, 32, v6''')
        A = 96
        for dt in range(2):
            for ks in range(2):
                for h in range(2):
                    r = A + 8*dt + 4*ks + 2*h
                    a(f'ds_read_b64_tr_b16 v[{r}:{r+1}], v{6+dt} offset:{24576*ks+512*h}')
        a(f'''
s_lshr_b32 s47, s41, 1
s_lshl_b32 s47, s47, 20
s_lshl_b32 s48, s38, 10
s_add_u32 s47, s47, s48
s_lshl_b32 s48, s39, 7
s_add_u32 s47, s47, s48
s_and_b32 s48, s41, 1
s_lshl_b32 s48, s48, 6
s_add_u32 s47, s47, s48
s_add_u32 s47, s47, {adoff}
v_lshlrev_b32 v8, 15, v1
v_lshl_add_u32 v8, v2, 4, v8
s_add_u32 s48, s47, 0x80000
s_waitcnt lgkmcnt(0)''')
        C = 112
        for mt in range(2):
            for dt in range(2):
                c = C + 8*mt + 4*dt
                for ks in range(2):
                    src = '0' if ks == 0 else f'v[{c}:{c+3}]'
                    a(f'v_mfma_f32_16x16x32_bf16 v[{c}:{c+3}], v[{A+8*dt+4*ks}:{A+8*dt+4*ks+3}], v[{cb+8*mt+4*ks}:{cb+8*mt+4*ks+3}], {src}')
        for mt in range(2):
            c = C + 8*mt
            for k in range(4): a(f'v_cvt_pk_bf16_f32 v{c+k}, v{c+2*k}, v{c+2*k+1}')
            a(f'buffer_store_dwordx4 v[{c}:{c+3}], v8, s[28:31], s{47+mt} offen sc1')
    def get_nonce(s):
        a = s.a; lp = s.label('NP'); dn = s.label('ND')
        a(f'''s_mov_b32 s58, 0x40000
v_mov_b32 v5, 0
{lp}:
buffer_load_dword v6, v5, s[32:35], 0 offen sc1
s_waitcnt vmcnt(0)
v_readfirstlane_b32 s42, v6
s_cmp_lg_u32 s42, 0
s_cbranch_scc1 {dn}
s_sub_u32 s58, s58, 1
s_cmp_lg_u32 s58, 0
s_cbranch_scc1 {lp}
{dn}:''')
    def g_load(s):
        a = s.a
        a('''
s_lshr_b32 s47, s39, 2
s_and_b32 s48, s39, 3
s_lshl_b32 s48, s48, 4
s_add_u32 s47, s47, s48
s_lshl_b32 s47, s47, 5
s_add_u32 s47, s47, s38
s_lshl_b32 s47, s47, 12
v_lshrrev_b32 v5, 1, v1
v_lshlrev_b32 v5, 18, v5
v_lshl_add_u32 v5, v2, 4, v5
buffer_load_dwordx4 v[80:83], v5, s[8:11], s47 offen
buffer_load_dwordx4 v[84:87], v5, s[12:15], s47 offen''')
    def g_make(s):
        a = s.a
        a('''
s_cmp_eq_u32 s38, 0
s_cselect_b32 s50, 0, -1
s_cmp_ge_u32 s39, 4
s_cselect_b32 s51, 0x80008000, 0
s_xor_b32 s52, s51, 0x80008000
v_and_b32 v5, 1, v1
v_cmp_eq_u32 vcc, 1, v5''')
        for k in range(4):
            a(f'''v_cndmask_b32 v6, v{80+k}, v{84+k}, vcc
v_xor_b32 v7, s52, v{84+k}
v_xor_b32 v8, s51, v{80+k}
v_cndmask_b32 v7, v7, v8, vcc
v_and_b32 v7, s50, v7
v_accvgpr_write_b32 a{224+k}, v6
v_accvgpr_write_b32 a{228+k}, v7''')
    def w1_load(s):
        a = s.a
        for k in range(7):
            a(f'''v_lshlrev_b32 v5, 4, v0
v_add_u32 v5, {1024*k}, v5
v_mul_u32_u24 v6, 0x4925, v5
v_lshrrev_b32 v6, 22, v6
v_mul_u32_u24 v7, 224, v6
v_sub_u32 v5, v5, v7
v_mul_u32_u24 v6, 3584, v6
v_add_u32 v{88+k}, v5, v6''')
    def w1_issue(s):
        a = s.a
        a(f'''s_mul_i32 s54, s40, 224
s_mul_i32 s55, s41, {4*32*3584}
s_add_u32 s54, s54, s55''')
        for blk in range(4):
            for k in range(7):
                r = 112 + 28*blk + 4*k
                a(f'buffer_load_dwordx4 a[{r}:{r+3}], v{88+k}, s[16:19], s54 offen{s.nt}')
            if blk < 3: a(f's_add_u32 s54, s54, {32*3584}')
    def w1_transpose(s):
        a = s.a
        a(f'''s_mul_i32 s47, s41, {4*7168}
s_add_u32 s47, s47, {LW1}
v_lshlrev_b32 v86, 4, v0
v_add_u32 v86, s47, v86
v_lshl_add_u32 v87, v2, 2, v3
v_mul_u32_u24 v87, 224, v87
v_lshl_add_u32 v87, v4, 3, v87
v_add_u32 v87, s47, v87''')
        for blk in range(4):
            for k in range(7):
                r = 112 + 28*blk + 4*k
                a(f'ds_write_b128 v86, a[{r}:{r+3}] offset:{7168*blk + 1024*k}')
            for ft in range(7):
                for h in range(2):
                    r = 112 + 28*blk + 4*ft + 2*h
                    a(f'ds_read_b64_tr_b16 a[{r}:{r+1}], v87 offset:{7168*blk + 32*ft + 3584*h}')
        for blk in range(4):
            a(f's_waitcnt lgkmcnt({0 if blk == 3 else 0})') if blk == 0 else None
            for k in range(7):
                r = 112 + 28*blk + 4*k
                a(f'ds_write_b128 v86, a[{r}:{r+3}] offset:{7168*blk + 1024*k}')
    def touch(s, srd, vd):
        s.a(f'''s_mul_i32 s54, s37, 57344
s_lshl_b32 s55, s41, 14
s_add_u32 s54, s54, s55
v_lshlrev_b32 v{vd}, 7, v0
buffer_load_dword v{vd+1}, v{vd}, s[{srd}:{srd+3}], s54 offen''')
        sk = s.label('TCH')
        s.a(f'''s_cmp_eq_u32 s41, 3
s_cselect_b32 s55, 0, 8192
s_add_u32 s54, s54, s55
buffer_load_dword v{vd+2}, v{vd}, s[{srd}:{srd+3}], s54 offen''')
    def h_touch(s, s0, s1, v0, v1):
        s.a(f'''v_min_u32 v{v0}, 55, v0
v_lshlrev_b32 v{v0}, 7, v{v0}
s_mul_i32 s{s0}, s38, 229376
s_mul_i32 s{s1}, s41, 7168
s_add_u32 s{s0}, s{s0}, s{s1}
s_mul_i32 s{s1}, s39, 28672
s_add_u32 s{s0}, s{s0}, s{s1}
s_add_u32 s{s0}, s{s0}, {HO}
buffer_load_dword v{v1}, v{v0}, s[28:31], s{s0} offen sc1''')
    def w1_items(s):
        it = []
        for blk in range(4):
            for k in range(7):
                r = 112 + 28*blk + 4*k
                it.append(f'buffer_load_dwordx4 a[{r}:{r+3}], v{88+k}, s[16:19], s54 offen' + (f'\nv_add_u32 v{88+k}, {32*3584}, v{88+k}' if blk < 3 else ''))
        return it
    def w1_store(s):
        a = s.a
        a(f'''s_mul_i32 s47, s41, {4*7168}
s_add_u32 s47, s47, {LW1}
v_lshlrev_b32 v5, 4, v0
v_add_u32 v5, s47, v5''')
        for blk in range(4):
            for k in range(7):
                r = 112 + 28*blk + 4*k
                a(f'ds_write_b128 v5, a[{r}:{r+3}] offset:{7168*blk + 1024*k}')
    def w2_setup(s, i0, vt, st):
        s.a(f'''v_lshrrev_b32 v{vt}, 3, v0
v_lshlrev_b32 v{vt}, 10, v{vt}
v_and_b32 v{vt+1}, 7, v0
v_lshl_add_u32 v{vt}, v{vt+1}, 4, v{vt}
s_mul_i32 s{st}, s41, {448*1024}
s_lshl_b32 s49, s39, 7
s_add_u32 s{st}, s{st}, s49
s_add_u32 s{st}, s{st}, {8192*i0}''')
    def w2_issue(s, i0, i1, vt, st):
        for i in range(i0, i1):
            s.a(f'buffer_load_dwordx4 a[{4*i}:{4*i+3}], v{vt}, s[20:23], s{st} offen{s.nt}\ns_add_u32 s{st}, s{st}, 8192')
    def w2t_ops(s, ks):
        ops = [f'ds_write_b128 v230, a[{16*ks+4*k}:{16*ks+4*k+3}] offset:{1024*k}' for k in range(4)]
        for nt in range(4):
            for h in range(2):
                r = 16*ks + 4*nt + 2*h
                ops.append(f'ds_read_b64_tr_b16 a[{r}:{r+1}], v{231+nt} offset:{2048*h}')
        return ops
    def w2_transpose(s, ks0, ks1, lbase):
        a = s.a
        a(f'''
s_lshl_b32 s47, s41, 12
s_add_u32 s47, s47, {lbase}
v_bfe_u32 v230, v0, 1, 2
v_bfe_u32 v231, v0, 4, 2
v_xor_b32 v230, v230, v231
v_lshlrev_b32 v230, 5, v230
v_and_b32 v231, 1, v0
v_lshl_add_u32 v230, v231, 4, v230
v_lshrrev_b32 v231, 3, v0
v_lshl_add_u32 v230, v231, 7, v230
v_add_u32 v230, s47, v230
v_and_b32 v231, 1, v2
v_lshrrev_b32 v232, 1, v3
v_lshl_or_b32 v231, v231, 1, v232
v_lshlrev_b32 v231, 5, v231
v_lshl_add_u32 v231, v4, 3, v231
v_lshl_add_u32 v232, v2, 2, v3
v_lshl_add_u32 v231, v232, 7, v231
v_add_u32 v231, s47, v231
v_xor_b32 v232, 32, v231
v_xor_b32 v233, 64, v231
v_xor_b32 v234, 96, v231''')
        for ks in range(ks0, ks1):
            for op in s.w2t_ops(ks): a(op)
    def beta_consts(s):
        a = s.a
        a(f'v_lshlrev_b32 v5, 4, v0\nv_add_u32 v5, {TF16}, v5\nv_add_u32 v6, 4096, v5')
        for k in range(10):
            r = 8 + 4*k
            if k < 4: a(f'global_load_dwordx4 v[{r}:{r+3}], v5, s[44:45] offset:{1024*k}')
            elif k < 8: a(f'global_load_dwordx4 v[{r}:{r+3}], v6, s[44:45] offset:{1024*(k-4)}')
        a('v_add_u32 v6, 4096, v6')
        for k in (8, 9):
            r = 8 + 4*k
            a(f'global_load_dwordx4 v[{r}:{r+3}], v6, s[44:45] offset:{1024*(k-8)}')
    def beta_addr(s, layer):
        a = s.a
        a(f'''
s_lshl_b32 s47, s41, 8
v_lshlrev_b32 v48, 10, v2
v_lshl_add_u32 v48, v1, 4, v48
v_add_u32 v48, s47, v48
s_lshl_b32 s47, s41, 13
s_add_u32 s47, s47, {LS}
v_lshrrev_b32 v49, 1, v1
v_xor_b32 v49, v49, v2
v_lshlrev_b32 v49, 5, v49
v_and_b32 v50, 1, v1
v_lshl_add_u32 v49, v50, 4, v49
v_lshl_add_u32 v49, v2, 8, v49
v_add_u32 v49, s47, v49
v_xor_b32 v50, 128, v49
v_lshrrev_b32 v96, 1, v1
v_xor_b32 v96, v96, v2
v_lshlrev_b32 v96, 5, v96
v_and_b32 v97, 1, v1
v_lshl_add_u32 v96, v97, 4, v96
v_lshl_add_u32 v96, v2, 10, v96
s_lshl_b32 s48, s41, 8
v_add_u32 v96, s48, v96
v_xor_b32 v97, 128, v96
s_lshl_b32 s48, s41, 12
s_sub_u32 s48, 32768, s48
v_mov_b32 v98, s48
v_cmp_gt_u32 vcc, 2, v2
v_cndmask_b32 v98, 0, v98, vcc
v_and_b32 v51, 1, v2
v_lshl_or_b32 v51, v51, 2, v3
v_lshlrev_b32 v51, 5, v51
v_lshl_add_u32 v51, v4, 3, v51
v_lshl_add_u32 v52, v2, 3, v3
v_lshl_add_u32 v51, v52, 8, v51
v_add_u32 v51, s47, v51''')
        for dt in range(1, 8): a(f'v_xor_b32 v{51+dt}, {32*dt}, v51')
        UB = LS + 32768
        a(f'''
s_lshl_b32 s47, s41, 12
s_lshr_b32 s48, s41, 1
s_lshl_b32 s48, s48, 5
s_add_u32 s47, s47, s48
v_lshlrev_b32 v59, 3, v2
v_add_u32 v59, s47, v59
v_lshlrev_b32 v60, 3, v1
v_xor_b32 v59, v59, v60
v_lshl_add_u32 v59, v1, 8, v59
v_add_u32 v59, {UB}, v59
v_xor_b32 v60, 32, v59
v_xor_b32 v61, 64, v59
v_xor_b32 v62, 96, v59''')
        a(f'''
s_lshl_b32 s47, s41, 2
v_lshrrev_b32 v63, 1, v2
v_add_u32 v63, s47, v63
v_and_b32 v64, 1, v2
v_mul_u32_u24 v64, 8224, v64
v_lshl_add_u32 v64, v3, 6, v64
v_lshl_add_u32 v64, v4, 3, v64
v_lshlrev_b32 v65, 3, v63
v_xor_b32 v64, v64, v65
v_lshl_add_u32 v63, v63, 8, v64
v_add_u32 v63, {UB}, v63
v_xor_b32 v64, 32, v63
v_xor_b32 v65, 16, v63
v_add_u32 v65, 512, v65
v_xor_b32 v66, 32, v65''')
        a(f'''
v_lshlrev_b32 v67, 5, v1
v_lshl_add_u32 v67, v2, 3, v67
s_lshl_b32 s47, s38, 16
s_lshl_b32 s48, s39, 13
s_add_u32 s47, s47, s48
s_lshl_b32 s48, s41, 11
s_add_u32 s47, s47, s48
v_add_u32 v68, s47, v67''')
        if layer == 0:
            a('''
s_lshr_b32 s47, s39, 2
s_and_b32 s48, s39, 3
s_lshl_b32 s48, s48, 4
s_add_u32 s47, s47, s48
s_lshl_b32 s48, s41, 2
s_add_u32 s47, s47, s48
s_lshl_b32 s47, s47, 5
s_add_u32 s47, s47, s38
s_lshl_b32 s47, s47, 10
v_add_u32 v69, s47, v67
v_add_u32 v70, 0x10000, v69''')
        XI = LS + 8448
        a(f'''
s_lshl_b32 s47, s41, 1
v_lshrrev_b32 v71, 1, v1
v_xor_b32 v72, s47, v71
v_lshlrev_b32 v72, 4, v72
v_lshl_add_u32 v72, v71, 9, v72
v_lshl_add_u32 v72, v2, 7, v72
v_and_b32 v71, 1, v1
v_lshl_add_u32 v71, v71, 3, v72
v_add_u32 v71, {XI}, v71
v_xor_b32 v72, 16, v71''')
        a(f'''
s_lshl_b32 s47, s41, 2
v_lshrrev_b32 v73, 5, v0
v_add_u32 v73, s47, v73
v_and_b32 v74, 7, v0
v_xor_b32 v75, v74, v73
v_and_b32 v75, 7, v75
v_lshlrev_b32 v75, 4, v75
v_lshl_add_u32 v75, v73, 9, v75
v_bfe_u32 v84, v0, 3, 2
v_lshl_add_u32 v75, v84, 7, v75
v_lshlrev_b32 v73, 10, v73
v_lshl_add_u32 v73, v84, 8, v73
v_lshl_add_u32 v73, v74, 4, v73
s_lshl_b32 s47, s38, 16
s_lshr_b32 s48, s39, 1
s_lshl_b32 s48, s48, 14
s_add_u32 s47, s47, s48
s_and_b32 s48, s39, 1
s_lshl_b32 s48, s48, 7
s_add_u32 s47, s47, s48
v_add_u32 v74, s47, v73
v_add_u32 v73, {XI}, v75
v_xor_b32 v85, 32, v73''')
    def beta_resid(s, layer):
        a = s.a
        for rr in range(2):
            for T2 in range(2):
                r = 76 + 4*rr + 2*T2
                if layer == 0: a(f'buffer_load_dwordx2 v[{r}:{r+1}], v{69+rr}, s[4:7], 0 offen offset:{512*T2}')
                else: a(f'buffer_load_dwordx2 v[{r}:{r+1}], v68, s[28:31], s49 offen offset:{1024*rr+512*T2}{s.ldf}')
    def beta_main(s, layer):
        a = s.a
        ad = AD0 if layer == 0 else AD1
        a(f'''
s_sub_u32 s47, 32, s38
s_cmp_lt_u32 s39, 4
s_cselect_b32 s47, s38, s47
s_add_u32 s48, s47, 32
s_cmp_eq_u32 s38, 0
s_cselect_b32 s48, 0, s48
s_lshl_b32 s47, s47, 15
s_lshl_b32 s48, s48, 15
s_add_u32 s47, s47, {ad}
s_add_u32 s48, s48, {ad}
s_mov_b32 s49, {X2O}''')
        D = 96
        a(f's_lshl_b32 s50, s41, 13\ns_add_u32 s50, s50, {LS}\ns_lshl_b32 s51, s41, 12\ns_add_u32 s51, s51, {LS + 32768}')
        for p in range(2):
            order = list(range(8)) if p == 0 else [4, 5, 6, 7, 0, 1, 2, 3]
            for k, i in enumerate(order):
                r = D + 32*p + 4*i
                dma = p == 0 or i < 4
                if dma: a(f's_add_u32 m0, s{50+p}, {1024*i}')
                step = 4096*(i - (order[k-1] if k else 0))
                if step > 0: a(f's_add_u32 s{47+p}, s{47+p}, {step}')
                elif step < 0: a(f's_sub_u32 s{47+p}, s{47+p}, {-step}')
                if dma: a(f'buffer_load_dwordx4 v{96 + ((i>>1)&1)}, s[28:31], s{47+p} offen{s.adf} lds')
                else: a(f'buffer_load_dwordx4 v[{r}:{r+3}], v48, s[28:31], s{47+p} offen{s.adf}')
        nw = 0; nr = 0; spr = []
        if layer == 0:
            s.beta_resid(layer); nr = 4
            if s.pf2 == 2: s.touch(20, 246); nw += 2
            if s.t2 == 2:
                s.h_touch(48, 49, 246, 247); nw += 1
            if s.t1:
                a(f'''s_lshr_b32 s47, s39, 1
s_lshl_b32 s47, s47, 14
s_and_b32 s48, s39, 1
s_lshl_b32 s48, s48, 7
s_add_u32 s47, s47, s48
s_lshl_b32 s48, s41, 12
s_add_u32 s47, s47, s48
s_add_u32 s47, s47, {XNO}
s_lshl_b32 s48, s39, 13
s_lshl_b32 s49, s41, 11
s_add_u32 s48, s48, s49
s_add_u32 s48, s48, {X1O}
v_lshlrev_b32 v246, 8, v1
v_add_u32 v246, s47, v246
v_lshlrev_b32 v247, 7, v1
v_add_u32 v247, s48, v247
v_and_b32 v248, 1, v2
v_cmp_eq_u32 vcc, 1, v248
v_cndmask_b32 v246, v246, v247, vcc
s_lshl_b32 s47, s38, 16
buffer_load_dword v249, v246, s[28:31], s47 offen sc1''')
                nw += 1
            a(f's_mul_i32 s54, s40, 224\ns_mul_i32 s55, s41, {4*32*3584}\ns_add_u32 s54, s54, s55')
            s.w2_setup(0, 86, 55)
            if not s.w1e: spr.extend(s.w1_items())
            for i in range(s.nw2b):
                spr.append(f'buffer_load_dwordx4 a[{4*i}:{4*i+3}], v86, s[20:23], s55 offen\nv_add_u32 v86, 8192, v86')
        T = 160
        C = 192
        for p in range(2):
            a(f's_waitcnt vmcnt({(8 if p == 0 else 4) + nr + nw + a.nspr * (p == 1 and layer == 0)})')
            if p == 0 and spr: a.sprinkle(spr, s.every)
            if p == 0: s.fstamp('beta AD0 arrived', 'beta')
            for i in range(8):
                r = D + 32*p + 4*i
                if p == 0 or i < 4: continue
                a(f'ds_write_b128 v{49 + ((i>>1)&1)}, v[{r}:{r+3}] offset:{1024*i}')
            if p == 1:
                for dt in range(8): a(f'v_add_u32 v{51+dt}, v98, v{51+dt}')
                a(f's_waitcnt vmcnt({nr + nw + a.nspr * (layer == 0)})')
            for dt in range(8):
                for h in range(2):
                    r = T + 4*dt + 2*h
                    a(f'ds_read_b64_tr_b16 v[{r}:{r+1}], v{51+dt} offset:{1024*h}')
            for dt in range(8):
                a(f's_waitcnt lgkmcnt({14-2*dt})')
                src = '0' if p == 0 else f'v[{C+4*dt}:{C+4*dt+3}]'
                a(f'v_mfma_f32_16x16x32_bf16 v[{C+4*dt}:{C+4*dt+3}], v[{T+4*dt}:{T+4*dt+3}], a[{224+4*p}:{227+4*p}], {src}')
        for dt in range(8):
            c = C + 4*dt
            a(f'v_cvt_pk_bf16_f32 v{c}, v{c}, v{c+1}\nv_cvt_pk_bf16_f32 v{c+1}, v{c+2}, v{c+3}')
            a(f'ds_write_b64 v{59+(dt&3)}, v[{c}:{c+1}] offset:{128*(dt>>2)}')
        if layer == 0:
            a(f's_lshl_b32 s47, s41, 13\ns_add_u32 s47, s47, {LS}\ns_lshr_b32 s48, s41, 1\ns_mul_i32 s48, s48, 8188\ns_add_u32 s47, s47, s48\nv_mov_b32 v96, s47\nv_mov_b32 v97, s53\nds_write_b32 v96, v97')
        a('s_waitcnt lgkmcnt(0)\ns_barrier')
        if layer == 0:
            a(f'v_lshlrev_b32 v96, 13, v4\nv_lshrrev_b32 v97, 1, v4\nv_mul_u32_u24 v97, 8188, v97\nv_add_u32 v96, v96, v97\nv_add_u32 v96, {LS}, v96\nds_read_b32 v97, v96\ns_waitcnt lgkmcnt(0)\nv_cmp_ne_u32 vcc, 0, v97\ns_nop 4\ns_cmp_eq_u64 vcc, 0\ns_cselect_b32 s43, 1, 0')
            if s.force_slow: a('s_mov_b32 s43, 0')
        if layer == 1: s.beta_resid(layer)
        s.fstamp('beta U done', 'beta')
        for rr in range(2):
            for Tt in range(2):
                for h in range(2):
                    r = D + 8*rr + 4*Tt + 2*h
                    a(f'ds_read_b64_tr_b16 v[{r}:{r+1}], v{63+2*rr+Tt} offset:{4096*h}')
        P = 112
        for rr in range(2):
            a(f's_waitcnt lgkmcnt({4 if rr == 0 else 0})')
            for Tt in range(2):
                for ci in range(2):
                    p = P + 16*rr + 8*Tt + 4*ci
                    a(f'v_mfma_f32_16x16x32_bf16 v[{p}:{p+3}], v[{D+8*rr+4*Tt}:{D+8*rr+4*Tt+3}], v[{8+4*ci}:{11+4*ci}], 0')
        Q = 144
        for rr in range(2):
            for Tt in range(2):
                pr = P + 16*rr + 8*Tt; pi = pr + 4
                for jj in range(0, 4, 2):
                    tc = 32 + 4*Tt + jj; ts = 40 + 4*Tt + jj; t0 = 160 + 8*Tt + jj; t1 = t0 + 4
                    a(f'''v_pk_mul_f32 v[{t0}:{t0+1}], v[{pr+jj}:{pr+jj+1}], v[{tc}:{tc+1}]
v_pk_mul_f32 v[{t1}:{t1+1}], v[{pi+jj}:{pi+jj+1}], v[{tc}:{tc+1}]
v_pk_fma_f32 v[{t0}:{t0+1}], v[{pi+jj}:{pi+jj+1}], v[{ts}:{ts+1}], v[{t0}:{t0+1}]
v_pk_fma_f32 v[{t1}:{t1+1}], v[{pr+jj}:{pr+jj+1}], v[{ts}:{ts+1}], v[{t1}:{t1+1}] neg_lo:[1,0,0] neg_hi:[1,0,0]''')
                t0 = 160 + 8*Tt
                a(f'''v_cvt_pk_bf16_f32 v{Q+8*rr+2*Tt}, v{t0}, v{t0+1}
v_cvt_pk_bf16_f32 v{Q+8*rr+2*Tt+1}, v{t0+2}, v{t0+3}
v_cvt_pk_bf16_f32 v{Q+8*rr+4+2*Tt}, v{t0+4}, v{t0+5}
v_cvt_pk_bf16_f32 v{Q+8*rr+4+2*Tt+1}, v{t0+6}, v{t0+7}''')
        s.fstamp('beta twiddle done', 'beta')
        Y = 176
        for rr in range(2):
            for T2 in range(2):
                y = Y + 8*rr + 4*T2
                a(f'v_mfma_f32_16x16x32_bf16 v[{y}:{y+3}], v[{Q+8*rr}:{Q+8*rr+3}], v[{16+8*T2}:{19+8*T2}], 0')
            for T2 in range(2):
                y = Y + 8*rr + 4*T2
                a(f'v_mfma_f32_16x16x32_bf16 v[{y}:{y+3}], v[{Q+8*rr+4}:{Q+8*rr+7}], v[{20+8*T2}:{23+8*T2}], v[{y}:{y+3}]')
        a(f's_waitcnt vmcnt({min(63, nw + (a.nspr if layer == 0 else 0))})')
        for rr in range(2):
            for T2 in range(2):
                y = Y + 8*rr + 4*T2; x = 76 + 4*rr + 2*T2
                for k in range(2):
                    a(f'''v_lshlrev_b32 v96, 16, v{x+k}
v_and_b32 v97, 0xffff0000, v{x+k}
v_add_f32 v{y+2*k}, v{y+2*k}, v96
v_add_f32 v{y+2*k+1}, v{y+2*k+1}, v97''')
            y = Y + 8*rr; S_, Q_ = 100 + 2*rr, 101 + 2*rr
            a(f'v_add_f32 v{S_}, v{y}, v{y+1}\nv_mul_f32 v{Q_}, v{y}, v{y}\nv_fma_f32 v{Q_}, v{y+1}, v{y+1}, v{Q_}')
            for k in range(2, 8): a(f'v_add_f32 v{S_}, v{S_}, v{y+k}\nv_fma_f32 v{Q_}, v{y+k}, v{y+k}, v{Q_}')
        s.wave_reduce([100, 101, 102, 103], 104, rows=True)
        for rr in range(2):
            s.finish_stats(100 + 2*rr, 101 + 2*rr)
        for rr in range(2):
            y = Y + 8*rr
            for k in range(4): a(f'v_cvt_pk_bf16_f32 v{208+4*rr+k}, v{y+2*k}, v{y+2*k+1}')
            for k in range(8): a(f'v_fma_f32 v{y+k}, v{y+k}, v{100+2*rr}, v{101+2*rr}')
            for k in range(4): a(f'v_cvt_pk_bf16_f32 v{216+4*rr+k}, v{y+2*k}, v{y+2*k+1}')
        a.flush()
        a(f's_mov_b32 s47, {X1O + LAYOFF*layer}\ns_mov_b32 s48, {XNO + LAYOFF*layer}')
        s.fstamp('beta epilogue done', 'beta')
        for rr in range(2):
            for T2 in range(2):
                a(f'ds_write_b64 v{71+rr}, v[{216+4*rr+2*T2}:{217+4*rr+2*T2}] offset:{4096*T2}')
        def st1(f):
            for rr in range(2):
                for T2 in range(2):
                    a(f'buffer_store_dwordx2 v[{208+4*rr+2*T2}:{209+4*rr+2*T2}], v68, s[28:31], s47 offen offset:{1024*rr+512*T2}{f}')
        s.dual(st1)
        a('s_waitcnt lgkmcnt(0)\ns_barrier')
        a('ds_read_b128 v[216:219], v73\nds_read_b128 v[220:223], v85 offset:1024')
        def st2(f):
            a(f's_waitcnt lgkmcnt(1)\nbuffer_store_dwordx4 v[216:219], v74, s[28:31], s48 offen{f}')
            a(f's_waitcnt lgkmcnt(0)\nbuffer_store_dwordx4 v[220:223], v74, s[28:31], s48 offen offset:2048{f}')
        s.dual(st2)
        s.fstamp('beta stores issued', 'beta')
    def wave_reduce(s, rs, t, rows):
        a = s.a
        if rows:
            for ctl in ('quad_perm:[1,0,3,2]', 'quad_perm:[2,3,0,1]', 'row_half_mirror', 'row_mirror'):
                for r in rs: a(f'v_add_f32_dpp v{r}, v{r}, v{r} {ctl} row_mask:0xf bank_mask:0xf')
        for sw in ('v_permlane16_swap_b32', 'v_permlane32_swap_b32'):
            for k, r in enumerate(rs): a(f'v_mov_b32 v{t+k}, v{r}')
            for k, r in enumerate(rs): a(f'{sw} v{r}, v{t+k}')
            for k, r in enumerate(rs): a(f'v_add_f32 v{r}, v{r}, v{t+k}')
    def gamma(s):
        a = s.a
        XB, A, C = 8, 136, 192
        a(f'''
v_lshlrev_b32 v5, 4, v0
s_lshl_b32 s47, s46, 16
s_and_b32 s48, s41, 1
s_lshl_b32 s48, s48, 15
s_add_u32 s47, s47, s48
s_add_u32 s47, s47, {XNO + LAYOFF*s.lay}
s_add_u32 s48, s47, 16384''')
        issued = []
        def ldx(ks):
            for rt in range(2):
                r = XB + 8*ks + 4*rt
                a(f'buffer_load_dwordx4 v[{r}:{r+3}], v5, s[28:31], s{47+rt} offen offset:{1024*(ks&3)}{s.ldf}'); issued.append(ks)
            if (ks & 3) == 3 and ks < 15: a('s_add_u32 s47, s47, 4096\ns_add_u32 s48, s48, 4096')
        nx0 = 4 if s.lay == 0 else s.gx0
        for ks in range(nx0): ldx(ks)
        nx = [nx0]; nw2 = [s.nw2b]; th = [0]
        if s.lay == 0: s.w2_setup(s.nw2b, 250, 55)
        a(f'''v_lshl_add_u32 v252, v2, 2, v3
v_mul_u32_u24 v252, 224, v252
v_lshl_add_u32 v252, v4, 3, v252
v_add_u32 v252, {LW1}, v252
v_add_u32 v253, 57344, v252''')
        def rd(n, h):
            ks = n // 7; ft = n % 7; b = 252 if ks < 8 else 253; o = 7168*(ks & 7) + 32*ft
            r = A + 4*(n % 8)
            a(f'ds_read_b64_tr_b16 v[{r+2*h}:{r+2*h+1}], v{b} offset:{o + 3584*h}')
        P = 8
        def pack(ft):
            for rt in range(2):
                c = C + 8*ft + 4*rt; p = P + 16*rt + 2*ft
                a(f'v_cvt_pk_bf16_f32 v{p}, v{c}, v{c+1}\nv_cvt_pk_bf16_f32 v{p+1}, v{c+2}, v{c+3}')
                a(f'v_pk_max_i16 v{p}, v{p}, 0\nv_pk_max_i16 v{p+1}, v{p+1}, 0')
        for n in range(7): rd(n, 0); rd(n, 1)
        for ks in range(16):
            last = max(k for k, t in enumerate(issued) if t == ks)
            a(f's_waitcnt vmcnt({len(issued) - 1 - last})')
            if ks in (0, 6): s.fstamp(f'gamma ks{ks}', 'gamma')
            if ks == 12:
                a(f'''s_mul_i32 s47, s46, 229376
s_and_b32 s48, s41, 1
s_mul_i32 s48, s48, {2*57344}
s_add_u32 s47, s47, s48
s_mul_i32 s48, s40, 7
s_lshr_b32 s48, s48, 1
s_lshl_b32 s48, s48, 10
s_add_u32 s47, s47, s48
s_add_u32 s47, s47, {HO + LAYOFF*s.lay}
s_add_u32 s48, s47, 57344
v_lshlrev_b32 v249, 3, v0''')
            for ft in range(7):
                n = 7*ks + ft
                a(f's_waitcnt lgkmcnt({2*min(6, 111-n)})')
                r = A + 4*(n % 8)
                for rt in range(2):
                    c = C + 8*ft + 4*rt
                    src = '0' if ks == 0 else f'v[{c}:{c+3}]'
                    a(f'v_mfma_f32_16x16x32_bf16 v[{c}:{c+3}], v[{r}:{r+3}], v[{XB+8*ks+4*rt}:{XB+8*ks+4*rt+3}], {src}')
                    if n + 7 < 112: rd(n + 7, rt)
                if ks == 15 and ft >= 2: pack(ft - 2)
                if ft in (1, 4):
                    if s.lay == 1 and ft == 4 and s.gx1: pass
                    elif nx[0] < 16: ldx(nx[0]); nx[0] += 1
                    elif s.lay == 0 and s.t2 == 1 and not th[0]:
                        th[0] = 1
                        s.h_touch(52, 53, 254, 255); issued.append('t')
                    elif s.lay == 0 and nw2[0] < 56:
                        k = min(max(1, (56 - s.nw2b + 18) // 19), 56 - nw2[0])
                        s.w2_issue(nw2[0], nw2[0] + k, 250, 55); issued.extend(['w']*k); nw2[0] += k
        pack(5); pack(6)
        if s.lay == s.finel: s.stamp('gamma mfma done')
        if s.lay == 0:
            s.w2_issue(nw2[0], 56, 250, 55)
        od = s.label('ODD'); jn = s.label('GJ')
        a(f's_bitcmp1_b32 s40, 0\ns_cbranch_scc1 {od}')
        def st_even(f):
            for rt in range(2):
                p = P + 16*rt
                for k in range(3): a(f'buffer_store_dwordx4 v[{p+4*k}:{p+4*k+3}], v5, s[28:31], s{47+rt} offen offset:{1024*k}{f}')
                a(f'buffer_store_dwordx2 v[{p+12}:{p+13}], v249, s[28:31], s{47+rt} offen offset:3072{f}')
        s.dual(st_even)
        a(f's_branch {jn}\n{od}:')
        def st_odd(f):
            for rt in range(2):
                p = P + 16*rt
                a(f'buffer_store_dwordx2 v[{p}:{p+1}], v249, s[28:31], s{47+rt} offen offset:512{f}')
                for k in range(3): a(f'buffer_store_dwordx4 v[{p+2+4*k}:{p+5+4*k}], v5, s[28:31], s{47+rt} offen offset:{1024*(k+1)}{f}')
        s.dual(st_odd)
        a(f'{jn}:')
    def delta_addr(s):
        a = s.a
        a('''
s_lshl_b32 s47, s38, 16
s_lshl_b32 s48, s41, 14
s_add_u32 s47, s47, s48
s_lshl_b32 s48, s39, 7
s_add_u32 s47, s47, s48
v_lshlrev_b32 v6, 10, v1
v_lshl_add_u32 v6, v2, 3, v6
v_add_u32 v6, s47, v6
v_lshlrev_b32 v5, 4, v0''')
    def delta(s, layer):
        a = s.a
        C, R, X = 8, 72, 200
        a(f's_mov_b32 s49, {X1O + LAYOFF*layer}\nv_lshlrev_b32 v7, 3, v0')
        a(f's_mul_i32 s47, s38, 229376\ns_mul_i32 s48, s41, 14336\ns_add_u32 s47, s47, s48\ns_add_u32 s47, s47, {HO + LAYOFF*layer}')
        for sl in range(4):
            a(f's_add_u32 s48, s41, {sl}\ns_and_b32 s48, s48, 3\ns_mul_i32 s48, s48, 57344\ns_add_u32 s{50+sl}, s47, s48')
        issued = []
        def ld(st):
            for sl in range(4):
                r = R + 16*(st & 7) + 4*sl
                if st in (3, 10):
                    a(f'buffer_load_dwordx2 v[{r}:{r+1}], v7, s[28:31], s{50+sl} offen offset:{1024*(st&3)}{s.ldf}')
                    a(f'buffer_load_dwordx2 v[{r+2}:{r+3}], v7, s[28:31], s{50+sl} offen offset:{1024*(st&3)+512}{s.ldf}')
                    issued.extend([st, st])
                else:
                    a(f'buffer_load_dwordx4 v[{r}:{r+3}], v5, s[28:31], s{50+sl} offen offset:{1024*(st&3)}{s.ldf}')
                    issued.append(st)
            if (st & 3) == 3:
                for sl in range(4): a(f's_add_u32 s{50+sl}, s{50+sl}, 4096')
        for st in range(3): ld(st)
        nl = [3]
        def red_w(sl):
            for nt in range(4):
                c = C + 16*sl + 4*nt
                a(f'ds_write_b128 v{72+sl}, v[{c}:{c+3}] offset:{4096*(sl-1)+1024*nt}')
        for st in range(14):
            last = max(k for k, t in enumerate(issued) if t == st)
            ops = []
            if layer == 0:
                a(f's_waitcnt vmcnt({len(issued) - 1 - last}) lgkmcnt({12 if st < 13 else 0})')
                if st + 2 < 14: ops = s.w2t_ops(st + 2)
                if st == 13: a('s_barrier')
            else:
                a(f's_waitcnt vmcnt({len(issued) - 1 - last})')
            if st in (0, 4, 8): s.fstamp(f'delta st{st}', 'delta')
            for sl in ((0, 1, 2, 3) if st < 13 else (1, 2, 3, 0)):
                for nt in range(4):
                    c = C + 16*sl + 4*nt; r = R + 16*(st & 7) + 4*sl
                    src = '0' if st == 0 else f'v[{c}:{c+3}]'
                    a(f'v_mfma_f32_16x16x32_bf16 v[{c}:{c+3}], a[{16*st+4*nt}:{16*st+4*nt+3}], v[{r}:{r+3}], {src}')
                    if ops: a(ops.pop(0))
                if st == 13 and sl in (2, 3, 0): red_w({2: 1, 3: 2, 0: 3}[sl])
            for _ in range(2):
                if nl[0] < 14 and nl[0] <= st + 8: ld(nl[0]); nl[0] += 1
            if st == 6:
                for nt in range(4):
                    a(f'buffer_load_dwordx2 v[{X+2*nt}:{X+2*nt+1}], v6, s[28:31], s49 offen offset:{32*nt}{s.ldf}'); issued.append('x')
                if layer == 0: s.alpha_consts(208, 228); issued.extend(['c']*4)
            if st == 10:
                a(f'v_add_u32 v72, {LS}, v5')
                for sl in range(1, 4):
                    a(f's_add_u32 s47, s41, {sl}\ns_and_b32 s47, s47, 3\ns_mul_i32 s47, s47, 12288\nv_add_u32 v{72+sl}, s47, v72')
                a('s_mul_i32 s47, s41, 12288\nv_add_u32 v72, s47, v72')
                if layer == 0:
                    a(f'''s_lshl_b32 s47, s38, 13
s_lshl_b32 s48, s41, 11
s_add_u32 s47, s47, s48
s_add_u32 s47, s47, {STO}
s_lshl_b32 s48, s39, 4
s_add_u32 s48, s48, s47
v_lshlrev_b32 v80, 7, v1
s_add_u32 s56, s42, 48
v_mov_b32 v81, s56''')
                else:
                    a('''s_lshl_b32 s47, s41, 1
v_lshrrev_b32 v7, 3, v1
v_add_u32 v7, s47, v7
v_lshrrev_b32 v76, 2, v7
v_and_b32 v7, 3, v7
v_lshl_add_u32 v76, v7, 4, v76
v_and_b32 v7, 7, v1
v_lshl_add_u32 v76, v7, 1, v76
v_lshlrev_b32 v76, 5, v76
v_add_u32 v76, s38, v76
v_lshlrev_b32 v76, 10, v76
v_lshl_add_u32 v82, v2, 3, v76
s_lshl_b32 s47, s39, 7''')
        if layer == s.finel: s.stamp('delta mfma done')
        s.fstamp('dtail mfma done', 'dtail')
        a('s_waitcnt lgkmcnt(0)\ns_barrier')
        s.fstamp('dtail bar2', 'dtail')
        for sl in range(1, 4):
            for nt in range(4):
                c = C + 16*sl + 4*nt
                a(f'ds_read_b128 v[{c}:{c+3}], v72 offset:{4096*(sl-1)+1024*nt}')
        a('s_waitcnt vmcnt(0)')
        for nt in range(4):
            for k in range(2):
                a(f'''v_lshlrev_b32 v76, 16, v{X+2*nt+k}
v_and_b32 v77, 0xffff0000, v{X+2*nt+k}
v_add_f32 v{C+4*nt+2*k}, v{C+4*nt+2*k}, v76
v_add_f32 v{C+4*nt+2*k+1}, v{C+4*nt+2*k+1}, v77''')
        for sl in range(1, 4):
            a(f's_waitcnt lgkmcnt({4*(3-sl)})')
            for k in range(16): a(f'v_add_f32 v{C+k}, v{C+k}, v{C+16*sl+k}')
        s.fstamp('dtail reduced', 'dtail')
        for k in range(8): a(f'v_cvt_pk_bf16_f32 v{X+k}, v{C+2*k}, v{C+2*k+1}')
        if layer == 1:
            for nt in range(4): a(f'buffer_store_dwordx2 v[{X+2*nt}:{X+2*nt+1}], v82, s[24:27], s47 offen offset:{32*nt}')
            return
        a(f'v_add_f32 v76, v{C}, v{C+1}\nv_mul_f32 v78, v{C}, v{C}\nv_fma_f32 v78, v{C+1}, v{C+1}, v78')
        for k in range(2, 16): a(f'v_add_f32 v76, v76, v{C+k}\nv_fma_f32 v78, v{C+k}, v{C+k}, v78')
        s.wave_reduce([76, 78], 82, rows=False)
        a('v_mov_b32 v77, v81\nv_mov_b32 v79, v81')
        def st(f):
            a('s_mov_b64 exec, 0xffff')
            a(f'buffer_store_dwordx4 v[76:79], v80, s[28:31], s48 offen{f}')
            a('s_mov_b64 exec, -1')
        s.dual(st)
        s.fstamp('dtail granule', 'dtail')
    def delta_norm(s):
        a = s.a
        C = 8
        lp = s.label('SP'); dn = s.label('SD')
        a(f'''v_lshl_add_u32 v80, v2, 5, v80
s_mov_b32 s58, 0x40000
{lp}:
buffer_load_dwordx4 v[72:75], v80, s[28:31], s47 offen sc1
buffer_load_dwordx4 v[76:79], v80, s[28:31], s47 offen offset:16 sc1
s_waitcnt vmcnt(0)
v_cmp_ne_u32 vcc, s56, v73
v_cmp_ne_u32 s[48:49], s56, v75
s_nop 1
s_or_b64 vcc, vcc, s[48:49]
v_cmp_ne_u32 s[48:49], s56, v77
s_nop 1
s_or_b64 vcc, vcc, s[48:49]
v_cmp_ne_u32 s[48:49], s56, v79
s_nop 1
s_or_b64 vcc, vcc, s[48:49]
s_cbranch_vccz {dn}
s_sub_u32 s58, s58, 1
s_cmp_lg_u32 s58, 0
s_cbranch_scc1 {lp}
{dn}:
v_add_f32 v76, v72, v76
v_add_f32 v77, v74, v78''')
        s.stamp('stats poll')
        s.fstamp('dtail stats', 'dtail')
        def stx(f):
            for nt in range(4): a(f'buffer_store_dwordx2 v[{200+2*nt}:{201+2*nt}], v6, s[28:31], s57 offen offset:{32*nt}{f}')
        a(f's_mov_b32 s57, {X2O}')
        s.dual(stx)
        s.wave_reduce([76, 77], 78, rows=False)
        s.finish_stats(76, 77)
        for k in range(0, 16, 2): a(f'v_fma_f32 v{C+k}, v{C+k}, v76, v77\nv_fma_f32 v{C+k+1}, v{C+k+1}, v76, v77\nv_cvt_pk_bf16_f32 v{C+k//2}, v{C+k}, v{C+k+1}')
        for nt in range(4):
            a(f'ds_write_b64 v{226 if nt < 2 else 227}, v[{C+2*nt}:{C+2*nt+1}] offset:{16*(nt&1)}')
    def xtile_addr(s):
        s.a(f'''
s_mul_i32 s48, s41, 12288
s_add_u32 s48, s48, {LS}
v_bfe_u32 v226, v1, 1, 1
v_bfe_u32 v227, v1, 3, 1
v_lshl_or_b32 v226, v227, 1, v226
v_and_b32 v227, 1, v2
v_xor_b32 v226, v226, v227
v_lshlrev_b32 v226, 5, v226
v_lshrrev_b32 v227, 1, v2
v_lshl_add_u32 v226, v227, 3, v226
v_lshl_add_u32 v226, v1, 7, v226
v_add_u32 v226, s48, v226
v_xor_b32 v227, 64, v226''')
    def bar_addr(s, arr, v):
        s.a(f'''
v_lshrrev_b32 v{v}, 1, v0
v_and_b32 v{v+1}, 3, v{v}
v_lshrrev_b32 v{v}, 2, v{v}
v_lshl_add_u32 v{v}, v{v+1}, 6, v{v}
v_and_b32 v{v+1}, 1, v0
v_lshl_add_u32 v{v}, v{v+1}, 3, v{v}
s_lshl_b32 s47, s41, 4
v_add_u32 v{v}, s47, v{v}
v_lshlrev_b32 v{v}, 6, v{v}
v_add_u32 v{v}, {FLO + arr*0x8000}, v{v}''')
    def barrier0(s):
        a = s.a; pf = s.label('PF'); jn = s.label('PJ'); lp = s.label('BP'); dn = s.label('BD')
        a(f's_mov_b32 s53, 0\ns_cmp_ge_u32 s41, 2\ns_cbranch_scc1 {pf}')
        s.bar_addr(0, 222)
        a(f'''s_mov_b32 s56, s42
s_mov_b32 s58, 0x40000
{lp}:
buffer_load_dword v223, v222, s[28:31], 0 offen sc1
buffer_load_dword v224, v222, s[28:31], 0 offen offset:2048 sc1
s_waitcnt vmcnt(0)
v_and_b32 v225, 0xfffffff0, v223
v_and_b32 v226, 0xfffffff0, v224
v_cmp_ne_u32 vcc, s56, v225
v_cmp_ne_u32 s[48:49], s56, v226
s_nop 4
s_or_b64 vcc, vcc, s[48:49]
s_cbranch_vccz {dn}
s_sub_u32 s58, s58, 1
s_cmp_lg_u32 s58, 0
s_cbranch_scc1 {lp}
{dn}:
v_and_b32 v223, 15, v223
v_and_b32 v224, 15, v224
v_cmp_ne_u32 vcc, s59, v223
v_cmp_ne_u32 s[48:49], s59, v224
s_nop 4
s_or_b64 vcc, vcc, s[48:49]
s_lshl_b32 s47, s36, 3
s_lshl_b64 s[48:49], 0xff, s47
s_and_b64 s[48:49], s[48:49], vcc
s_cmp_lg_u64 s[48:49], 0
s_cselect_b32 s53, 1, 0
s_branch {jn}
{pf}:''')
        if s.pf1 == 2:
            a('''s_mul_i32 s54, s37, 57344
s_sub_u32 s55, s41, 2
s_lshl_b32 s55, s55, 15
s_add_u32 s54, s54, s55
s_cmp_eq_u32 s41, 3
s_cselect_b32 s55, 0, 8192
v_lshlrev_b32 v240, 7, v0
buffer_load_dword v241, v240, s[16:19], s54 offen
s_add_u32 s54, s54, 8192
buffer_load_dword v242, v240, s[16:19], s54 offen
s_add_u32 s54, s54, 8192
buffer_load_dword v243, v240, s[16:19], s54 offen
s_add_u32 s54, s54, s55
buffer_load_dword v244, v240, s[16:19], s54 offen''')
        a(f'{jn}:\ns_barrier')
    def grp16_base(s, arr, dst):
        s.a(f'''s_lshr_b32 s{dst}, s37, 4
s_lshl_b32 s48, s36, 1
s_add_u32 s{dst}, s{dst}, s48
s_lshl_b32 s{dst}, s{dst}, 8
s_add_u32 s{dst}, s{dst}, {FLO + arr*0x8000}''')
    def grp16_poll(s, arr):
        s.grp16_base(arr, 47)
        s.a(f'''s_lshl_b32 s48, s41, 6
s_add_u32 s47, s47, s48
v_lshlrev_b32 v222, 2, v1
v_add_u32 v222, s47, v222
s_add_u32 s56, s42, {16*arr}''')
        s.poll(222, 223, 56)
    def grp16_signal(s, arr):
        s.grp16_base(arr, 54)
        s.a('s_lshl_b32 s48, s40, 4\ns_add_u32 s54, s54, s48\ns_lshl_b32 s48, s41, 2\ns_add_u32 s54, s54, s48')
        s.wave_signal(arr, 54)
    def dump_stamps(s):
        if not s.stamps: return
        a = s.a
        a(f's_lshl_b32 s47, s2, 2\ns_add_u32 s47, s47, s41\ns_lshl_b32 s47, s47, 7\ns_add_u32 s47, s47, {DBO}\nv_mov_b32 v5, s47\ns_mov_b64 exec, 1')
        for k in range(s.nst):
            a(f'v_mov_b32 v6, s{60+2*k}\nbuffer_store_dword v6, v5, s[28:31], 0 offen offset:{4*k}')
        for k, r in enumerate((43, 59, 53, 98, 100)):
            a(f'v_mov_b32 v6, s{r}\nbuffer_store_dword v6, v5, s[28:31], 0 offen offset:{4*(24+k)}')
        a('s_mov_b64 exec, -1')
    def build(s):
        a = s.a
        s.prologue()
        s.alpha_in1(); s.alpha_consts(128); s.g_load()
        npre = 0
        if s.pretouch:
            a(f'v_lshlrev_b32 v95, 20, v0\nv_min_u32 v95, {WSZ - 4}, v95\nbuffer_load_dword v96, v95, s[28:31], 0 offen\nv_and_b32 v95, 1, v0\nv_lshlrev_b32 v95, 20, v95\nbuffer_load_dword v96, v95, s[24:27], 0 offen')
            npre = 2
        if s.cpf:
            a(f'''s_lshl_b32 s47, s37, 12
s_lshl_b32 s48, s41, 10
s_add_u32 s47, s47, s48
v_lshlrev_b32 v95, 4, v0
v_add_u32 v95, s47, v95
v_min_u32 v95, TABLE-{KN}_kernel+{len(tables())*4 - 16}, v95
s_sub_u32 s48, s44, TABLE-{KN}_kernel
s_subb_u32 s49, s45, 0
global_load_dwordx4 v[248:251], v95, s[48:49]''')
            npre += 1
        if s.htouch:
            if s.htouch == 1:
                a(f'v_min_u32 v238, 6, v0\nv_lshlrev_b32 v238, 12, v238\ns_mov_b32 s55, 0')
            else:
                a(f'v_min_u32 v238, 55, v0\nv_lshlrev_b32 v238, 7, v238\ns_mul_i32 s55, s41, 7168')
            a(f's_mul_i32 s54, s38, 229376\ns_add_u32 s54, s54, s55\ns_mul_i32 s55, s39, 28672\ns_add_u32 s54, s54, s55\ns_add_u32 s54, s54, {HO}\nbuffer_load_dword v239, v238, s[28:31], s54 offen sc1')
            npre += 1
        if s.pf1 == 1: s.touch(16, 240); npre += 2
        if s.pf2 == 1: s.touch(20, 244); npre += 2
        s.w1_load()
        if s.w1e:
            a(f's_mul_i32 s54, s40, 224\ns_mul_i32 s55, s41, {4*32*3584}\ns_add_u32 s54, s54, s55')
            it = s.w1_items()
            for x in it[:s.w1e]: a(x)
            npre += s.w1e
        a(f's_waitcnt vmcnt({6 + npre})')
        s.stamp('x arrived')
        if s.w1e:
            for x in it[s.w1e:]: a(x)
            npre += 28 - s.w1e
        a('v_mov_b32 v95, 0\nbuffer_load_dword v95, v95, s[32:35], 0 offen sc1')
        s.alpha_ln1()
        a(f's_waitcnt vmcnt({3 + npre}) lgkmcnt(0)\ns_barrier')
        s.alpha_core(128, AD0)
        s.fstamp('alpha stores issued', 'alpha')
        a('s_waitcnt vmcnt(0)')
        dn = s.label('ND')
        a(f'''v_readfirstlane_b32 s42, v95
s_cmp_lg_u32 s42, 0
s_cbranch_scc1 {dn}''')
        s.get_nonce()
        a(f'{dn}:')
        a('s_lshl_b32 s54, s2, 6')
        s.signal(0, 54, 0, dual=False, xcc=True, vm=0)
        s.stamp('sig0')
        s.g_make()
        if s.w1e: s.w1_store()
        s.beta_consts(); s.beta_addr(0)
        for layer in range(2):
            arr = 4*layer; s.lay = layer
            if layer == 1:
                a('s_waitcnt lgkmcnt(0)\ns_barrier')
                s.lay = 0; s.fstamp('dtail xtile', 'dtail')
                s.alpha_core(208, AD1)
                s.fstamp('dtail AD issued', 'dtail'); s.lay = 1
                a('s_lshl_b32 s54, s2, 6')
                s.signal(4, 54, 4, dual=False)
                s.stamp('sig4')
                s.lay = 0; s.fstamp('dtail sig4', 'dtail'); s.lay = 1
                s.beta_consts(); s.beta_addr(1)
            if layer == 0: s.barrier0()
            else:
                s.bar_addr(arr, 222)
                a(f's_add_u32 s56, s42, {16*arr}')
                s.poll(222, 223, 56)
            s.stamp('bar done')
            s.beta_main(layer)
            s.grp16_signal(arr + 1)
            if layer == s.finel: s.stamp('beta sig')
            if s.stop == f'beta{layer}': return s.end()
            if layer == 0 and not s.w1e: s.w1_store()
            s.grp16_poll(arr + 1)
            if layer == 0 and not s.w1e: a('s_waitcnt lgkmcnt(0)\ns_barrier')
            s.stamp('beta poll')
            s.gamma()
            s.grp16_signal(arr + 2)
            if layer == s.finel: s.stamp('gamma sig')
            if s.stop == f'gamma{layer}': return s.end()
            if layer == 0: s.w2_transpose(0, 2, LS + 32768)
            s.delta_addr()
            if layer == 0: s.xtile_addr()
            s.grp16_poll(arr + 2)
            s.stamp('gamma poll')
            s.delta(layer)
            if layer == 0:
                s.delta_norm()
                if s.stop == 'delta0': return s.end()
        return s.end()
    def end(s):
        a = s.a
        s.stamp('end')
        if s.stamps: a('s_memtime s[100:101]\ns_waitcnt lgkmcnt(0)')
        s.dump_stamps()
        a('END:\ns_endpgm')
        body, nn = a.finish()
        tab = tables()
        t = '\n'.join('.long ' + ','.join('0x%08x' % x for x in tab[i:i+8]) for i in range(0, len(tab), 8))
        hdr = open('cdna_kernels/' + KN + '.s.ref').read().split('; Override')[0]
        txt = hdr + f'''; Single persistent kernel: LN + FFT-factorised FNet mixing + FFN GEMMs, 256 workgroups (one per CU).
; @launch grid=(256,1,1) block=(256,1,1) lds=163840
.amdgcn_target "amdgcn-amd-amdhsa--gfx950"
.text
.globl {KN}_kernel
.p2align 8
.type {KN}_kernel,@function
{KN}_kernel:
{body}
.p2align 8
.type TABLE,@object
TABLE:
{t}
.size TABLE, {len(tab)*4}
.section .rodata,"a"
.p2align 6
.amdhsa_kernel {KN}_kernel
  .amdhsa_next_free_vgpr 512
  .amdhsa_next_free_sgpr 102
  .amdhsa_accum_offset 256
  .amdhsa_group_segment_fixed_size 0
  .amdhsa_kernarg_size 88
  .amdhsa_user_sgpr_count 2
  .amdhsa_user_sgpr_kernarg_segment_ptr 1
  .amdhsa_system_sgpr_workgroup_id_x 1
  .amdhsa_float_denorm_mode_32 3
.end_amdhsa_kernel
'''
        return txt
if __name__ == '__main__':
    import argparse
    ap = argparse.ArgumentParser(); ap.add_argument('out'); ap.add_argument('--stop'); ap.add_argument('--stamps', action='store_true'); ap.add_argument('--slow', action='store_true'); ap.add_argument('--fine'); ap.add_argument('--pre', action='store_true'); ap.add_argument('--cpf', action='store_true'); ap.add_argument('--nt', action='store_true'); ap.add_argument('--adsc1', action='store_true'); ap.add_argument('--wsoff', type=lambda x: int(x, 0), default=0); ap.add_argument('--gx0', type=int, default=4); ap.add_argument('--gx1', type=int, default=0); ap.add_argument('--w1e', type=int, default=1); ap.add_argument('--t1', type=int, default=0); ap.add_argument('--t2', type=int, default=1); ap.add_argument('--stf', default=''); ap.add_argument('--htouch', type=int, default=0); ap.add_argument('--pf1', type=int, default=0); ap.add_argument('--pf2', type=int, default=0); ap.add_argument('--nw2b', type=int, default=28); ap.add_argument('--every', type=int, default=12); ap.add_argument('--dma', type=int, default=1)
    o = ap.parse_args()
    g = Gen(o.stop, o.stamps, o.slow, o.fine); g.pretouch = o.pre; g.cpf = o.cpf; g.nt = ' nt' if o.nt else ''; g.adf = ' sc1'; g.t1 = o.t1; g.t2 = o.t2; g.pf1 = o.pf1; g.w1e = o.w1e; g.gx0 = o.gx0; g.gx1 = o.gx1; g.wsoff = o.wsoff; g.stf = (' ' + o.stf.replace('+', ' ')) if o.stf else ''; g.htouch = o.htouch; g.pf2 = o.pf2; g.nw2b = o.nw2b; g.every = o.every; g.dma = o.dma
    open(o.out, 'w').write(g.build())
```

```python
import sys, numpy as np
sys.path.insert(0, 'work')
from asmlib import Asm
KN = "interleave_layers__spectral_fnet__dense_activation_relu__prompt"
AD0, AD1, X1O, X2O, XNO, HO, STO, FLO, DBO = 0x0, 0x200000, 0x400000, 0x400000, 0x800000, 0xA00000, 0x1200000, 0x1300000, 0x1380000
WSZ = 0x1400000
LAYOFF = 0
LW1 = 0; LS = 114688
def bf16(x):
    u = np.ascontiguousarray(x, dtype=np.float32).view(np.uint32)
    return ((u + 0x7FFF + ((u >> 16) & 1)) >> 16).astype(np.uint16)
def s1_of_rho(r): return ((r >> 3) >> 2) + 16 * ((r >> 3) & 3) + 2 * (r & 7)
def tables():
    l = np.arange(64); n = l & 15; q = l >> 4; kk = np.arange(8)
    T = []
    for mt in range(4):
        for ks in range(2):
            m = (16 * mt + n)[:, None]; rho = 32 * ks + 8 * q[:, None] + kk[None, :]; s1 = s1_of_rho(rho)
            v = np.where(m <= 32, np.cos(2*np.pi*((m*s1) % 64)/64), -np.sin(2*np.pi*(((m-32)*s1) % 64)/64))
            T.append(bf16(v).reshape(-1).view(np.uint32))
    ri = (q >> 1)[:, None]; d1 = 8 * (q & 1)[:, None] + kk[None, :]; th = 2*np.pi*((d1 * n[:, None]) % 16)/16
    T.append(bf16(np.where(ri == 0, np.cos(th), np.sin(th))).reshape(-1).view(np.uint32))
    T.append(bf16(np.where(ri == 0, -np.sin(th), np.cos(th))).reshape(-1).view(np.uint32))
    d2 = 16 * (kk >> 2)[None, :] + 4 * q[:, None] + (kk & 3)[None, :]
    for T2 in range(2):
        e2 = (16 * T2 + n)[:, None]; ph = 2*np.pi*((d2 * e2) % 32)/32
        T.append(bf16(np.cos(ph)).reshape(-1).view(np.uint32)); T.append(bf16(np.sin(ph)).reshape(-1).view(np.uint32))
    for fn in (np.cos, np.sin):
        for Tt in range(2):
            dd = 16 * Tt + 4 * q[:, None] + np.arange(4)[None, :]
            T.append(fn(2*np.pi*(dd * n[:, None])/512).astype(np.float32).reshape(-1).view(np.uint32))
    return np.concatenate(T)
TF64, TF16, TH32, TTW = 0, 8192, 10240, 14336

class Gen:
    def __init__(s, stop=None, stamps=False, force_slow=False, fine=None):
        s.finel = 0
        if fine and fine[-1] == '1': fine = fine[:-1]; s.finel = 1
        s.fine = fine; s.lay = 0; s.pretouch = False; s.cpf = False; s.nt = ''; s.adf = ' sc1'; s.t1 = 1; s.t2 = 1; s.w1e = 0; s.gx0 = 5; s.gx1 = 1; s.wsoff = 0; s.stf = ''; s.ldf = ' sc1'; s.htouch = 0; s.pf1 = 1; s.pf2 = 1; s.nw2b = 28; s.every = 7; s.dma = 1; s.pwb = 1
        s.a = Asm(); s.stop = stop; s.stamps = stamps; s.nst = 0; s.lab = 0; s.force_slow = force_slow
    def label(s, p='L'):
        s.lab += 1; return f'{p}_{s.lab}'
    def fstamp(s, name, grp):
        if s.fine == grp and s.lay == s.finel: s.stamp(name)
    def stamp(s, name=''):
        if not s.stamps: return
        if s.fine and name not in ('start', 'end') and not name.startswith(s.fine) and name not in ('beta poll', 'gamma poll', 'bar done'): return
        k = 60 + 2 * s.nst; s.nst += 1
        assert k + 1 <= 97
        s.a(f's_memrealtime s[{k}:{k+1}]\ns_waitcnt lgkmcnt(0)')
    def dual(s, fn):
        a = s.a; l1 = s.label('SLOW'); l2 = s.label('JOIN')
        a(f's_cmp_eq_u32 s43, 0\ns_cbranch_scc1 {l1}')
        fn(s.stf); a(f's_branch {l2}\n{l1}:'); fn(' sc1'); a(f'{l2}:')
    def poll(s, vaddr, vtmp, sexp, maskxcc=False):
        a = s.a; lp = s.label('POLL'); dn = s.label('PD')
        a(f's_mov_b32 s58, 0x40000\n{lp}:')
        a(f'buffer_load_dword v{vtmp}, v{vaddr}, s[28:31], 0 offen sc1\ns_waitcnt vmcnt(0)')
        if maskxcc:
            a(f'v_and_b32 v{vtmp+1}, 0xfffffff0, v{vtmp}\nv_cmp_ne_u32 vcc, s{sexp}, v{vtmp+1}')
        else:
            a(f'v_cmp_ne_u32 vcc, s{sexp}, v{vtmp}')
        a(f's_nop 4\ns_cbranch_vccz {dn}\ns_sub_u32 s58, s58, 1\ns_cmp_lg_u32 s58, 0\ns_cbranch_scc1 {lp}\n{dn}:')
    def wave_signal(s, arr, soff):
        a = s.a
        a(f's_add_u32 s57, s42, {16*arr}\nv_mov_b32 v222, s57\nv_mov_b32 v223, s{soff}\ns_waitcnt vmcnt(0)\ns_mov_b64 exec, 1')
        s.dual(lambda f: a(f'buffer_store_dword v222, v223, s[28:31], 0 offen{f}'))
        a('s_mov_b64 exec, -1')
    def signal(s, arr, soff_expr_sgpr, phase, dual=True, xcc=False, vm=0):
        a = s.a; sk = s.label('SIG')
        a(f's_waitcnt vmcnt({vm})\ns_barrier')
        a(f's_cmp_lg_u32 s41, 0\ns_cbranch_scc1 {sk}')
        a(f's_add_u32 s57, s42, {16*phase}')
        if xcc: a('s_add_u32 s57, s57, s59')
        a(f'v_mov_b32 v5, s57\nv_mov_b32 v6, {FLO + arr*0x8000}\nv_add_u32 v6, s{soff_expr_sgpr}, v6')
        a('s_mov_b64 exec, 1')
        if dual: s.dual(lambda f: a(f'buffer_store_dword v5, v6, s[28:31], 0 offen{f}'))
        else: a('buffer_store_dword v5, v6, s[28:31], 0 offen sc1')
        a(f's_mov_b64 exec, -1\n{sk}:')

    def prologue(s):
        a = s.a
        a(f'''
s_cmp_ge_u32 s2, 256
s_cbranch_scc1 END
s_load_dwordx4 s[4:7], s[0:1], 0
s_load_dwordx2 s[12:13], s[0:1], 16
s_load_dwordx4 s[16:19], s[0:1], 48
s_load_dwordx4 s[24:27], s[0:1], 64
s_load_dwordx2 s[28:29], s[0:1], 80
s_getreg_b32 s59, hwreg(HW_REG_XCC_ID, 0, 4)
s_getpc_b64 s[44:45]
PCL:
s_add_u32 s44, s44, TABLE-PCL
s_addc_u32 s45, s45, 0
v_lshrrev_b32 v5, 6, v0
v_and_b32 v0, 63, v0
s_and_b32 s36, s2, 7
s_lshr_b32 s37, s2, 3
v_readfirstlane_b32 s41, v5
s_lshr_b32 s47, s37, 4
s_lshl_b32 s46, s36, 1
s_add_u32 s46, s46, s47
s_sub_u32 s48, 32, s46
s_cmp_eq_u32 s46, 0
s_cselect_b32 s48, 16, s48
s_bitcmp1_b32 s37, 3
s_cselect_b32 s38, s48, s46
s_and_b32 s39, s37, 7
s_and_b32 s40, s37, 15
s_bitcmp1_b32 s41, 1
s_cselect_b32 s46, s48, s46
v_and_b32 v1, 15, v0
v_lshrrev_b32 v2, 4, v0
v_bfe_u32 v3, v0, 2, 2
v_and_b32 v4, 3, v0
s_waitcnt lgkmcnt(0)
s_mov_b32 s8, s6
s_mov_b32 s9, s7
s_mov_b32 s32, s26
s_mov_b32 s33, s27
s_mov_b32 s20, s18
s_mov_b32 s21, s19
s_mov_b32 s6, 0x200000
s_mov_b32 s7, 0x20000
s_mov_b32 s10, 0x800000
s_mov_b32 s11, 0x20000
s_mov_b32 s14, 0x800000
s_mov_b32 s15, 0x20000
s_mov_b32 s18, 1835008
s_mov_b32 s19, 0x20000
s_mov_b32 s22, 1835008
s_mov_b32 s23, 0x20000
s_mov_b32 s26, 0x200000
s_mov_b32 s27, 0x20000
s_mov_b32 s30, {WSZ}
s_mov_b32 s31, 0x20000
s_mov_b32 s34, 256
s_mov_b32 s35, 0x20000
s_mov_b32 s43, 0
s_add_u32 s28, s28, {s.wsoff}
s_addc_u32 s29, s29, 0
''')
        s.stamp('start')
        if s.stamps: a('s_memtime s[98:99]\ns_waitcnt lgkmcnt(0)')
        sk = s.label('NON')
        a(f'''
s_cmp_lg_u32 s2, 0
s_cbranch_scc1 {sk}
s_cmp_lg_u32 s41, 0
s_cbranch_scc1 {sk}
s_memrealtime s[56:57]
s_waitcnt lgkmcnt(0)
s_lshl_b32 s56, s56, 8
s_or_b32 s56, s56, 0x80000000
v_mov_b32 v5, s56
v_mov_b32 v6, 0
s_mov_b64 exec, 1
buffer_store_dword v5, v6, s[32:35], 0 offen sc1
s_mov_b64 exec, -1
{sk}:''')
    def alpha_consts(s, base, t=5):
        a = s.a
        a(f's_lshr_b32 s47, s41, 1\ns_lshl_b32 s47, s47, 12\nv_lshlrev_b32 v{t}, 4, v0\nv_add_u32 v{t}, s47, v{t}')
        for k in range(4): a(f'global_load_dwordx4 v[{base+4*k}:{base+4*k+3}], v{t}, s[44:45] offset:{1024*k}')
    def alpha_in1(s):
        a = s.a
        a(f'''
v_lshrrev_b32 v6, 2, v0
v_bfe_u32 v7, v6, 3, 1
s_lshl_b32 s47, s41, 1
v_add_u32 v7, s47, v7
v_lshrrev_b32 v8, 2, v7
v_and_b32 v7, 3, v7
v_lshl_add_u32 v8, v7, 4, v8
v_and_b32 v7, 7, v6
v_lshl_add_u32 v8, v7, 1, v8
v_lshlrev_b32 v8, 5, v8
v_add_u32 v8, s38, v8
v_lshlrev_b32 v8, 10, v8
v_lshl_add_u32 v8, v4, 4, v8
s_lshl_b32 s47, s39, 7''')
        for i in range(16):
            a(f'buffer_load_dwordx4 v[{16+4*i}:{19+4*i}], v8, s[4:7], s47 offen')
            if i < 15: a('s_add_u32 s47, s47, 64\ns_and_b32 s47, s47, 1023')
    def alpha_ln1(s):
        a = s.a
        a('s_mov_b32 s47, 0x3f803f80\nv_mov_b32 v9, 0\nv_mov_b32 v10, 0\nv_mov_b32 v11, 0\nv_mov_b32 v12, 0')
        for i in range(0, 64, 2):
            a(f'v_dot2_f32_bf16 v9, v{16+i}, s47, v9\nv_dot2_f32_bf16 v10, v{16+i}, v{16+i}, v10')
            a(f'v_dot2_f32_bf16 v11, v{17+i}, s47, v11\nv_dot2_f32_bf16 v12, v{17+i}, v{17+i}, v12')
        a('''v_add_f32 v9, v9, v11
v_add_f32 v10, v10, v12
v_add_f32_dpp v9, v9, v9 quad_perm:[1,0,3,2] row_mask:0xf bank_mask:0xf
v_add_f32_dpp v10, v10, v10 quad_perm:[1,0,3,2] row_mask:0xf bank_mask:0xf
v_add_f32_dpp v9, v9, v9 quad_perm:[2,3,0,1] row_mask:0xf bank_mask:0xf
v_add_f32_dpp v10, v10, v10 quad_perm:[2,3,0,1] row_mask:0xf bank_mask:0xf''')
        s.finish_stats(9, 10)
        for i in range(8):
            r = 16 + i
            a(f'''v_lshlrev_b32 v11, 16, v{r}
v_and_b32 v12, 0xffff0000, v{r}
v_fma_f32 v11, v11, v9, v10
v_fma_f32 v12, v12, v9, v10
v_cvt_pk_bf16_f32 v{r}, v11, v12''')
        a(f'''
v_lshrrev_b32 v6, 2, v0
s_mul_i32 s47, s41, 12288
s_add_u32 s47, s47, {LS}
v_bfe_u32 v11, v6, 1, 1
v_bfe_u32 v12, v6, 3, 1
v_lshl_or_b32 v11, v12, 1, v11
v_lshlrev_b32 v11, 5, v11
v_lshl_add_u32 v11, v4, 3, v11
v_lshl_add_u32 v11, v6, 7, v11
v_add_u32 v11, s47, v11
v_xor_b32 v12, 32, v11
v_xor_b32 v13, 64, v11
v_xor_b32 v14, 96, v11
ds_write_b64 v11, v[16:17]
ds_write_b64 v12, v[18:19]
ds_write_b64 v13, v[20:21]
ds_write_b64 v14, v[22:23]''')
    def finish_stats(s, vs, vq):
        s.a(f'''
v_mul_f32 v{vs}, 0x3b000000, v{vs}
v_mul_f32 v{vq}, 0x3b000000, v{vq}
v_fma_f32 v{vq}, -v{vs}, v{vs}, v{vq}
v_max_f32 v{vq}, 0, v{vq}
v_add_f32 v{vq}, 0x3727c5ac, v{vq}
v_rsq_f32 v{vq}, v{vq}
s_nop 0
v_mul_f32 v{vs}, v{vs}, v{vq}
v_sub_f32 v{vs}, 0, v{vs}
v_swap_b32 v{vs}, v{vq}''')
    def alpha_core(s, cb, adoff):
        a = s.a
        a(f'''
s_and_b32 s47, s41, 1
s_lshl_b32 s47, s47, 1
v_lshrrev_b32 v6, 1, v3
v_and_b32 v7, 1, v2
v_lshl_or_b32 v6, v7, 1, v6
v_xor_b32 v6, s47, v6
v_lshlrev_b32 v6, 5, v6
v_lshl_add_u32 v6, v4, 3, v6
v_and_b32 v7, 1, v2
v_lshl_add_u32 v7, v7, 3, v3
v_lshl_add_u32 v6, v7, 7, v6
v_lshrrev_b32 v7, 1, v2
v_mul_u32_u24 v7, 12288, v7
v_add_u32 v6, v7, v6
v_add_u32 v6, {LS}, v6
v_xor_b32 v7, 32, v6''')
        A = 96
        for dt in range(2):
            for ks in range(2):
                for h in range(2):
                    r = A + 8*dt + 4*ks + 2*h
                    a(f'ds_read_b64_tr_b16 v[{r}:{r+1}], v{6+dt} offset:{24576*ks+512*h}')
        a(f'''
s_lshr_b32 s47, s41, 1
s_lshl_b32 s47, s47, 20
s_lshl_b32 s48, s38, 10
s_add_u32 s47, s47, s48
s_lshl_b32 s48, s39, 7
s_add_u32 s47, s47, s48
s_and_b32 s48, s41, 1
s_lshl_b32 s48, s48, 6
s_add_u32 s47, s47, s48
s_add_u32 s47, s47, {adoff}
v_lshlrev_b32 v8, 15, v1
v_lshl_add_u32 v8, v2, 4, v8
s_add_u32 s48, s47, 0x80000
s_waitcnt lgkmcnt(0)''')
        C = 112
        for mt in range(2):
            for dt in range(2):
                c = C + 8*mt + 4*dt
                for ks in range(2):
                    src = '0' if ks == 0 else f'v[{c}:{c+3}]'
                    a(f'v_mfma_f32_16x16x32_bf16 v[{c}:{c+3}], v[{A+8*dt+4*ks}:{A+8*dt+4*ks+3}], v[{cb+8*mt+4*ks}:{cb+8*mt+4*ks+3}], {src}')
        for mt in range(2):
            c = C + 8*mt
            for k in range(4): a(f'v_cvt_pk_bf16_f32 v{c+k}, v{c+2*k}, v{c+2*k+1}')
            a(f'buffer_store_dwordx4 v[{c}:{c+3}], v8, s[28:31], s{47+mt} offen sc1')
    def get_nonce(s):
        a = s.a; lp = s.label('NP'); dn = s.label('ND')
        a(f'''s_mov_b32 s58, 0x40000
v_mov_b32 v5, 0
{lp}:
buffer_load_dword v6, v5, s[32:35], 0 offen sc1
s_waitcnt vmcnt(0)
v_readfirstlane_b32 s42, v6
s_cmp_lg_u32 s42, 0
s_cbranch_scc1 {dn}
s_sub_u32 s58, s58, 1
s_cmp_lg_u32 s58, 0
s_cbranch_scc1 {lp}
{dn}:''')
    def g_load(s):
        a = s.a
        a('''
s_lshr_b32 s47, s39, 2
s_and_b32 s48, s39, 3
s_lshl_b32 s48, s48, 4
s_add_u32 s47, s47, s48
s_lshl_b32 s47, s47, 5
s_add_u32 s47, s47, s38
s_lshl_b32 s47, s47, 12
v_lshrrev_b32 v5, 1, v1
v_lshlrev_b32 v5, 18, v5
v_lshl_add_u32 v5, v2, 4, v5
buffer_load_dwordx4 v[80:83], v5, s[8:11], s47 offen
buffer_load_dwordx4 v[84:87], v5, s[12:15], s47 offen''')
    def g_make(s):
        a = s.a
        a('''
s_cmp_eq_u32 s38, 0
s_cselect_b32 s50, 0, -1
s_cmp_ge_u32 s39, 4
s_cselect_b32 s51, 0x80008000, 0
s_xor_b32 s52, s51, 0x80008000
v_and_b32 v5, 1, v1
v_cmp_eq_u32 vcc, 1, v5''')
        for k in range(4):
            a(f'''v_cndmask_b32 v6, v{80+k}, v{84+k}, vcc
v_xor_b32 v7, s52, v{84+k}
v_xor_b32 v8, s51, v{80+k}
v_cndmask_b32 v7, v7, v8, vcc
v_and_b32 v7, s50, v7
v_accvgpr_write_b32 a{224+k}, v6
v_accvgpr_write_b32 a{228+k}, v7''')
    def w1_load(s):
        a = s.a
        for k in range(7):
            a(f'''v_lshlrev_b32 v5, 4, v0
v_add_u32 v5, {1024*k}, v5
v_mul_u32_u24 v6, 0x4925, v5
v_lshrrev_b32 v6, 22, v6
v_mul_u32_u24 v7, 224, v6
v_sub_u32 v5, v5, v7
v_mul_u32_u24 v6, 3584, v6
v_add_u32 v{88+k}, v5, v6''')
    def w1_issue(s):
        a = s.a
        a(f'''s_mul_i32 s54, s40, 224
s_mul_i32 s55, s41, {4*32*3584}
s_add_u32 s54, s54, s55''')
        for blk in range(4):
            for k in range(7):
                r = 112 + 28*blk + 4*k
                a(f'buffer_load_dwordx4 a[{r}:{r+3}], v{88+k}, s[16:19], s54 offen{s.nt}')
            if blk < 3: a(f's_add_u32 s54, s54, {32*3584}')
    def w1_transpose(s):
        a = s.a
        a(f'''s_mul_i32 s47, s41, {4*7168}
s_add_u32 s47, s47, {LW1}
v_lshlrev_b32 v86, 4, v0
v_add_u32 v86, s47, v86
v_lshl_add_u32 v87, v2, 2, v3
v_mul_u32_u24 v87, 224, v87
v_lshl_add_u32 v87, v4, 3, v87
v_add_u32 v87, s47, v87''')
        for blk in range(4):
            for k in range(7):
                r = 112 + 28*blk + 4*k
                a(f'ds_write_b128 v86, a[{r}:{r+3}] offset:{7168*blk + 1024*k}')
            for ft in range(7):
                for h in range(2):
                    r = 112 + 28*blk + 4*ft + 2*h
                    a(f'ds_read_b64_tr_b16 a[{r}:{r+1}], v87 offset:{7168*blk + 32*ft + 3584*h}')
        for blk in range(4):
            a(f's_waitcnt lgkmcnt({0 if blk == 3 else 0})') if blk == 0 else None
            for k in range(7):
                r = 112 + 28*blk + 4*k
                a(f'ds_write_b128 v86, a[{r}:{r+3}] offset:{7168*blk + 1024*k}')
    def touch(s, srd, vd):
        s.a(f'''s_mul_i32 s54, s37, 57344
s_lshl_b32 s55, s41, 14
s_add_u32 s54, s54, s55
v_lshlrev_b32 v{vd}, 7, v0
buffer_load_dword v{vd+1}, v{vd}, s[{srd}:{srd+3}], s54 offen''')
        sk = s.label('TCH')
        s.a(f'''s_cmp_eq_u32 s41, 3
s_cselect_b32 s55, 0, 8192
s_add_u32 s54, s54, s55
buffer_load_dword v{vd+2}, v{vd}, s[{srd}:{srd+3}], s54 offen''')
    def h_touch(s, s0, s1, v0, v1):
        s.a(f'''v_min_u32 v{v0}, 55, v0
v_lshlrev_b32 v{v0}, 7, v{v0}
s_mul_i32 s{s0}, s38, 229376
s_mul_i32 s{s1}, s41, 7168
s_add_u32 s{s0}, s{s0}, s{s1}
s_mul_i32 s{s1}, s39, 28672
s_add_u32 s{s0}, s{s0}, s{s1}
s_add_u32 s{s0}, s{s0}, {HO}
buffer_load_dword v{v1}, v{v0}, s[28:31], s{s0} offen sc1''')
    def w1_items(s):
        it = []
        for blk in range(4):
            for k in range(7):
                r = 112 + 28*blk + 4*k
                it.append(f'buffer_load_dwordx4 a[{r}:{r+3}], v{88+k}, s[16:19], s54 offen' + (f'\nv_add_u32 v{88+k}, {32*3584}, v{88+k}' if blk < 3 else ''))
        return it
    def w1_store(s):
        a = s.a
        a(f'''s_mul_i32 s47, s41, {4*7168}
s_add_u32 s47, s47, {LW1}
v_lshlrev_b32 v5, 4, v0
v_add_u32 v5, s47, v5''')
        for blk in range(4):
            for k in range(7):
                r = 112 + 28*blk + 4*k
                a(f'ds_write_b128 v5, a[{r}:{r+3}] offset:{7168*blk + 1024*k}')
    def w2_setup(s, i0, vt, st):
        s.a(f'''v_lshrrev_b32 v{vt}, 3, v0
v_lshlrev_b32 v{vt}, 10, v{vt}
v_and_b32 v{vt+1}, 7, v0
v_lshl_add_u32 v{vt}, v{vt+1}, 4, v{vt}
s_mul_i32 s{st}, s41, {448*1024}
s_lshl_b32 s49, s39, 7
s_add_u32 s{st}, s{st}, s49
s_add_u32 s{st}, s{st}, {8192*i0}''')
    def w2_issue(s, i0, i1, vt, st):
        for i in range(i0, i1):
            s.a(f'buffer_load_dwordx4 a[{4*i}:{4*i+3}], v{vt}, s[20:23], s{st} offen{s.nt}\ns_add_u32 s{st}, s{st}, 8192')
    def w2t_ops(s, ks):
        ops = [f'ds_write_b128 v230, a[{16*ks+4*k}:{16*ks+4*k+3}] offset:{1024*k}' for k in range(4)]
        for nt in range(4):
            for h in range(2):
                r = 16*ks + 4*nt + 2*h
                ops.append(f'ds_read_b64_tr_b16 a[{r}:{r+1}], v{231+nt} offset:{2048*h}')
        return ops
    def w2_transpose(s, ks0, ks1, lbase):
        a = s.a
        a(f'''
s_lshl_b32 s47, s41, 12
s_add_u32 s47, s47, {lbase}
v_bfe_u32 v230, v0, 1, 2
v_bfe_u32 v231, v0, 4, 2
v_xor_b32 v230, v230, v231
v_lshlrev_b32 v230, 5, v230
v_and_b32 v231, 1, v0
v_lshl_add_u32 v230, v231, 4, v230
v_lshrrev_b32 v231, 3, v0
v_lshl_add_u32 v230, v231, 7, v230
v_add_u32 v230, s47, v230
v_and_b32 v231, 1, v2
v_lshrrev_b32 v232, 1, v3
v_lshl_or_b32 v231, v231, 1, v232
v_lshlrev_b32 v231, 5, v231
v_lshl_add_u32 v231, v4, 3, v231
v_lshl_add_u32 v232, v2, 2, v3
v_lshl_add_u32 v231, v232, 7, v231
v_add_u32 v231, s47, v231
v_xor_b32 v232, 32, v231
v_xor_b32 v233, 64, v231
v_xor_b32 v234, 96, v231''')
        for ks in range(ks0, ks1):
            for op in s.w2t_ops(ks): a(op)
    def beta_consts(s):
        a = s.a
        a(f'v_lshlrev_b32 v5, 4, v0\nv_add_u32 v5, {TF16}, v5\nv_add_u32 v6, 4096, v5')
        for k in range(10):
            r = 8 + 4*k
            if k < 4: a(f'global_load_dwordx4 v[{r}:{r+3}], v5, s[44:45] offset:{1024*k}')
            elif k < 8: a(f'global_load_dwordx4 v[{r}:{r+3}], v6, s[44:45] offset:{1024*(k-4)}')
        a('v_add_u32 v6, 4096, v6')
        for k in (8, 9):
            r = 8 + 4*k
            a(f'global_load_dwordx4 v[{r}:{r+3}], v6, s[44:45] offset:{1024*(k-8)}')
    def beta_addr(s, layer):
        a = s.a
        a(f'''
s_lshl_b32 s47, s41, 8
v_lshlrev_b32 v48, 10, v2
v_lshl_add_u32 v48, v1, 4, v48
v_add_u32 v48, s47, v48
s_lshl_b32 s47, s41, 13
s_add_u32 s47, s47, {LS}
v_lshrrev_b32 v49, 1, v1
v_xor_b32 v49, v49, v2
v_lshlrev_b32 v49, 5, v49
v_and_b32 v50, 1, v1
v_lshl_add_u32 v49, v50, 4, v49
v_lshl_add_u32 v49, v2, 8, v49
v_add_u32 v49, s47, v49
v_xor_b32 v50, 128, v49
v_lshrrev_b32 v96, 1, v1
v_xor_b32 v96, v96, v2
v_lshlrev_b32 v96, 5, v96
v_and_b32 v97, 1, v1
v_lshl_add_u32 v96, v97, 4, v96
v_lshl_add_u32 v96, v2, 10, v96
s_lshl_b32 s48, s41, 8
v_add_u32 v96, s48, v96
v_xor_b32 v97, 128, v96
s_lshl_b32 s48, s41, 12
s_sub_u32 s48, 32768, s48
v_mov_b32 v98, s48
v_cmp_gt_u32 vcc, 2, v2
v_cndmask_b32 v98, 0, v98, vcc
v_and_b32 v51, 1, v2
v_lshl_or_b32 v51, v51, 2, v3
v_lshlrev_b32 v51, 5, v51
v_lshl_add_u32 v51, v4, 3, v51
v_lshl_add_u32 v52, v2, 3, v3
v_lshl_add_u32 v51, v52, 8, v51
v_add_u32 v51, s47, v51''')
        for dt in range(1, 8): a(f'v_xor_b32 v{51+dt}, {32*dt}, v51')
        UB = LS + 32768
        a(f'''
s_lshl_b32 s47, s41, 12
s_lshr_b32 s48, s41, 1
s_lshl_b32 s48, s48, 5
s_add_u32 s47, s47, s48
v_lshlrev_b32 v59, 3, v2
v_add_u32 v59, s47, v59
v_lshlrev_b32 v60, 3, v1
v_xor_b32 v59, v59, v60
v_lshl_add_u32 v59, v1, 8, v59
v_add_u32 v59, {UB}, v59
v_xor_b32 v60, 32, v59
v_xor_b32 v61, 64, v59
v_xor_b32 v62, 96, v59''')
        a(f'''
s_lshl_b32 s47, s41, 2
v_lshrrev_b32 v63, 1, v2
v_add_u32 v63, s47, v63
v_and_b32 v64, 1, v2
v_mul_u32_u24 v64, 8224, v64
v_lshl_add_u32 v64, v3, 6, v64
v_lshl_add_u32 v64, v4, 3, v64
v_lshlrev_b32 v65, 3, v63
v_xor_b32 v64, v64, v65
v_lshl_add_u32 v63, v63, 8, v64
v_add_u32 v63, {UB}, v63
v_xor_b32 v64, 32, v63
v_xor_b32 v65, 16, v63
v_add_u32 v65, 512, v65
v_xor_b32 v66, 32, v65''')
        a(f'''
v_lshlrev_b32 v67, 5, v1
v_lshl_add_u32 v67, v2, 3, v67
s_lshl_b32 s47, s38, 16
s_lshl_b32 s48, s39, 13
s_add_u32 s47, s47, s48
s_lshl_b32 s48, s41, 11
s_add_u32 s47, s47, s48
v_add_u32 v68, s47, v67''')
        if layer == 0:
            a('''
s_lshr_b32 s47, s39, 2
s_and_b32 s48, s39, 3
s_lshl_b32 s48, s48, 4
s_add_u32 s47, s47, s48
s_lshl_b32 s48, s41, 2
s_add_u32 s47, s47, s48
s_lshl_b32 s47, s47, 5
s_add_u32 s47, s47, s38
s_lshl_b32 s47, s47, 10
v_add_u32 v69, s47, v67
v_add_u32 v70, 0x10000, v69''')
        XI = LS + 8448
        a(f'''
s_lshl_b32 s47, s41, 1
v_lshrrev_b32 v71, 1, v1
v_xor_b32 v72, s47, v71
v_lshlrev_b32 v72, 4, v72
v_lshl_add_u32 v72, v71, 9, v72
v_lshl_add_u32 v72, v2, 7, v72
v_and_b32 v71, 1, v1
v_lshl_add_u32 v71, v71, 3, v72
v_add_u32 v71, {XI}, v71
v_xor_b32 v72, 16, v71''')
        a(f'''
s_lshl_b32 s47, s41, 2
v_lshrrev_b32 v73, 5, v0
v_add_u32 v73, s47, v73
v_and_b32 v74, 7, v0
v_xor_b32 v75, v74, v73
v_and_b32 v75, 7, v75
v_lshlrev_b32 v75, 4, v75
v_lshl_add_u32 v75, v73, 9, v75
v_bfe_u32 v84, v0, 3, 2
v_lshl_add_u32 v75, v84, 7, v75
v_lshlrev_b32 v73, 10, v73
v_lshl_add_u32 v73, v84, 8, v73
v_lshl_add_u32 v73, v74, 4, v73
s_lshl_b32 s47, s38, 16
s_lshr_b32 s48, s39, 1
s_lshl_b32 s48, s48, 14
s_add_u32 s47, s47, s48
s_and_b32 s48, s39, 1
s_lshl_b32 s48, s48, 7
s_add_u32 s47, s47, s48
v_add_u32 v74, s47, v73
v_add_u32 v73, {XI}, v75
v_xor_b32 v85, 32, v73''')
    def beta_resid(s, layer):
        a = s.a
        for rr in range(2):
            for T2 in range(2):
                r = 76 + 4*rr + 2*T2
                if layer == 0: a(f'buffer_load_dwordx2 v[{r}:{r+1}], v{69+rr}, s[4:7], 0 offen offset:{512*T2}')
                else: a(f'buffer_load_dwordx2 v[{r}:{r+1}], v68, s[28:31], s49 offen offset:{1024*rr+512*T2}{s.ldf}')
    def beta_main(s, layer):
        a = s.a
        ad = AD0 if layer == 0 else AD1
        a(f'''
s_sub_u32 s47, 32, s38
s_cmp_lt_u32 s39, 4
s_cselect_b32 s47, s38, s47
s_add_u32 s48, s47, 32
s_cmp_eq_u32 s38, 0
s_cselect_b32 s48, 0, s48
s_lshl_b32 s47, s47, 15
s_lshl_b32 s48, s48, 15
s_add_u32 s47, s47, {ad}
s_add_u32 s48, s48, {ad}
s_mov_b32 s49, {X2O}''')
        D = 96
        a(f's_lshl_b32 s50, s41, 13\ns_add_u32 s50, s50, {LS}\ns_lshl_b32 s51, s41, 12\ns_add_u32 s51, s51, {LS + 32768}')
        for p in range(2):
            order = list(range(8)) if p == 0 else [4, 5, 6, 7, 0, 1, 2, 3]
            for k, i in enumerate(order):
                r = D + 32*p + 4*i
                dma = p == 0 or i < 4
                if dma: a(f's_add_u32 m0, s{50+p}, {1024*i}')
                step = 4096*(i - (order[k-1] if k else 0))
                if step > 0: a(f's_add_u32 s{47+p}, s{47+p}, {step}')
                elif step < 0: a(f's_sub_u32 s{47+p}, s{47+p}, {-step}')
                if dma: a(f'buffer_load_dwordx4 v{96 + ((i>>1)&1)}, s[28:31], s{47+p} offen{s.adf} lds')
                else: a(f'buffer_load_dwordx4 v[{r}:{r+3}], v48, s[28:31], s{47+p} offen{s.adf}')
        nw = 0; nr = 0; spr = []
        if layer == 0:
            s.beta_resid(layer); nr = 4
            if s.pf2 == 2: s.touch(20, 246); nw += 2
            if s.t2 == 2:
                s.h_touch(48, 49, 246, 247); nw += 1
            if s.t1:
                a(f'''s_lshr_b32 s47, s39, 1
s_lshl_b32 s47, s47, 14
s_and_b32 s48, s39, 1
s_lshl_b32 s48, s48, 7
s_add_u32 s47, s47, s48
s_lshl_b32 s48, s41, 12
s_add_u32 s47, s47, s48
s_add_u32 s47, s47, {XNO}
s_lshl_b32 s48, s39, 13
s_lshl_b32 s49, s41, 11
s_add_u32 s48, s48, s49
s_add_u32 s48, s48, {X1O}
v_lshlrev_b32 v246, 8, v1
v_add_u32 v246, s47, v246
v_lshlrev_b32 v247, 7, v1
v_add_u32 v247, s48, v247
v_and_b32 v248, 1, v2
v_cmp_eq_u32 vcc, 1, v248
v_cndmask_b32 v246, v246, v247, vcc
s_lshl_b32 s47, s38, 16
buffer_load_dword v249, v246, s[28:31], s47 offen sc1''')
                nw += 1
            a(f's_mul_i32 s54, s40, 224\ns_mul_i32 s55, s41, {4*32*3584}\ns_add_u32 s54, s54, s55')
            s.w2_setup(0, 86, 55)
            if not s.w1e: spr.extend(s.w1_items())
            for i in range(s.nw2b):
                spr.append(f'buffer_load_dwordx4 a[{4*i}:{4*i+3}], v86, s[20:23], s55 offen\nv_add_u32 v86, 8192, v86')
        T = 160
        C = 192
        for p in range(2):
            a(f's_waitcnt vmcnt({(8 if p == 0 else 4) + nr + nw + a.nspr * (p == 1 and layer == 0)})')
            if p == 0 and spr: a.sprinkle(spr, s.every)
            if p == 0: s.fstamp('beta AD0 arrived', 'beta')
            for i in range(8):
                r = D + 32*p + 4*i
                if p == 0 or i < 4: continue
                a(f'ds_write_b128 v{49 + ((i>>1)&1)}, v[{r}:{r+3}] offset:{1024*i}')
            if p == 1:
                for dt in range(8): a(f'v_add_u32 v{51+dt}, v98, v{51+dt}')
                a(f's_waitcnt vmcnt({nr + nw + a.nspr * (layer == 0)})')
            for dt in range(8):
                for h in range(2):
                    r = T + 4*dt + 2*h
                    a(f'ds_read_b64_tr_b16 v[{r}:{r+1}], v{51+dt} offset:{1024*h}')
            for dt in range(8):
                a(f's_waitcnt lgkmcnt({14-2*dt})')
                src = '0' if p == 0 else f'v[{C+4*dt}:{C+4*dt+3}]'
                a(f'v_mfma_f32_16x16x32_bf16 v[{C+4*dt}:{C+4*dt+3}], v[{T+4*dt}:{T+4*dt+3}], a[{224+4*p}:{227+4*p}], {src}')
        for dt in range(8):
            c = C + 4*dt
            a(f'v_cvt_pk_bf16_f32 v{c}, v{c}, v{c+1}\nv_cvt_pk_bf16_f32 v{c+1}, v{c+2}, v{c+3}')
            a(f'ds_write_b64 v{59+(dt&3)}, v[{c}:{c+1}] offset:{128*(dt>>2)}')
        if layer == 0:
            a(f's_lshl_b32 s47, s41, 13\ns_add_u32 s47, s47, {LS}\ns_lshr_b32 s48, s41, 1\ns_mul_i32 s48, s48, 8188\ns_add_u32 s47, s47, s48\nv_mov_b32 v96, s47\nv_mov_b32 v97, s53\nds_write_b32 v96, v97')
        a('s_waitcnt lgkmcnt(0)\ns_barrier')
        if layer == 0:
            a(f'v_lshlrev_b32 v96, 13, v4\nv_lshrrev_b32 v97, 1, v4\nv_mul_u32_u24 v97, 8188, v97\nv_add_u32 v96, v96, v97\nv_add_u32 v96, {LS}, v96\nds_read_b32 v97, v96\ns_waitcnt lgkmcnt(0)\nv_cmp_ne_u32 vcc, 0, v97\ns_nop 4\ns_cmp_eq_u64 vcc, 0\ns_cselect_b32 s43, 1, 0')
            if s.force_slow: a('s_mov_b32 s43, 0')
        if layer == 1: s.beta_resid(layer)
        s.fstamp('beta U done', 'beta')
        for rr in range(2):
            for Tt in range(2):
                for h in range(2):
                    r = D + 8*rr + 4*Tt + 2*h
                    a(f'ds_read_b64_tr_b16 v[{r}:{r+1}], v{63+2*rr+Tt} offset:{4096*h}')
        P = 112
        for rr in range(2):
            a(f's_waitcnt lgkmcnt({4 if rr == 0 else 0})')
            for Tt in range(2):
                for ci in range(2):
                    p = P + 16*rr + 8*Tt + 4*ci
                    a(f'v_mfma_f32_16x16x32_bf16 v[{p}:{p+3}], v[{D+8*rr+4*Tt}:{D+8*rr+4*Tt+3}], v[{8+4*ci}:{11+4*ci}], 0')
        Q = 144
        for rr in range(2):
            for Tt in range(2):
                pr = P + 16*rr + 8*Tt; pi = pr + 4
                for jj in range(0, 4, 2):
                    tc = 32 + 4*Tt + jj; ts = 40 + 4*Tt + jj; t0 = 160 + 8*Tt + jj; t1 = t0 + 4
                    a(f'''v_pk_mul_f32 v[{t0}:{t0+1}], v[{pr+jj}:{pr+jj+1}], v[{tc}:{tc+1}]
v_pk_mul_f32 v[{t1}:{t1+1}], v[{pi+jj}:{pi+jj+1}], v[{tc}:{tc+1}]
v_pk_fma_f32 v[{t0}:{t0+1}], v[{pi+jj}:{pi+jj+1}], v[{ts}:{ts+1}], v[{t0}:{t0+1}]
v_pk_fma_f32 v[{t1}:{t1+1}], v[{pr+jj}:{pr+jj+1}], v[{ts}:{ts+1}], v[{t1}:{t1+1}] neg_lo:[1,0,0] neg_hi:[1,0,0]''')
                t0 = 160 + 8*Tt
                a(f'''v_cvt_pk_bf16_f32 v{Q+8*rr+2*Tt}, v{t0}, v{t0+1}
v_cvt_pk_bf16_f32 v{Q+8*rr+2*Tt+1}, v{t0+2}, v{t0+3}
v_cvt_pk_bf16_f32 v{Q+8*rr+4+2*Tt}, v{t0+4}, v{t0+5}
v_cvt_pk_bf16_f32 v{Q+8*rr+4+2*Tt+1}, v{t0+6}, v{t0+7}''')
        s.fstamp('beta twiddle done', 'beta')
        Y = 176
        for rr in range(2):
            for T2 in range(2):
                y = Y + 8*rr + 4*T2
                a(f'v_mfma_f32_16x16x32_bf16 v[{y}:{y+3}], v[{Q+8*rr}:{Q+8*rr+3}], v[{16+8*T2}:{19+8*T2}], 0')
            for T2 in range(2):
                y = Y + 8*rr + 4*T2
                a(f'v_mfma_f32_16x16x32_bf16 v[{y}:{y+3}], v[{Q+8*rr+4}:{Q+8*rr+7}], v[{20+8*T2}:{23+8*T2}], v[{y}:{y+3}]')
        a(f's_waitcnt vmcnt({min(63, nw + (a.nspr if layer == 0 else 0))})')
        for rr in range(2):
            for T2 in range(2):
                y = Y + 8*rr + 4*T2; x = 76 + 4*rr + 2*T2
                for k in range(2):
                    a(f'''v_lshlrev_b32 v96, 16, v{x+k}
v_and_b32 v97, 0xffff0000, v{x+k}
v_add_f32 v{y+2*k}, v{y+2*k}, v96
v_add_f32 v{y+2*k+1}, v{y+2*k+1}, v97''')
            y = Y + 8*rr; S_, Q_ = 100 + 2*rr, 101 + 2*rr
            a(f'v_add_f32 v{S_}, v{y}, v{y+1}\nv_mul_f32 v{Q_}, v{y}, v{y}\nv_fma_f32 v{Q_}, v{y+1}, v{y+1}, v{Q_}')
            for k in range(2, 8): a(f'v_add_f32 v{S_}, v{S_}, v{y+k}\nv_fma_f32 v{Q_}, v{y+k}, v{y+k}, v{Q_}')
        s.wave_reduce([100, 101, 102, 103], 104, rows=True)
        for rr in range(2):
            s.finish_stats(100 + 2*rr, 101 + 2*rr)
        for rr in range(2):
            y = Y + 8*rr
            for k in range(4): a(f'v_cvt_pk_bf16_f32 v{208+4*rr+k}, v{y+2*k}, v{y+2*k+1}')
            for k in range(8): a(f'v_fma_f32 v{y+k}, v{y+k}, v{100+2*rr}, v{101+2*rr}')
            for k in range(4): a(f'v_cvt_pk_bf16_f32 v{216+4*rr+k}, v{y+2*k}, v{y+2*k+1}')
        a.flush()
        a(f's_mov_b32 s47, {X1O + LAYOFF*layer}\ns_mov_b32 s48, {XNO + LAYOFF*layer}')
        s.fstamp('beta epilogue done', 'beta')
        for rr in range(2):
            for T2 in range(2):
                a(f'ds_write_b64 v{71+rr}, v[{216+4*rr+2*T2}:{217+4*rr+2*T2}] offset:{4096*T2}')
        def st1(f):
            for rr in range(2):
                for T2 in range(2):
                    a(f'buffer_store_dwordx2 v[{208+4*rr+2*T2}:{209+4*rr+2*T2}], v68, s[28:31], s47 offen offset:{1024*rr+512*T2}{f}')
        s.dual(st1)
        a('s_waitcnt lgkmcnt(0)\ns_barrier')
        a('ds_read_b128 v[216:219], v73\nds_read_b128 v[220:223], v85 offset:1024')
        def st2(f):
            a(f's_waitcnt lgkmcnt(1)\nbuffer_store_dwordx4 v[216:219], v74, s[28:31], s48 offen{f}')
            a(f's_waitcnt lgkmcnt(0)\nbuffer_store_dwordx4 v[220:223], v74, s[28:31], s48 offen offset:2048{f}')
        s.dual(st2)
        s.fstamp('beta stores issued', 'beta')
    def wave_reduce(s, rs, t, rows):
        a = s.a
        if rows:
            for ctl in ('quad_perm:[1,0,3,2]', 'quad_perm:[2,3,0,1]', 'row_half_mirror', 'row_mirror'):
                for r in rs: a(f'v_add_f32_dpp v{r}, v{r}, v{r} {ctl} row_mask:0xf bank_mask:0xf')
        for sw in ('v_permlane16_swap_b32', 'v_permlane32_swap_b32'):
            for k, r in enumerate(rs): a(f'v_mov_b32 v{t+k}, v{r}')
            for k, r in enumerate(rs): a(f'{sw} v{r}, v{t+k}')
            for k, r in enumerate(rs): a(f'v_add_f32 v{r}, v{r}, v{t+k}')
    def gamma(s):
        a = s.a
        XB, A, C = 8, 136, 192
        a(f'''
v_lshlrev_b32 v5, 4, v0
s_lshl_b32 s47, s46, 16
s_and_b32 s48, s41, 1
s_lshl_b32 s48, s48, 15
s_add_u32 s47, s47, s48
s_add_u32 s47, s47, {XNO + LAYOFF*s.lay}
s_add_u32 s48, s47, 16384''')
        issued = []
        def ldx(ks):
            for rt in range(2):
                r = XB + 8*ks + 4*rt
                a(f'buffer_load_dwordx4 v[{r}:{r+3}], v5, s[28:31], s{47+rt} offen offset:{1024*(ks&3)}{s.ldf}'); issued.append(ks)
            if (ks & 3) == 3 and ks < 15: a('s_add_u32 s47, s47, 4096\ns_add_u32 s48, s48, 4096')
        nx0 = 4 if s.lay == 0 else s.gx0
        for ks in range(nx0): ldx(ks)
        nx = [nx0]; nw2 = [s.nw2b]; th = [0]
        if s.lay == 0: s.w2_setup(s.nw2b, 250, 55)
        a(f'''v_lshl_add_u32 v252, v2, 2, v3
v_mul_u32_u24 v252, 224, v252
v_lshl_add_u32 v252, v4, 3, v252
v_add_u32 v252, {LW1}, v252
v_add_u32 v253, 57344, v252''')
        def rd(n, h):
            ks = n // 7; ft = n % 7; b = 252 if ks < 8 else 253; o = 7168*(ks & 7) + 32*ft
            r = A + 4*(n % 8)
            a(f'ds_read_b64_tr_b16 v[{r+2*h}:{r+2*h+1}], v{b} offset:{o + 3584*h}')
        P = 8
        def pack(ft):
            for rt in range(2):
                c = C + 8*ft + 4*rt; p = P + 16*rt + 2*ft
                a(f'v_cvt_pk_bf16_f32 v{p}, v{c}, v{c+1}\nv_cvt_pk_bf16_f32 v{p+1}, v{c+2}, v{c+3}')
                a(f'v_pk_max_i16 v{p}, v{p}, 0\nv_pk_max_i16 v{p+1}, v{p+1}, 0')
        for n in range(7): rd(n, 0); rd(n, 1)
        for ks in range(16):
            last = max(k for k, t in enumerate(issued) if t == ks)
            a(f's_waitcnt vmcnt({len(issued) - 1 - last})')
            if ks in (0, 6): s.fstamp(f'gamma ks{ks}', 'gamma')
            if ks == 12:
                a(f'''s_mul_i32 s47, s46, 229376
s_and_b32 s48, s41, 1
s_mul_i32 s48, s48, {2*57344}
s_add_u32 s47, s47, s48
s_mul_i32 s48, s40, 7
s_lshr_b32 s48, s48, 1
s_lshl_b32 s48, s48, 10
s_add_u32 s47, s47, s48
s_add_u32 s47, s47, {HO + LAYOFF*s.lay}
s_add_u32 s48, s47, 57344
v_lshlrev_b32 v249, 3, v0''')
            for ft in range(7):
                n = 7*ks + ft
                a(f's_waitcnt lgkmcnt({2*min(6, 111-n)})')
                r = A + 4*(n % 8)
                for rt in range(2):
                    c = C + 8*ft + 4*rt
                    src = '0' if ks == 0 else f'v[{c}:{c+3}]'
                    a(f'v_mfma_f32_16x16x32_bf16 v[{c}:{c+3}], v[{r}:{r+3}], v[{XB+8*ks+4*rt}:{XB+8*ks+4*rt+3}], {src}')
                    if n + 7 < 112: rd(n + 7, rt)
                if ks == 15 and ft >= 2: pack(ft - 2)
                if ft in (1, 4):
                    if s.lay == 1 and ft == 4 and s.gx1: pass
                    elif nx[0] < 16: ldx(nx[0]); nx[0] += 1
                    elif s.lay == 0 and s.t2 == 1 and not th[0]:
                        th[0] = 1
                        s.h_touch(52, 53, 254, 255); issued.append('t')
                    elif s.lay == 0 and nw2[0] < 56:
                        k = min(max(1, (56 - s.nw2b + 18) // 19), 56 - nw2[0])
                        s.w2_issue(nw2[0], nw2[0] + k, 250, 55); issued.extend(['w']*k); nw2[0] += k
        pack(5); pack(6)
        if s.lay == s.finel: s.stamp('gamma mfma done')
        if s.lay == 0:
            s.w2_issue(nw2[0], 56, 250, 55)
        od = s.label('ODD'); jn = s.label('GJ')
        a(f's_bitcmp1_b32 s40, 0\ns_cbranch_scc1 {od}')
        def st_even(f):
            for rt in range(2):
                p = P + 16*rt
                for k in range(3): a(f'buffer_store_dwordx4 v[{p+4*k}:{p+4*k+3}], v5, s[28:31], s{47+rt} offen offset:{1024*k}{f}')
                a(f'buffer_store_dwordx2 v[{p+12}:{p+13}], v249, s[28:31], s{47+rt} offen offset:3072{f}')
        s.dual(st_even)
        a(f's_branch {jn}\n{od}:')
        def st_odd(f):
            for rt in range(2):
                p = P + 16*rt
                a(f'buffer_store_dwordx2 v[{p}:{p+1}], v249, s[28:31], s{47+rt} offen offset:512{f}')
                for k in range(3): a(f'buffer_store_dwordx4 v[{p+2+4*k}:{p+5+4*k}], v5, s[28:31], s{47+rt} offen offset:{1024*(k+1)}{f}')
        s.dual(st_odd)
        a(f'{jn}:')
    def delta_addr(s):
        a = s.a
        a('''
s_lshl_b32 s47, s38, 16
s_lshl_b32 s48, s41, 14
s_add_u32 s47, s47, s48
s_lshl_b32 s48, s39, 7
s_add_u32 s47, s47, s48
v_lshlrev_b32 v6, 10, v1
v_lshl_add_u32 v6, v2, 3, v6
v_add_u32 v6, s47, v6
v_lshlrev_b32 v5, 4, v0''')
    def delta(s, layer):
        a = s.a
        C, R, X = 8, 72, 200
        a(f's_mov_b32 s49, {X1O + LAYOFF*layer}\nv_lshlrev_b32 v7, 3, v0')
        a(f's_mul_i32 s47, s38, 229376\ns_mul_i32 s48, s41, 14336\ns_add_u32 s47, s47, s48\ns_add_u32 s47, s47, {HO + LAYOFF*layer}')
        for sl in range(4):
            a(f's_add_u32 s48, s41, {sl}\ns_and_b32 s48, s48, 3\ns_mul_i32 s48, s48, 57344\ns_add_u32 s{50+sl}, s47, s48')
        issued = []
        def ld(st):
            for sl in range(4):
                r = R + 16*(st & 7) + 4*sl
                if st in (3, 10):
                    a(f'buffer_load_dwordx2 v[{r}:{r+1}], v7, s[28:31], s{50+sl} offen offset:{1024*(st&3)}{s.ldf}')
                    a(f'buffer_load_dwordx2 v[{r+2}:{r+3}], v7, s[28:31], s{50+sl} offen offset:{1024*(st&3)+512}{s.ldf}')
                    issued.extend([st, st])
                else:
                    a(f'buffer_load_dwordx4 v[{r}:{r+3}], v5, s[28:31], s{50+sl} offen offset:{1024*(st&3)}{s.ldf}')
                    issued.append(st)
            if (st & 3) == 3:
                for sl in range(4): a(f's_add_u32 s{50+sl}, s{50+sl}, 4096')
        for st in range(3): ld(st)
        nl = [3]
        def red_w(sl):
            for nt in range(4):
                c = C + 16*sl + 4*nt
                a(f'ds_write_b128 v{72+sl}, v[{c}:{c+3}] offset:{4096*(sl-1)+1024*nt}')
        for st in range(14):
            last = max(k for k, t in enumerate(issued) if t == st)
            ops = []
            if layer == 0:
                a(f's_waitcnt vmcnt({len(issued) - 1 - last}) lgkmcnt({12 if st < 13 else 0})')
                if st + 2 < 14: ops = s.w2t_ops(st + 2)
                if st == 13: a('s_barrier')
            else:
                a(f's_waitcnt vmcnt({len(issued) - 1 - last})')
            if st in (0, 4, 8): s.fstamp(f'delta st{st}', 'delta')
            for sl in ((0, 1, 2, 3) if st < 13 else (1, 2, 3, 0)):
                for nt in range(4):
                    c = C + 16*sl + 4*nt; r = R + 16*(st & 7) + 4*sl
                    src = '0' if st == 0 else f'v[{c}:{c+3}]'
                    a(f'v_mfma_f32_16x16x32_bf16 v[{c}:{c+3}], a[{16*st+4*nt}:{16*st+4*nt+3}], v[{r}:{r+3}], {src}')
                    if ops: a(ops.pop(0))
                if st == 13 and sl in (2, 3, 0): red_w({2: 1, 3: 2, 0: 3}[sl])
            for _ in range(2):
                if nl[0] < 14 and nl[0] <= st + 8: ld(nl[0]); nl[0] += 1
            if st == 6:
                for nt in range(4):
                    a(f'buffer_load_dwordx2 v[{X+2*nt}:{X+2*nt+1}], v6, s[28:31], s49 offen offset:{32*nt}{s.ldf}'); issued.append('x')
                if layer == 0: s.alpha_consts(208, 228); issued.extend(['c']*4)
            if st == 10:
                a(f'v_add_u32 v72, {LS}, v5')
                for sl in range(1, 4):
                    a(f's_add_u32 s47, s41, {sl}\ns_and_b32 s47, s47, 3\ns_mul_i32 s47, s47, 12288\nv_add_u32 v{72+sl}, s47, v72')
                a('s_mul_i32 s47, s41, 12288\nv_add_u32 v72, s47, v72')
                if layer == 0:
                    a(f'''s_lshl_b32 s47, s38, 13
s_lshl_b32 s48, s41, 11
s_add_u32 s47, s47, s48
s_add_u32 s47, s47, {STO}
s_lshl_b32 s48, s39, 4
s_add_u32 s48, s48, s47
v_lshlrev_b32 v80, 7, v1
s_add_u32 s56, s42, 48
v_mov_b32 v81, s56''')
                else:
                    a('''s_lshl_b32 s47, s41, 1
v_lshrrev_b32 v7, 3, v1
v_add_u32 v7, s47, v7
v_lshrrev_b32 v76, 2, v7
v_and_b32 v7, 3, v7
v_lshl_add_u32 v76, v7, 4, v76
v_and_b32 v7, 7, v1
v_lshl_add_u32 v76, v7, 1, v76
v_lshlrev_b32 v76, 5, v76
v_add_u32 v76, s38, v76
v_lshlrev_b32 v76, 10, v76
v_lshl_add_u32 v82, v2, 3, v76
s_lshl_b32 s47, s39, 7''')
        if layer == s.finel: s.stamp('delta mfma done')
        s.fstamp('dtail mfma done', 'dtail')
        a('s_waitcnt lgkmcnt(0)\ns_barrier')
        s.fstamp('dtail bar2', 'dtail')
        for sl in range(1, 4):
            for nt in range(4):
                c = C + 16*sl + 4*nt
                a(f'ds_read_b128 v[{c}:{c+3}], v72 offset:{4096*(sl-1)+1024*nt}')
        a('s_waitcnt vmcnt(0)')
        for nt in range(4):
            for k in range(2):
                a(f'''v_lshlrev_b32 v76, 16, v{X+2*nt+k}
v_and_b32 v77, 0xffff0000, v{X+2*nt+k}
v_add_f32 v{C+4*nt+2*k}, v{C+4*nt+2*k}, v76
v_add_f32 v{C+4*nt+2*k+1}, v{C+4*nt+2*k+1}, v77''')
        for sl in range(1, 4):
            a(f's_waitcnt lgkmcnt({4*(3-sl)})')
            for k in range(16): a(f'v_add_f32 v{C+k}, v{C+k}, v{C+16*sl+k}')
        s.fstamp('dtail reduced', 'dtail')
        for k in range(8): a(f'v_cvt_pk_bf16_f32 v{X+k}, v{C+2*k}, v{C+2*k+1}')
        if layer == 1:
            for nt in range(4): a(f'buffer_store_dwordx2 v[{X+2*nt}:{X+2*nt+1}], v82, s[24:27], s47 offen offset:{32*nt}')
            return
        a(f'v_add_f32 v76, v{C}, v{C+1}\nv_mul_f32 v78, v{C}, v{C}\nv_fma_f32 v78, v{C+1}, v{C+1}, v78')
        for k in range(2, 16): a(f'v_add_f32 v76, v76, v{C+k}\nv_fma_f32 v78, v{C+k}, v{C+k}, v78')
        s.wave_reduce([76, 78], 82, rows=False)
        a('v_mov_b32 v77, v81\nv_mov_b32 v79, v81')
        def st(f):
            a('s_mov_b64 exec, 0xffff')
            a(f'buffer_store_dwordx4 v[76:79], v80, s[28:31], s48 offen{f}')
            a('s_mov_b64 exec, -1')
        s.dual(st)
        s.fstamp('dtail granule', 'dtail')
    def delta_norm(s):
        a = s.a
        C = 8
        lp = s.label('SP'); dn = s.label('SD')
        a(f'''v_lshl_add_u32 v80, v2, 5, v80
s_mov_b32 s58, 0x40000
{lp}:
buffer_load_dwordx4 v[72:75], v80, s[28:31], s47 offen sc1
buffer_load_dwordx4 v[76:79], v80, s[28:31], s47 offen offset:16 sc1
s_waitcnt vmcnt(0)
v_cmp_ne_u32 vcc, s56, v73
v_cmp_ne_u32 s[48:49], s56, v75
s_nop 1
s_or_b64 vcc, vcc, s[48:49]
v_cmp_ne_u32 s[48:49], s56, v77
s_nop 1
s_or_b64 vcc, vcc, s[48:49]
v_cmp_ne_u32 s[48:49], s56, v79
s_nop 1
s_or_b64 vcc, vcc, s[48:49]
s_cbranch_vccz {dn}
s_sub_u32 s58, s58, 1
s_cmp_lg_u32 s58, 0
s_cbranch_scc1 {lp}
{dn}:
v_add_f32 v76, v72, v76
v_add_f32 v77, v74, v78''')
        s.stamp('stats poll')
        s.fstamp('dtail stats', 'dtail')
        def stx(f):
            for nt in range(4): a(f'buffer_store_dwordx2 v[{200+2*nt}:{201+2*nt}], v6, s[28:31], s57 offen offset:{32*nt}{f}')
        a(f's_mov_b32 s57, {X2O}')
        s.dual(stx)
        s.wave_reduce([76, 77], 78, rows=False)
        s.finish_stats(76, 77)
        for k in range(0, 16, 2): a(f'v_fma_f32 v{C+k}, v{C+k}, v76, v77\nv_fma_f32 v{C+k+1}, v{C+k+1}, v76, v77\nv_cvt_pk_bf16_f32 v{C+k//2}, v{C+k}, v{C+k+1}')
        for nt in range(4):
            a(f'ds_write_b64 v{226 if nt < 2 else 227}, v[{C+2*nt}:{C+2*nt+1}] offset:{16*(nt&1)}')
    def xtile_addr(s):
        s.a(f'''
s_mul_i32 s48, s41, 12288
s_add_u32 s48, s48, {LS}
v_bfe_u32 v226, v1, 1, 1
v_bfe_u32 v227, v1, 3, 1
v_lshl_or_b32 v226, v227, 1, v226
v_and_b32 v227, 1, v2
v_xor_b32 v226, v226, v227
v_lshlrev_b32 v226, 5, v226
v_lshrrev_b32 v227, 1, v2
v_lshl_add_u32 v226, v227, 3, v226
v_lshl_add_u32 v226, v1, 7, v226
v_add_u32 v226, s48, v226
v_xor_b32 v227, 64, v226''')
    def bar_addr(s, arr, v):
        s.a(f'''
v_lshrrev_b32 v{v}, 1, v0
v_and_b32 v{v+1}, 3, v{v}
v_lshrrev_b32 v{v}, 2, v{v}
v_lshl_add_u32 v{v}, v{v+1}, 6, v{v}
v_and_b32 v{v+1}, 1, v0
v_lshl_add_u32 v{v}, v{v+1}, 3, v{v}
s_lshl_b32 s47, s41, 4
v_add_u32 v{v}, s47, v{v}
v_lshlrev_b32 v{v}, 6, v{v}
v_add_u32 v{v}, {FLO + arr*0x8000}, v{v}''')
    def barrier0(s):
        a = s.a; pf = s.label('PF'); jn = s.label('PJ'); lp = s.label('BP'); dn = s.label('BD')
        if s.pwb:
            s.bar_addr(0, 222)
            a('s_mov_b32 s56, s42')
            s.poll(222, 223, 56, maskxcc=True)
            a('''v_and_b32 v223, 15, v223
v_cmp_ne_u32 vcc, s59, v223
s_lshl_b32 s47, s36, 3
s_lshl_b64 s[48:49], 0xff, s47
s_and_b64 s[48:49], s[48:49], vcc
s_cmp_lg_u64 s[48:49], 0
s_cselect_b32 s53, 1, 0''')
            return
        a(f's_mov_b32 s53, 0\ns_cmp_ge_u32 s41, 2\ns_cbranch_scc1 {pf}')
        s.bar_addr(0, 222)
        a(f'''s_mov_b32 s56, s42
s_mov_b32 s58, 0x40000
{lp}:
buffer_load_dword v223, v222, s[28:31], 0 offen sc1
buffer_load_dword v224, v222, s[28:31], 0 offen offset:2048 sc1
s_waitcnt vmcnt(0)
v_and_b32 v225, 0xfffffff0, v223
v_and_b32 v226, 0xfffffff0, v224
v_cmp_ne_u32 vcc, s56, v225
v_cmp_ne_u32 s[48:49], s56, v226
s_nop 4
s_or_b64 vcc, vcc, s[48:49]
s_cbranch_vccz {dn}
s_sub_u32 s58, s58, 1
s_cmp_lg_u32 s58, 0
s_cbranch_scc1 {lp}
{dn}:
v_and_b32 v223, 15, v223
v_and_b32 v224, 15, v224
v_cmp_ne_u32 vcc, s59, v223
v_cmp_ne_u32 s[48:49], s59, v224
s_nop 4
s_or_b64 vcc, vcc, s[48:49]
s_lshl_b32 s47, s36, 3
s_lshl_b64 s[48:49], 0xff, s47
s_and_b64 s[48:49], s[48:49], vcc
s_cmp_lg_u64 s[48:49], 0
s_cselect_b32 s53, 1, 0
s_branch {jn}
{pf}:''')
        if s.pf1 == 2:
            a('''s_mul_i32 s54, s37, 57344
s_sub_u32 s55, s41, 2
s_lshl_b32 s55, s55, 15
s_add_u32 s54, s54, s55
s_cmp_eq_u32 s41, 3
s_cselect_b32 s55, 0, 8192
v_lshlrev_b32 v240, 7, v0
buffer_load_dword v241, v240, s[16:19], s54 offen
s_add_u32 s54, s54, 8192
buffer_load_dword v242, v240, s[16:19], s54 offen
s_add_u32 s54, s54, 8192
buffer_load_dword v243, v240, s[16:19], s54 offen
s_add_u32 s54, s54, s55
buffer_load_dword v244, v240, s[16:19], s54 offen''')
        a(f'{jn}:\ns_barrier')
    def grp16_base(s, arr, dst):
        s.a(f'''s_lshr_b32 s{dst}, s37, 4
s_lshl_b32 s48, s36, 1
s_add_u32 s{dst}, s{dst}, s48
s_lshl_b32 s{dst}, s{dst}, 8
s_add_u32 s{dst}, s{dst}, {FLO + arr*0x8000}''')
    def grp16_poll(s, arr):
        s.grp16_base(arr, 47)
        s.a(f'''s_lshl_b32 s48, s41, 6
s_add_u32 s47, s47, s48
v_lshlrev_b32 v222, 2, v1
v_add_u32 v222, s47, v222
s_add_u32 s56, s42, {16*arr}''')
        s.poll(222, 223, 56)
    def grp16_signal(s, arr):
        s.grp16_base(arr, 54)
        s.a('s_lshl_b32 s48, s40, 4\ns_add_u32 s54, s54, s48\ns_lshl_b32 s48, s41, 2\ns_add_u32 s54, s54, s48')
        s.wave_signal(arr, 54)
    def dump_stamps(s):
        if not s.stamps: return
        a = s.a
        a(f's_lshl_b32 s47, s2, 2\ns_add_u32 s47, s47, s41\ns_lshl_b32 s47, s47, 7\ns_add_u32 s47, s47, {DBO}\nv_mov_b32 v5, s47\ns_mov_b64 exec, 1')
        for k in range(s.nst):
            a(f'v_mov_b32 v6, s{60+2*k}\nbuffer_store_dword v6, v5, s[28:31], 0 offen offset:{4*k}')
        for k, r in enumerate((43, 59, 53, 98, 100)):
            a(f'v_mov_b32 v6, s{r}\nbuffer_store_dword v6, v5, s[28:31], 0 offen offset:{4*(24+k)}')
        a('s_mov_b64 exec, -1')
    def build(s):
        a = s.a
        s.prologue()
        s.alpha_in1(); s.alpha_consts(128); s.g_load()
        npre = 0
        if s.pretouch:
            a(f'v_lshlrev_b32 v95, 20, v0\nv_min_u32 v95, {WSZ - 4}, v95\nbuffer_load_dword v96, v95, s[28:31], 0 offen\nv_and_b32 v95, 1, v0\nv_lshlrev_b32 v95, 20, v95\nbuffer_load_dword v96, v95, s[24:27], 0 offen')
            npre = 2
        if s.cpf:
            a(f'''s_lshl_b32 s47, s37, 12
s_lshl_b32 s48, s41, 10
s_add_u32 s47, s47, s48
v_lshlrev_b32 v95, 4, v0
v_add_u32 v95, s47, v95
v_min_u32 v95, TABLE-{KN}_kernel+{len(tables())*4 - 16}, v95
s_sub_u32 s48, s44, TABLE-{KN}_kernel
s_subb_u32 s49, s45, 0
global_load_dwordx4 v[248:251], v95, s[48:49]''')
            npre += 1
        if s.htouch:
            if s.htouch == 1:
                a(f'v_min_u32 v238, 6, v0\nv_lshlrev_b32 v238, 12, v238\ns_mov_b32 s55, 0')
            else:
                a(f'v_min_u32 v238, 55, v0\nv_lshlrev_b32 v238, 7, v238\ns_mul_i32 s55, s41, 7168')
            a(f's_mul_i32 s54, s38, 229376\ns_add_u32 s54, s54, s55\ns_mul_i32 s55, s39, 28672\ns_add_u32 s54, s54, s55\ns_add_u32 s54, s54, {HO}\nbuffer_load_dword v239, v238, s[28:31], s54 offen sc1')
            npre += 1
        if s.pf1 == 1: s.touch(16, 240); npre += 2
        if s.pf2 == 1: s.touch(20, 244); npre += 2
        s.w1_load()
        if s.w1e:
            a(f's_mul_i32 s54, s40, 224\ns_mul_i32 s55, s41, {4*32*3584}\ns_add_u32 s54, s54, s55')
            it = s.w1_items()
            for x in it[:s.w1e]: a(x)
            npre += s.w1e
        a(f's_waitcnt vmcnt({6 + npre})')
        s.stamp('x arrived')
        if s.w1e:
            for x in it[s.w1e:]: a(x)
            npre += 28 - s.w1e
        a('v_mov_b32 v95, 0\nbuffer_load_dword v95, v95, s[32:35], 0 offen sc1')
        s.alpha_ln1()
        a(f's_waitcnt vmcnt({3 + npre}) lgkmcnt(0)\ns_barrier')
        s.alpha_core(128, AD0)
        s.fstamp('alpha stores issued', 'alpha')
        a('s_waitcnt vmcnt(0)')
        dn = s.label('ND')
        a(f'''v_readfirstlane_b32 s42, v95
s_cmp_lg_u32 s42, 0
s_cbranch_scc1 {dn}''')
        s.get_nonce()
        a(f'{dn}:')
        a('s_lshl_b32 s54, s2, 6')
        s.signal(0, 54, 0, dual=False, xcc=True, vm=0)
        s.stamp('sig0')
        s.g_make()
        if s.w1e: s.w1_store()
        s.beta_consts(); s.beta_addr(0)
        for layer in range(2):
            arr = 4*layer; s.lay = layer
            if layer == 1:
                a('s_waitcnt lgkmcnt(0)\ns_barrier')
                s.lay = 0; s.fstamp('dtail xtile', 'dtail')
                s.alpha_core(208, AD1)
                s.fstamp('dtail AD issued', 'dtail'); s.lay = 1
                a('s_lshl_b32 s54, s2, 6')
                s.signal(4, 54, 4, dual=False)
                s.stamp('sig4')
                s.lay = 0; s.fstamp('dtail sig4', 'dtail'); s.lay = 1
                s.beta_consts(); s.beta_addr(1)
            if layer == 0: s.barrier0()
            else:
                s.bar_addr(arr, 222)
                a(f's_add_u32 s56, s42, {16*arr}')
                s.poll(222, 223, 56)
            s.stamp('bar done')
            s.beta_main(layer)
            s.grp16_signal(arr + 1)
            if layer == s.finel: s.stamp('beta sig')
            if s.stop == f'beta{layer}': return s.end()
            if layer == 0 and not s.w1e: s.w1_store()
            s.grp16_poll(arr + 1)
            if layer == 0 and not s.w1e: a('s_waitcnt lgkmcnt(0)\ns_barrier')
            s.stamp('beta poll')
            s.gamma()
            s.grp16_signal(arr + 2)
            if layer == s.finel: s.stamp('gamma sig')
            if s.stop == f'gamma{layer}': return s.end()
            if layer == 0: s.w2_transpose(0, 2, LS + 32768)
            s.delta_addr()
            if layer == 0: s.xtile_addr()
            s.grp16_poll(arr + 2)
            s.stamp('gamma poll')
            s.delta(layer)
            if layer == 0:
                s.delta_norm()
                if s.stop == 'delta0': return s.end()
        return s.end()
    def end(s):
        a = s.a
        s.stamp('end')
        if s.stamps: a('s_memtime s[100:101]\ns_waitcnt lgkmcnt(0)')
        s.dump_stamps()
        a('END:\ns_endpgm')
        body, nn = a.finish()
        tab = tables()
        t = '\n'.join('.long ' + ','.join('0x%08x' % x for x in tab[i:i+8]) for i in range(0, len(tab), 8))
        hdr = open('cdna_kernels/' + KN + '.s.ref').read().split('; Override')[0]
        txt = hdr + f'''; Single persistent kernel: LN + FFT-factorised FNet mixing + FFN GEMMs, 256 workgroups (one per CU).
; @launch grid=(256,1,1) block=(256,1,1) lds=163840
.amdgcn_target "amdgcn-amd-amdhsa--gfx950"
.text
.globl {KN}_kernel
.p2align 8
.type {KN}_kernel,@function
{KN}_kernel:
{body}
.p2align 8
.type TABLE,@object
TABLE:
{t}
.size TABLE, {len(tab)*4}
.section .rodata,"a"
.p2align 6
.amdhsa_kernel {KN}_kernel
  .amdhsa_next_free_vgpr 512
  .amdhsa_next_free_sgpr 102
  .amdhsa_accum_offset 256
  .amdhsa_group_segment_fixed_size 0
  .amdhsa_kernarg_size 88
  .amdhsa_user_sgpr_count 2
  .amdhsa_user_sgpr_kernarg_segment_ptr 1
  .amdhsa_system_sgpr_workgroup_id_x 1
  .amdhsa_float_denorm_mode_32 3
.end_amdhsa_kernel
'''
        return txt
if __name__ == '__main__':
    import argparse
    ap = argparse.ArgumentParser(); ap.add_argument('out'); ap.add_argument('--stop'); ap.add_argument('--stamps', action='store_true'); ap.add_argument('--slow', action='store_true'); ap.add_argument('--fine'); ap.add_argument('--pre', action='store_true'); ap.add_argument('--cpf', action='store_true'); ap.add_argument('--nt', action='store_true'); ap.add_argument('--adsc1', action='store_true'); ap.add_argument('--wsoff', type=lambda x: int(x, 0), default=0); ap.add_argument('--gx0', type=int, default=4); ap.add_argument('--gx1', type=int, default=0); ap.add_argument('--w1e', type=int, default=1); ap.add_argument('--t1', type=int, default=0); ap.add_argument('--t2', type=int, default=1); ap.add_argument('--stf', default=''); ap.add_argument('--htouch', type=int, default=0); ap.add_argument('--pf1', type=int, default=0); ap.add_argument('--pf2', type=int, default=0); ap.add_argument('--nw2b', type=int, default=28); ap.add_argument('--every', type=int, default=12); ap.add_argument('--dma', type=int, default=1); ap.add_argument('--pwb', type=int, default=1)
    o = ap.parse_args()
    g = Gen(o.stop, o.stamps, o.slow, o.fine); g.pretouch = o.pre; g.cpf = o.cpf; g.nt = ' nt' if o.nt else ''; g.adf = ' sc1'; g.t1 = o.t1; g.t2 = o.t2; g.pf1 = o.pf1; g.w1e = o.w1e; g.gx0 = o.gx0; g.gx1 = o.gx1; g.wsoff = o.wsoff; g.stf = (' ' + o.stf.replace('+', ' ')) if o.stf else ''; g.htouch = o.htouch; g.pf2 = o.pf2; g.nw2b = o.nw2b; g.every = o.every; g.dma = o.dma; g.pwb = o.pwb
    open(o.out, 'w').write(g.build())
```

```python
import sys, numpy as np
sys.path.insert(0, 'work')
from asmlib import Asm
KN = "interleave_layers__spectral_fnet__dense_activation_relu__prompt"
AD0, AD1, X1O, X2O, XNO, HO, STO, FLO, DBO = 0x0, 0x200000, 0x400000, 0x400000, 0x800000, 0xA00000, 0x1200000, 0x1300000, 0x1380000
WSZ = 0x1400000
LAYOFF = 0
LW1 = 0; LS = 114688
def bf16(x):
    u = np.ascontiguousarray(x, dtype=np.float32).view(np.uint32)
    return ((u + 0x7FFF + ((u >> 16) & 1)) >> 16).astype(np.uint16)
def s1_of_rho(r): return ((r >> 3) >> 2) + 16 * ((r >> 3) & 3) + 2 * (r & 7)
def tables():
    l = np.arange(64); n = l & 15; q = l >> 4; kk = np.arange(8)
    T = []
    for mt in range(4):
        for ks in range(2):
            m = (16 * mt + n)[:, None]; rho = 32 * ks + 8 * q[:, None] + kk[None, :]; s1 = s1_of_rho(rho)
            v = np.where(m <= 32, np.cos(2*np.pi*((m*s1) % 64)/64), -np.sin(2*np.pi*(((m-32)*s1) % 64)/64))
            T.append(bf16(v).reshape(-1).view(np.uint32))
    ri = (q >> 1)[:, None]; d1 = 8 * (q & 1)[:, None] + kk[None, :]; th = 2*np.pi*((d1 * n[:, None]) % 16)/16
    T.append(bf16(np.where(ri == 0, np.cos(th), np.sin(th))).reshape(-1).view(np.uint32))
    T.append(bf16(np.where(ri == 0, -np.sin(th), np.cos(th))).reshape(-1).view(np.uint32))
    d2 = 16 * (kk >> 2)[None, :] + 4 * q[:, None] + (kk & 3)[None, :]
    for T2 in range(2):
        e2 = (16 * T2 + n)[:, None]; ph = 2*np.pi*((d2 * e2) % 32)/32
        T.append(bf16(np.cos(ph)).reshape(-1).view(np.uint32)); T.append(bf16(np.sin(ph)).reshape(-1).view(np.uint32))
    for fn in (np.cos, np.sin):
        for Tt in range(2):
            dd = 16 * Tt + 4 * q[:, None] + np.arange(4)[None, :]
            T.append(fn(2*np.pi*(dd * n[:, None])/512).astype(np.float32).reshape(-1).view(np.uint32))
    return np.concatenate(T)
TF64, TF16, TH32, TTW = 0, 8192, 10240, 14336

class Gen:
    def __init__(s, stop=None, stamps=False, force_slow=False, fine=None):
        s.finel = 0
        if fine and fine[-1] == '1': fine = fine[:-1]; s.finel = 1
        s.fine = fine; s.lay = 0; s.pretouch = False; s.cpf = False; s.nt = ''; s.adf = ' sc1'; s.t1 = 1; s.t2 = 1; s.w1e = 0; s.gx0 = 5; s.gx1 = 1; s.wsoff = 0; s.stf = ''; s.ldf = ' sc1'; s.htouch = 0; s.pf1 = 1; s.pf2 = 1; s.nw2b = 28; s.every = 7; s.dma = 1; s.pwb = 1; s.w1d = None
        s.a = Asm(); s.stop = stop; s.stamps = stamps; s.nst = 0; s.lab = 0; s.force_slow = force_slow
    def label(s, p='L'):
        s.lab += 1; return f'{p}_{s.lab}'
    def fstamp(s, name, grp):
        if s.fine == grp and s.lay == s.finel: s.stamp(name)
    def stamp(s, name=''):
        if not s.stamps: return
        if s.fine and name not in ('start', 'end') and not name.startswith(s.fine) and name not in ('beta poll', 'gamma poll', 'bar done'): return
        k = 60 + 2 * s.nst; s.nst += 1
        assert k + 1 <= 97
        s.a(f's_memrealtime s[{k}:{k+1}]\ns_waitcnt lgkmcnt(0)')
    def dual(s, fn):
        a = s.a; l1 = s.label('SLOW'); l2 = s.label('JOIN')
        a(f's_cmp_eq_u32 s43, 0\ns_cbranch_scc1 {l1}')
        fn(s.stf); a(f's_branch {l2}\n{l1}:'); fn(' sc1'); a(f'{l2}:')
    def poll(s, vaddr, vtmp, sexp, maskxcc=False):
        a = s.a; lp = s.label('POLL'); dn = s.label('PD')
        a(f's_mov_b32 s58, 0x40000\n{lp}:')
        a(f'buffer_load_dword v{vtmp}, v{vaddr}, s[28:31], 0 offen sc1\ns_waitcnt vmcnt(0)')
        if maskxcc:
            a(f'v_and_b32 v{vtmp+1}, 0xfffffff0, v{vtmp}\nv_cmp_ne_u32 vcc, s{sexp}, v{vtmp+1}')
        else:
            a(f'v_cmp_ne_u32 vcc, s{sexp}, v{vtmp}')
        a(f's_nop 4\ns_cbranch_vccz {dn}\ns_sub_u32 s58, s58, 1\ns_cmp_lg_u32 s58, 0\ns_cbranch_scc1 {lp}\n{dn}:')
    def wave_signal(s, arr, soff):
        a = s.a
        a(f's_add_u32 s57, s42, {16*arr}\nv_mov_b32 v222, s57\nv_mov_b32 v223, s{soff}\ns_waitcnt vmcnt(0)\ns_mov_b64 exec, 1')
        s.dual(lambda f: a(f'buffer_store_dword v222, v223, s[28:31], 0 offen{f}'))
        a('s_mov_b64 exec, -1')
    def signal(s, arr, soff_expr_sgpr, phase, dual=True, xcc=False, vm=0):
        a = s.a; sk = s.label('SIG')
        a(f's_waitcnt vmcnt({vm})\ns_barrier')
        a(f's_cmp_lg_u32 s41, 0\ns_cbranch_scc1 {sk}')
        a(f's_add_u32 s57, s42, {16*phase}')
        if xcc: a('s_add_u32 s57, s57, s59')
        a(f'v_mov_b32 v5, s57\nv_mov_b32 v6, {FLO + arr*0x8000}\nv_add_u32 v6, s{soff_expr_sgpr}, v6')
        a('s_mov_b64 exec, 1')
        if dual: s.dual(lambda f: a(f'buffer_store_dword v5, v6, s[28:31], 0 offen{f}'))
        else: a('buffer_store_dword v5, v6, s[28:31], 0 offen sc1')
        a(f's_mov_b64 exec, -1\n{sk}:')

    def prologue(s):
        a = s.a
        a(f'''
s_cmp_ge_u32 s2, 256
s_cbranch_scc1 END
s_load_dwordx4 s[4:7], s[0:1], 0
s_load_dwordx2 s[12:13], s[0:1], 16
s_load_dwordx4 s[16:19], s[0:1], 48
s_load_dwordx4 s[24:27], s[0:1], 64
s_load_dwordx2 s[28:29], s[0:1], 80
s_getreg_b32 s59, hwreg(HW_REG_XCC_ID, 0, 4)
s_getpc_b64 s[44:45]
PCL:
s_add_u32 s44, s44, TABLE-PCL
s_addc_u32 s45, s45, 0
v_lshrrev_b32 v5, 6, v0
v_and_b32 v0, 63, v0
s_and_b32 s36, s2, 7
s_lshr_b32 s37, s2, 3
v_readfirstlane_b32 s41, v5
s_lshr_b32 s47, s37, 4
s_lshl_b32 s46, s36, 1
s_add_u32 s46, s46, s47
s_sub_u32 s48, 32, s46
s_cmp_eq_u32 s46, 0
s_cselect_b32 s48, 16, s48
s_bitcmp1_b32 s37, 3
s_cselect_b32 s38, s48, s46
s_and_b32 s39, s37, 7
s_and_b32 s40, s37, 15
s_bitcmp1_b32 s41, 1
s_cselect_b32 s46, s48, s46
v_and_b32 v1, 15, v0
v_lshrrev_b32 v2, 4, v0
v_bfe_u32 v3, v0, 2, 2
v_and_b32 v4, 3, v0
s_waitcnt lgkmcnt(0)
s_mov_b32 s8, s6
s_mov_b32 s9, s7
s_mov_b32 s32, s26
s_mov_b32 s33, s27
s_mov_b32 s20, s18
s_mov_b32 s21, s19
s_mov_b32 s6, 0x200000
s_mov_b32 s7, 0x20000
s_mov_b32 s10, 0x800000
s_mov_b32 s11, 0x20000
s_mov_b32 s14, 0x800000
s_mov_b32 s15, 0x20000
s_mov_b32 s18, 1835008
s_mov_b32 s19, 0x20000
s_mov_b32 s22, 1835008
s_mov_b32 s23, 0x20000
s_mov_b32 s26, 0x200000
s_mov_b32 s27, 0x20000
s_mov_b32 s30, {WSZ}
s_mov_b32 s31, 0x20000
s_mov_b32 s34, 256
s_mov_b32 s35, 0x20000
s_mov_b32 s43, 0
s_add_u32 s28, s28, {s.wsoff}
s_addc_u32 s29, s29, 0
''')
        s.stamp('start')
        if s.stamps: a('s_memtime s[98:99]\ns_waitcnt lgkmcnt(0)')
        sk = s.label('NON')
        a(f'''
s_cmp_lg_u32 s2, 0
s_cbranch_scc1 {sk}
s_cmp_lg_u32 s41, 0
s_cbranch_scc1 {sk}
s_memrealtime s[56:57]
s_waitcnt lgkmcnt(0)
s_lshl_b32 s56, s56, 8
s_or_b32 s56, s56, 0x80000000
v_mov_b32 v5, s56
v_mov_b32 v6, 0
s_mov_b64 exec, 1
buffer_store_dword v5, v6, s[32:35], 0 offen sc1
s_mov_b64 exec, -1
{sk}:''')
    def alpha_consts(s, base, t=5):
        a = s.a
        a(f's_lshr_b32 s47, s41, 1\ns_lshl_b32 s47, s47, 12\nv_lshlrev_b32 v{t}, 4, v0\nv_add_u32 v{t}, s47, v{t}')
        for k in range(4): a(f'global_load_dwordx4 v[{base+4*k}:{base+4*k+3}], v{t}, s[44:45] offset:{1024*k}')
    def alpha_in1(s):
        a = s.a
        a(f'''
v_lshrrev_b32 v6, 2, v0
v_bfe_u32 v7, v6, 3, 1
s_lshl_b32 s47, s41, 1
v_add_u32 v7, s47, v7
v_lshrrev_b32 v8, 2, v7
v_and_b32 v7, 3, v7
v_lshl_add_u32 v8, v7, 4, v8
v_and_b32 v7, 7, v6
v_lshl_add_u32 v8, v7, 1, v8
v_lshlrev_b32 v8, 5, v8
v_add_u32 v8, s38, v8
v_lshlrev_b32 v8, 10, v8
v_lshl_add_u32 v8, v4, 4, v8
s_lshl_b32 s47, s39, 7''')
        for i in range(16):
            a(f'buffer_load_dwordx4 v[{16+4*i}:{19+4*i}], v8, s[4:7], s47 offen')
            if i < 15: a('s_add_u32 s47, s47, 64\ns_and_b32 s47, s47, 1023')
    def alpha_ln1(s):
        a = s.a
        a('s_mov_b32 s47, 0x3f803f80\nv_mov_b32 v9, 0\nv_mov_b32 v10, 0\nv_mov_b32 v11, 0\nv_mov_b32 v12, 0')
        for i in range(0, 64, 2):
            a(f'v_dot2_f32_bf16 v9, v{16+i}, s47, v9\nv_dot2_f32_bf16 v10, v{16+i}, v{16+i}, v10')
            a(f'v_dot2_f32_bf16 v11, v{17+i}, s47, v11\nv_dot2_f32_bf16 v12, v{17+i}, v{17+i}, v12')
        a('''v_add_f32 v9, v9, v11
v_add_f32 v10, v10, v12
v_add_f32_dpp v9, v9, v9 quad_perm:[1,0,3,2] row_mask:0xf bank_mask:0xf
v_add_f32_dpp v10, v10, v10 quad_perm:[1,0,3,2] row_mask:0xf bank_mask:0xf
v_add_f32_dpp v9, v9, v9 quad_perm:[2,3,0,1] row_mask:0xf bank_mask:0xf
v_add_f32_dpp v10, v10, v10 quad_perm:[2,3,0,1] row_mask:0xf bank_mask:0xf''')
        s.fstamp('alpha sums done', 'alpha')
        s.finish_stats(9, 10)
        for i in range(8):
            r = 16 + i
            a(f'''v_lshlrev_b32 v11, 16, v{r}
v_and_b32 v12, 0xffff0000, v{r}
v_fma_f32 v11, v11, v9, v10
v_fma_f32 v12, v12, v9, v10
v_cvt_pk_bf16_f32 v{r}, v11, v12''')
        a(f'''
v_lshrrev_b32 v6, 2, v0
s_mul_i32 s47, s41, 12288
s_add_u32 s47, s47, {LS}
v_bfe_u32 v11, v6, 1, 1
v_bfe_u32 v12, v6, 3, 1
v_lshl_or_b32 v11, v12, 1, v11
v_lshlrev_b32 v11, 5, v11
v_lshl_add_u32 v11, v4, 3, v11
v_lshl_add_u32 v11, v6, 7, v11
v_add_u32 v11, s47, v11
v_xor_b32 v12, 32, v11
v_xor_b32 v13, 64, v11
v_xor_b32 v14, 96, v11
ds_write_b64 v11, v[16:17]
ds_write_b64 v12, v[18:19]
ds_write_b64 v13, v[20:21]
ds_write_b64 v14, v[22:23]''')
    def finish_stats(s, vs, vq):
        s.a(f'''
v_mul_f32 v{vs}, 0x3b000000, v{vs}
v_mul_f32 v{vq}, 0x3b000000, v{vq}
v_fma_f32 v{vq}, -v{vs}, v{vs}, v{vq}
v_max_f32 v{vq}, 0, v{vq}
v_add_f32 v{vq}, 0x3727c5ac, v{vq}
v_rsq_f32 v{vq}, v{vq}
s_nop 0
v_mul_f32 v{vs}, v{vs}, v{vq}
v_sub_f32 v{vs}, 0, v{vs}
v_swap_b32 v{vs}, v{vq}''')
    def alpha_core(s, cb, adoff):
        a = s.a
        a(f'''
s_and_b32 s47, s41, 1
s_lshl_b32 s47, s47, 1
v_lshrrev_b32 v6, 1, v3
v_and_b32 v7, 1, v2
v_lshl_or_b32 v6, v7, 1, v6
v_xor_b32 v6, s47, v6
v_lshlrev_b32 v6, 5, v6
v_lshl_add_u32 v6, v4, 3, v6
v_and_b32 v7, 1, v2
v_lshl_add_u32 v7, v7, 3, v3
v_lshl_add_u32 v6, v7, 7, v6
v_lshrrev_b32 v7, 1, v2
v_mul_u32_u24 v7, 12288, v7
v_add_u32 v6, v7, v6
v_add_u32 v6, {LS}, v6
v_xor_b32 v7, 32, v6''')
        A = 96
        for dt in range(2):
            for ks in range(2):
                for h in range(2):
                    r = A + 8*dt + 4*ks + 2*h
                    a(f'ds_read_b64_tr_b16 v[{r}:{r+1}], v{6+dt} offset:{24576*ks+512*h}')
        a(f'''
s_lshr_b32 s47, s41, 1
s_lshl_b32 s47, s47, 20
s_lshl_b32 s48, s38, 10
s_add_u32 s47, s47, s48
s_lshl_b32 s48, s39, 7
s_add_u32 s47, s47, s48
s_and_b32 s48, s41, 1
s_lshl_b32 s48, s48, 6
s_add_u32 s47, s47, s48
s_add_u32 s47, s47, {adoff}
v_lshlrev_b32 v8, 15, v1
v_lshl_add_u32 v8, v2, 4, v8
s_add_u32 s48, s47, 0x80000
s_waitcnt lgkmcnt(0)''')
        C = 112
        for mt in range(2):
            for dt in range(2):
                c = C + 8*mt + 4*dt
                for ks in range(2):
                    src = '0' if ks == 0 else f'v[{c}:{c+3}]'
                    a(f'v_mfma_f32_16x16x32_bf16 v[{c}:{c+3}], v[{A+8*dt+4*ks}:{A+8*dt+4*ks+3}], v[{cb+8*mt+4*ks}:{cb+8*mt+4*ks+3}], {src}')
        for mt in range(2):
            c = C + 8*mt
            for k in range(4): a(f'v_cvt_pk_bf16_f32 v{c+k}, v{c+2*k}, v{c+2*k+1}')
            a(f'buffer_store_dwordx4 v[{c}:{c+3}], v8, s[28:31], s{47+mt} offen sc1')
    def get_nonce(s):
        a = s.a; lp = s.label('NP'); dn = s.label('ND')
        a(f'''s_mov_b32 s58, 0x40000
v_mov_b32 v5, 0
{lp}:
buffer_load_dword v6, v5, s[32:35], 0 offen sc1
s_waitcnt vmcnt(0)
v_readfirstlane_b32 s42, v6
s_cmp_lg_u32 s42, 0
s_cbranch_scc1 {dn}
s_sub_u32 s58, s58, 1
s_cmp_lg_u32 s58, 0
s_cbranch_scc1 {lp}
{dn}:''')
    def g_load(s):
        a = s.a
        a('''
s_lshr_b32 s47, s39, 2
s_and_b32 s48, s39, 3
s_lshl_b32 s48, s48, 4
s_add_u32 s47, s47, s48
s_lshl_b32 s47, s47, 5
s_add_u32 s47, s47, s38
s_lshl_b32 s47, s47, 12
v_lshrrev_b32 v5, 1, v1
v_lshlrev_b32 v5, 18, v5
v_lshl_add_u32 v5, v2, 4, v5
buffer_load_dwordx4 v[80:83], v5, s[8:11], s47 offen
buffer_load_dwordx4 v[84:87], v5, s[12:15], s47 offen''')
    def g_make(s):
        a = s.a
        a('''
s_cmp_eq_u32 s38, 0
s_cselect_b32 s50, 0, -1
s_cmp_ge_u32 s39, 4
s_cselect_b32 s51, 0x80008000, 0
s_xor_b32 s52, s51, 0x80008000
v_and_b32 v5, 1, v1
v_cmp_eq_u32 vcc, 1, v5''')
        for k in range(4):
            a(f'''v_cndmask_b32 v6, v{80+k}, v{84+k}, vcc
v_xor_b32 v7, s52, v{84+k}
v_xor_b32 v8, s51, v{80+k}
v_cndmask_b32 v7, v7, v8, vcc
v_and_b32 v7, s50, v7
v_accvgpr_write_b32 a{224+k}, v6
v_accvgpr_write_b32 a{228+k}, v7''')
    def w1_load(s):
        a = s.a
        for k in range(7):
            a(f'''v_lshlrev_b32 v5, 4, v0
v_add_u32 v5, {1024*k}, v5
v_mul_u32_u24 v6, 0x4925, v5
v_lshrrev_b32 v6, 22, v6
v_mul_u32_u24 v7, 224, v6
v_sub_u32 v5, v5, v7
v_mul_u32_u24 v6, 3584, v6
v_add_u32 v{88+k}, v5, v6''')
    def w1_issue(s):
        a = s.a
        a(f'''s_mul_i32 s54, s40, 224
s_mul_i32 s55, s41, {4*32*3584}
s_add_u32 s54, s54, s55''')
        for blk in range(4):
            for k in range(7):
                r = 112 + 28*blk + 4*k
                a(f'buffer_load_dwordx4 a[{r}:{r+3}], v{88+k}, s[16:19], s54 offen{s.nt}')
            if blk < 3: a(f's_add_u32 s54, s54, {32*3584}')
    def w1_transpose(s):
        a = s.a
        a(f'''s_mul_i32 s47, s41, {4*7168}
s_add_u32 s47, s47, {LW1}
v_lshlrev_b32 v86, 4, v0
v_add_u32 v86, s47, v86
v_lshl_add_u32 v87, v2, 2, v3
v_mul_u32_u24 v87, 224, v87
v_lshl_add_u32 v87, v4, 3, v87
v_add_u32 v87, s47, v87''')
        for blk in range(4):
            for k in range(7):
                r = 112 + 28*blk + 4*k
                a(f'ds_write_b128 v86, a[{r}:{r+3}] offset:{7168*blk + 1024*k}')
            for ft in range(7):
                for h in range(2):
                    r = 112 + 28*blk + 4*ft + 2*h
                    a(f'ds_read_b64_tr_b16 a[{r}:{r+1}], v87 offset:{7168*blk + 32*ft + 3584*h}')
        for blk in range(4):
            a(f's_waitcnt lgkmcnt({0 if blk == 3 else 0})') if blk == 0 else None
            for k in range(7):
                r = 112 + 28*blk + 4*k
                a(f'ds_write_b128 v86, a[{r}:{r+3}] offset:{7168*blk + 1024*k}')
    def touch(s, srd, vd):
        s.a(f'''s_mul_i32 s54, s37, 57344
s_lshl_b32 s55, s41, 14
s_add_u32 s54, s54, s55
v_lshlrev_b32 v{vd}, 7, v0
buffer_load_dword v{vd+1}, v{vd}, s[{srd}:{srd+3}], s54 offen''')
        sk = s.label('TCH')
        s.a(f'''s_cmp_eq_u32 s41, 3
s_cselect_b32 s55, 0, 8192
s_add_u32 s54, s54, s55
buffer_load_dword v{vd+2}, v{vd}, s[{srd}:{srd+3}], s54 offen''')
    def h_touch(s, s0, s1, v0, v1):
        s.a(f'''v_min_u32 v{v0}, 55, v0
v_lshlrev_b32 v{v0}, 7, v{v0}
s_mul_i32 s{s0}, s38, 229376
s_mul_i32 s{s1}, s41, 7168
s_add_u32 s{s0}, s{s0}, s{s1}
s_mul_i32 s{s1}, s39, 28672
s_add_u32 s{s0}, s{s0}, s{s1}
s_add_u32 s{s0}, s{s0}, {HO}
buffer_load_dword v{v1}, v{v0}, s[28:31], s{s0} offen sc1''')
    def w1_items(s):
        it = []
        for blk in range(4):
            for k in range(7):
                r = 112 + 28*blk + 4*k
                it.append(f'buffer_load_dwordx4 a[{r}:{r+3}], v{88+k}, s[16:19], s54 offen' + (f'\nv_add_u32 v{88+k}, {32*3584}, v{88+k}' if blk < 3 else ''))
        return it
    def w1_dma(s, lo, hi):
        a = s.a
        if lo >= hi: return
        a(f's_mul_i32 s50, s40, 224\ns_mul_i32 s51, s41, {4*32*3584}\ns_add_u32 s50, s50, s51\ns_mul_i32 s51, s41, {4*7168}\ns_add_u32 s51, s51, {LW1}')
        for n in range(lo, hi):
            blk, k = divmod(n, 7)
            a(f's_add_u32 m0, s51, {7168*blk + 1024*k}')
            if n > lo and (n - 1) // 7 < 3: a(f'v_add_u32 v{88 + (n-1) % 7}, {32*3584}, v{88 + (n-1) % 7}')
            a(f'buffer_load_dwordx4 v{88+k}, s[16:19], s50 offen lds')
        if (hi - 1) // 7 < 3: a(f'v_add_u32 v{88 + (hi-1) % 7}, {32*3584}, v{88 + (hi-1) % 7}')
    def w1_store(s):
        a = s.a
        a(f'''s_mul_i32 s47, s41, {4*7168}
s_add_u32 s47, s47, {LW1}
v_lshlrev_b32 v5, 4, v0
v_add_u32 v5, s47, v5''')
        for blk in range(4):
            for k in range(7):
                r = 112 + 28*blk + 4*k
                a(f'ds_write_b128 v5, a[{r}:{r+3}] offset:{7168*blk + 1024*k}')
    def w2_setup(s, i0, vt, st):
        s.a(f'''v_lshrrev_b32 v{vt}, 3, v0
v_lshlrev_b32 v{vt}, 10, v{vt}
v_and_b32 v{vt+1}, 7, v0
v_lshl_add_u32 v{vt}, v{vt+1}, 4, v{vt}
s_mul_i32 s{st}, s41, {448*1024}
s_lshl_b32 s49, s39, 7
s_add_u32 s{st}, s{st}, s49
s_add_u32 s{st}, s{st}, {8192*i0}''')
    def w2_issue(s, i0, i1, vt, st):
        for i in range(i0, i1):
            s.a(f'buffer_load_dwordx4 a[{4*i}:{4*i+3}], v{vt}, s[20:23], s{st} offen{s.nt}\ns_add_u32 s{st}, s{st}, 8192')
    def w2t_ops(s, ks):
        ops = [f'ds_write_b128 v230, a[{16*ks+4*k}:{16*ks+4*k+3}] offset:{1024*k}' for k in range(4)]
        for nt in range(4):
            for h in range(2):
                r = 16*ks + 4*nt + 2*h
                ops.append(f'ds_read_b64_tr_b16 a[{r}:{r+1}], v{231+nt} offset:{2048*h}')
        return ops
    def w2_transpose(s, ks0, ks1, lbase):
        a = s.a
        a(f'''
s_lshl_b32 s47, s41, 12
s_add_u32 s47, s47, {lbase}
v_bfe_u32 v230, v0, 1, 2
v_bfe_u32 v231, v0, 4, 2
v_xor_b32 v230, v230, v231
v_lshlrev_b32 v230, 5, v230
v_and_b32 v231, 1, v0
v_lshl_add_u32 v230, v231, 4, v230
v_lshrrev_b32 v231, 3, v0
v_lshl_add_u32 v230, v231, 7, v230
v_add_u32 v230, s47, v230
v_and_b32 v231, 1, v2
v_lshrrev_b32 v232, 1, v3
v_lshl_or_b32 v231, v231, 1, v232
v_lshlrev_b32 v231, 5, v231
v_lshl_add_u32 v231, v4, 3, v231
v_lshl_add_u32 v232, v2, 2, v3
v_lshl_add_u32 v231, v232, 7, v231
v_add_u32 v231, s47, v231
v_xor_b32 v232, 32, v231
v_xor_b32 v233, 64, v231
v_xor_b32 v234, 96, v231''')
        for ks in range(ks0, ks1):
            for op in s.w2t_ops(ks): a(op)
    def beta_consts(s):
        a = s.a
        a(f'v_lshlrev_b32 v5, 4, v0\nv_add_u32 v5, {TF16}, v5\nv_add_u32 v6, 4096, v5')
        for k in range(10):
            r = 8 + 4*k
            if k < 4: a(f'global_load_dwordx4 v[{r}:{r+3}], v5, s[44:45] offset:{1024*k}')
            elif k < 8: a(f'global_load_dwordx4 v[{r}:{r+3}], v6, s[44:45] offset:{1024*(k-4)}')
        a('v_add_u32 v6, 4096, v6')
        for k in (8, 9):
            r = 8 + 4*k
            a(f'global_load_dwordx4 v[{r}:{r+3}], v6, s[44:45] offset:{1024*(k-8)}')
    def beta_addr(s, layer):
        a = s.a
        a(f'''
s_lshl_b32 s47, s41, 8
v_lshlrev_b32 v48, 10, v2
v_lshl_add_u32 v48, v1, 4, v48
v_add_u32 v48, s47, v48
s_lshl_b32 s47, s41, 13
s_add_u32 s47, s47, {LS}
v_lshrrev_b32 v49, 1, v1
v_xor_b32 v49, v49, v2
v_lshlrev_b32 v49, 5, v49
v_and_b32 v50, 1, v1
v_lshl_add_u32 v49, v50, 4, v49
v_lshl_add_u32 v49, v2, 8, v49
v_add_u32 v49, s47, v49
v_xor_b32 v50, 128, v49
v_lshrrev_b32 v96, 1, v1
v_xor_b32 v96, v96, v2
v_lshlrev_b32 v96, 5, v96
v_and_b32 v97, 1, v1
v_lshl_add_u32 v96, v97, 4, v96
v_lshl_add_u32 v96, v2, 10, v96
s_lshl_b32 s48, s41, 8
v_add_u32 v96, s48, v96
v_xor_b32 v97, 128, v96
s_lshl_b32 s48, s41, 12
s_sub_u32 s48, 32768, s48
v_mov_b32 v98, s48
v_cmp_gt_u32 vcc, 2, v2
v_cndmask_b32 v98, 0, v98, vcc
v_and_b32 v51, 1, v2
v_lshl_or_b32 v51, v51, 2, v3
v_lshlrev_b32 v51, 5, v51
v_lshl_add_u32 v51, v4, 3, v51
v_lshl_add_u32 v52, v2, 3, v3
v_lshl_add_u32 v51, v52, 8, v51
v_add_u32 v51, s47, v51''')
        for dt in range(1, 8): a(f'v_xor_b32 v{51+dt}, {32*dt}, v51')
        UB = LS + 32768
        a(f'''
s_lshl_b32 s47, s41, 12
s_lshr_b32 s48, s41, 1
s_lshl_b32 s48, s48, 5
s_add_u32 s47, s47, s48
v_lshlrev_b32 v59, 3, v2
v_add_u32 v59, s47, v59
v_lshlrev_b32 v60, 3, v1
v_xor_b32 v59, v59, v60
v_lshl_add_u32 v59, v1, 8, v59
v_add_u32 v59, {UB}, v59
v_xor_b32 v60, 32, v59
v_xor_b32 v61, 64, v59
v_xor_b32 v62, 96, v59''')
        a(f'''
s_lshl_b32 s47, s41, 2
v_lshrrev_b32 v63, 1, v2
v_add_u32 v63, s47, v63
v_and_b32 v64, 1, v2
v_mul_u32_u24 v64, 8224, v64
v_lshl_add_u32 v64, v3, 6, v64
v_lshl_add_u32 v64, v4, 3, v64
v_lshlrev_b32 v65, 3, v63
v_xor_b32 v64, v64, v65
v_lshl_add_u32 v63, v63, 8, v64
v_add_u32 v63, {UB}, v63
v_xor_b32 v64, 32, v63
v_xor_b32 v65, 16, v63
v_add_u32 v65, 512, v65
v_xor_b32 v66, 32, v65''')
        a(f'''
v_lshlrev_b32 v67, 5, v1
v_lshl_add_u32 v67, v2, 3, v67
s_lshl_b32 s47, s38, 16
s_lshl_b32 s48, s39, 13
s_add_u32 s47, s47, s48
s_lshl_b32 s48, s41, 11
s_add_u32 s47, s47, s48
v_add_u32 v68, s47, v67''')
        if layer == 0:
            a('''
s_lshr_b32 s47, s39, 2
s_and_b32 s48, s39, 3
s_lshl_b32 s48, s48, 4
s_add_u32 s47, s47, s48
s_lshl_b32 s48, s41, 2
s_add_u32 s47, s47, s48
s_lshl_b32 s47, s47, 5
s_add_u32 s47, s47, s38
s_lshl_b32 s47, s47, 10
v_add_u32 v69, s47, v67
v_add_u32 v70, 0x10000, v69''')
        XI = LS + 8448
        a(f'''
s_lshl_b32 s47, s41, 1
v_lshrrev_b32 v71, 1, v1
v_xor_b32 v72, s47, v71
v_lshlrev_b32 v72, 4, v72
v_lshl_add_u32 v72, v71, 9, v72
v_lshl_add_u32 v72, v2, 7, v72
v_and_b32 v71, 1, v1
v_lshl_add_u32 v71, v71, 3, v72
v_add_u32 v71, {XI}, v71
v_xor_b32 v72, 16, v71''')
        a(f'''
s_lshl_b32 s47, s41, 2
v_lshrrev_b32 v73, 5, v0
v_add_u32 v73, s47, v73
v_and_b32 v74, 7, v0
v_xor_b32 v75, v74, v73
v_and_b32 v75, 7, v75
v_lshlrev_b32 v75, 4, v75
v_lshl_add_u32 v75, v73, 9, v75
v_bfe_u32 v84, v0, 3, 2
v_lshl_add_u32 v75, v84, 7, v75
v_lshlrev_b32 v73, 10, v73
v_lshl_add_u32 v73, v84, 8, v73
v_lshl_add_u32 v73, v74, 4, v73
s_lshl_b32 s47, s38, 16
s_lshr_b32 s48, s39, 1
s_lshl_b32 s48, s48, 14
s_add_u32 s47, s47, s48
s_and_b32 s48, s39, 1
s_lshl_b32 s48, s48, 7
s_add_u32 s47, s47, s48
v_add_u32 v74, s47, v73
v_add_u32 v73, {XI}, v75
v_xor_b32 v85, 32, v73''')
    def beta_resid(s, layer):
        a = s.a
        for rr in range(2):
            for T2 in range(2):
                r = 76 + 4*rr + 2*T2
                if layer == 0: a(f'buffer_load_dwordx2 v[{r}:{r+1}], v{69+rr}, s[4:7], 0 offen offset:{512*T2}')
                else: a(f'buffer_load_dwordx2 v[{r}:{r+1}], v68, s[28:31], s49 offen offset:{1024*rr+512*T2}{s.ldf}')
    def beta_main(s, layer):
        a = s.a
        ad = AD0 if layer == 0 else AD1
        a(f'''
s_sub_u32 s47, 32, s38
s_cmp_lt_u32 s39, 4
s_cselect_b32 s47, s38, s47
s_add_u32 s48, s47, 32
s_cmp_eq_u32 s38, 0
s_cselect_b32 s48, 0, s48
s_lshl_b32 s47, s47, 15
s_lshl_b32 s48, s48, 15
s_add_u32 s47, s47, {ad}
s_add_u32 s48, s48, {ad}
s_mov_b32 s49, {X2O}''')
        D = 96
        a(f's_lshl_b32 s50, s41, 13\ns_add_u32 s50, s50, {LS}\ns_lshl_b32 s51, s41, 12\ns_add_u32 s51, s51, {LS + 32768}')
        for p in range(2):
            order = list(range(8)) if p == 0 else [4, 5, 6, 7, 0, 1, 2, 3]
            for k, i in enumerate(order):
                r = D + 32*p + 4*i
                dma = p == 0 or i < 4
                if dma: a(f's_add_u32 m0, s{50+p}, {1024*i}')
                step = 4096*(i - (order[k-1] if k else 0))
                if step > 0: a(f's_add_u32 s{47+p}, s{47+p}, {step}')
                elif step < 0: a(f's_sub_u32 s{47+p}, s{47+p}, {-step}')
                if dma: a(f'buffer_load_dwordx4 v{96 + ((i>>1)&1)}, s[28:31], s{47+p} offen{s.adf} lds')
                else: a(f'buffer_load_dwordx4 v[{r}:{r+3}], v48, s[28:31], s{47+p} offen{s.adf}')
        nw = 0; nr = 0; spr = []
        if layer == 0:
            s.beta_resid(layer); nr = 4
            if s.pf2 == 2: s.touch(20, 246); nw += 2
            if s.t2 == 2:
                s.h_touch(48, 49, 246, 247); nw += 1
            if s.t1:
                a(f'''s_lshr_b32 s47, s39, 1
s_lshl_b32 s47, s47, 14
s_and_b32 s48, s39, 1
s_lshl_b32 s48, s48, 7
s_add_u32 s47, s47, s48
s_lshl_b32 s48, s41, 12
s_add_u32 s47, s47, s48
s_add_u32 s47, s47, {XNO}
s_lshl_b32 s48, s39, 13
s_lshl_b32 s49, s41, 11
s_add_u32 s48, s48, s49
s_add_u32 s48, s48, {X1O}
v_lshlrev_b32 v246, 8, v1
v_add_u32 v246, s47, v246
v_lshlrev_b32 v247, 7, v1
v_add_u32 v247, s48, v247
v_and_b32 v248, 1, v2
v_cmp_eq_u32 vcc, 1, v248
v_cndmask_b32 v246, v246, v247, vcc
s_lshl_b32 s47, s38, 16
buffer_load_dword v249, v246, s[28:31], s47 offen sc1''')
                nw += 1
            a(f's_mul_i32 s54, s40, 224\ns_mul_i32 s55, s41, {4*32*3584}\ns_add_u32 s54, s54, s55')
            s.w2_setup(0, 86, 55)
            if not s.w1e: spr.extend(s.w1_items())
            for i in range(s.nw2b):
                spr.append(f'buffer_load_dwordx4 a[{4*i}:{4*i+3}], v86, s[20:23], s55 offen\nv_add_u32 v86, 8192, v86')
        T = 160
        C = 192
        for p in range(2):
            a(f's_waitcnt vmcnt({(8 if p == 0 else 4) + nr + nw + a.nspr * (p == 1 and layer == 0)})')
            if p == 0 and spr: a.sprinkle(spr, s.every)
            if p == 0: s.fstamp('beta AD0 arrived', 'beta')
            for i in range(8):
                r = D + 32*p + 4*i
                if p == 0 or i < 4: continue
                a(f'ds_write_b128 v{49 + ((i>>1)&1)}, v[{r}:{r+3}] offset:{1024*i}')
            if p == 1:
                for dt in range(8): a(f'v_add_u32 v{51+dt}, v98, v{51+dt}')
                a(f's_waitcnt vmcnt({nr + nw + a.nspr * (layer == 0)})')
            for dt in range(8):
                for h in range(2):
                    r = T + 4*dt + 2*h
                    a(f'ds_read_b64_tr_b16 v[{r}:{r+1}], v{51+dt} offset:{1024*h}')
            for dt in range(8):
                a(f's_waitcnt lgkmcnt({14-2*dt})')
                src = '0' if p == 0 else f'v[{C+4*dt}:{C+4*dt+3}]'
                a(f'v_mfma_f32_16x16x32_bf16 v[{C+4*dt}:{C+4*dt+3}], v[{T+4*dt}:{T+4*dt+3}], a[{224+4*p}:{227+4*p}], {src}')
        for dt in range(8):
            c = C + 4*dt
            a(f'v_cvt_pk_bf16_f32 v{c}, v{c}, v{c+1}\nv_cvt_pk_bf16_f32 v{c+1}, v{c+2}, v{c+3}')
            a(f'ds_write_b64 v{59+(dt&3)}, v[{c}:{c+1}] offset:{128*(dt>>2)}')
        if layer == 0:
            a(f's_lshl_b32 s47, s41, 13\ns_add_u32 s47, s47, {LS}\ns_lshr_b32 s48, s41, 1\ns_mul_i32 s48, s48, 8188\ns_add_u32 s47, s47, s48\nv_mov_b32 v96, s47\nv_mov_b32 v97, s53\nds_write_b32 v96, v97')
        a('s_waitcnt lgkmcnt(0)\ns_barrier')
        if layer == 0:
            a(f'v_lshlrev_b32 v96, 13, v4\nv_lshrrev_b32 v97, 1, v4\nv_mul_u32_u24 v97, 8188, v97\nv_add_u32 v96, v96, v97\nv_add_u32 v96, {LS}, v96\nds_read_b32 v97, v96\ns_waitcnt lgkmcnt(0)\nv_cmp_ne_u32 vcc, 0, v97\ns_nop 4\ns_cmp_eq_u64 vcc, 0\ns_cselect_b32 s43, 1, 0')
            if s.force_slow: a('s_mov_b32 s43, 0')
        if layer == 1: s.beta_resid(layer)
        s.fstamp('beta U done', 'beta')
        for rr in range(2):
            for Tt in range(2):
                for h in range(2):
                    r = D + 8*rr + 4*Tt + 2*h
                    a(f'ds_read_b64_tr_b16 v[{r}:{r+1}], v{63+2*rr+Tt} offset:{4096*h}')
        P = 112
        for rr in range(2):
            a(f's_waitcnt lgkmcnt({4 if rr == 0 else 0})')
            for Tt in range(2):
                for ci in range(2):
                    p = P + 16*rr + 8*Tt + 4*ci
                    a(f'v_mfma_f32_16x16x32_bf16 v[{p}:{p+3}], v[{D+8*rr+4*Tt}:{D+8*rr+4*Tt+3}], v[{8+4*ci}:{11+4*ci}], 0')
        Q = 144
        for rr in range(2):
            for Tt in range(2):
                pr = P + 16*rr + 8*Tt; pi = pr + 4
                for jj in range(0, 4, 2):
                    tc = 32 + 4*Tt + jj; ts = 40 + 4*Tt + jj; t0 = 160 + 8*Tt + jj; t1 = t0 + 4
                    a(f'''v_pk_mul_f32 v[{t0}:{t0+1}], v[{pr+jj}:{pr+jj+1}], v[{tc}:{tc+1}]
v_pk_mul_f32 v[{t1}:{t1+1}], v[{pi+jj}:{pi+jj+1}], v[{tc}:{tc+1}]
v_pk_fma_f32 v[{t0}:{t0+1}], v[{pi+jj}:{pi+jj+1}], v[{ts}:{ts+1}], v[{t0}:{t0+1}]
v_pk_fma_f32 v[{t1}:{t1+1}], v[{pr+jj}:{pr+jj+1}], v[{ts}:{ts+1}], v[{t1}:{t1+1}] neg_lo:[1,0,0] neg_hi:[1,0,0]''')
                t0 = 160 + 8*Tt
                a(f'''v_cvt_pk_bf16_f32 v{Q+8*rr+2*Tt}, v{t0}, v{t0+1}
v_cvt_pk_bf16_f32 v{Q+8*rr+2*Tt+1}, v{t0+2}, v{t0+3}
v_cvt_pk_bf16_f32 v{Q+8*rr+4+2*Tt}, v{t0+4}, v{t0+5}
v_cvt_pk_bf16_f32 v{Q+8*rr+4+2*Tt+1}, v{t0+6}, v{t0+7}''')
        s.fstamp('beta twiddle done', 'beta')
        Y = 176
        for rr in range(2):
            for T2 in range(2):
                y = Y + 8*rr + 4*T2
                a(f'v_mfma_f32_16x16x32_bf16 v[{y}:{y+3}], v[{Q+8*rr}:{Q+8*rr+3}], v[{16+8*T2}:{19+8*T2}], 0')
            for T2 in range(2):
                y = Y + 8*rr + 4*T2
                a(f'v_mfma_f32_16x16x32_bf16 v[{y}:{y+3}], v[{Q+8*rr+4}:{Q+8*rr+7}], v[{20+8*T2}:{23+8*T2}], v[{y}:{y+3}]')
        a(f's_waitcnt vmcnt({min(63, nw + (a.nspr if layer == 0 else 0))})')
        for k in range(8):
            a(f'v_lshlrev_b32 v{112+2*k}, 16, v{76+k}\nv_and_b32 v{113+2*k}, 0xffff0000, v{76+k}')
        for rr in range(2):
            y = Y + 8*rr
            for k in range(4): a(f'v_pk_add_f32 v[{y+2*k}:{y+2*k+1}], v[{y+2*k}:{y+2*k+1}], v[{112+8*rr+2*k}:{113+8*rr+2*k}]')
        for rr in range(2):
            y = Y + 8*rr; S_, Q_ = 104 + 4*rr, 106 + 4*rr
            a(f'v_pk_add_f32 v[{S_}:{S_+1}], v[{y}:{y+1}], v[{y+2}:{y+3}]\nv_pk_mul_f32 v[{Q_}:{Q_+1}], v[{y}:{y+1}], v[{y}:{y+1}]')
            for k in range(1, 4):
                if k > 1: a(f'v_pk_add_f32 v[{S_}:{S_+1}], v[{S_}:{S_+1}], v[{y+2*k}:{y+2*k+1}]')
                a(f'v_pk_fma_f32 v[{Q_}:{Q_+1}], v[{y+2*k}:{y+2*k+1}], v[{y+2*k}:{y+2*k+1}], v[{Q_}:{Q_+1}]')
        for rr in range(2):
            S_, Q_ = 104 + 4*rr, 106 + 4*rr
            a(f'v_add_f32 v{100+2*rr}, v{S_}, v{S_+1}\nv_add_f32 v{101+2*rr}, v{Q_}, v{Q_+1}')
        s.wave_reduce([100, 101, 102, 103], 104, rows=True)
        for rr in range(2):
            s.finish_stats(100 + 2*rr, 101 + 2*rr)
        for rr in range(2):
            y = Y + 8*rr
            for k in range(4): a(f'v_cvt_pk_bf16_f32 v{208+4*rr+k}, v{y+2*k}, v{y+2*k+1}')
            for k in range(4): a(f'v_pk_fma_f32 v[{y+2*k}:{y+2*k+1}], v[{y+2*k}:{y+2*k+1}], v[{100+2*rr}:{101+2*rr}], v[{100+2*rr}:{101+2*rr}] op_sel:[0,0,1] op_sel_hi:[1,0,1]')
            for k in range(4): a(f'v_cvt_pk_bf16_f32 v{216+4*rr+k}, v{y+2*k}, v{y+2*k+1}')
        a.flush()
        a(f's_mov_b32 s47, {X1O + LAYOFF*layer}\ns_mov_b32 s48, {XNO + LAYOFF*layer}')
        s.fstamp('beta epilogue done', 'beta')
        for rr in range(2):
            for T2 in range(2):
                a(f'ds_write_b64 v{71+rr}, v[{216+4*rr+2*T2}:{217+4*rr+2*T2}] offset:{4096*T2}')
        def st1(f):
            for rr in range(2):
                for T2 in range(2):
                    a(f'buffer_store_dwordx2 v[{208+4*rr+2*T2}:{209+4*rr+2*T2}], v68, s[28:31], s47 offen offset:{1024*rr+512*T2}{f}')
        s.dual(st1)
        a('s_waitcnt lgkmcnt(0)\ns_barrier')
        a('ds_read_b128 v[216:219], v73\nds_read_b128 v[220:223], v85 offset:1024')
        def st2(f):
            a(f's_waitcnt lgkmcnt(1)\nbuffer_store_dwordx4 v[216:219], v74, s[28:31], s48 offen{f}')
            a(f's_waitcnt lgkmcnt(0)\nbuffer_store_dwordx4 v[220:223], v74, s[28:31], s48 offen offset:2048{f}')
        s.dual(st2)
        s.fstamp('beta stores issued', 'beta')
    def wave_reduce(s, rs, t, rows):
        a = s.a
        if rows:
            for ctl in ('quad_perm:[1,0,3,2]', 'quad_perm:[2,3,0,1]', 'row_half_mirror', 'row_mirror'):
                for r in rs: a(f'v_add_f32_dpp v{r}, v{r}, v{r} {ctl} row_mask:0xf bank_mask:0xf')
        for sw in ('v_permlane16_swap_b32', 'v_permlane32_swap_b32'):
            for k, r in enumerate(rs): a(f'v_mov_b32 v{t+k}, v{r}')
            for k, r in enumerate(rs): a(f'{sw} v{r}, v{t+k}')
            for k, r in enumerate(rs): a(f'v_add_f32 v{r}, v{r}, v{t+k}')
    def gamma(s):
        a = s.a
        XB, A, C = 8, 136, 192
        a(f'''
v_lshlrev_b32 v5, 4, v0
s_lshl_b32 s47, s46, 16
s_and_b32 s48, s41, 1
s_lshl_b32 s48, s48, 15
s_add_u32 s47, s47, s48
s_add_u32 s47, s47, {XNO + LAYOFF*s.lay}
s_add_u32 s48, s47, 16384''')
        issued = []
        def ldx(ks):
            for rt in range(2):
                r = XB + 8*ks + 4*rt
                a(f'buffer_load_dwordx4 v[{r}:{r+3}], v5, s[28:31], s{47+rt} offen offset:{1024*(ks&3)}{s.ldf}'); issued.append(ks)
            if (ks & 3) == 3 and ks < 15: a('s_add_u32 s47, s47, 4096\ns_add_u32 s48, s48, 4096')
        nx0 = 4 if s.lay == 0 else s.gx0
        for ks in range(nx0): ldx(ks)
        nx = [nx0]; nw2 = [s.nw2b]; th = [0]
        if s.lay == 0: s.w2_setup(s.nw2b, 250, 55)
        a(f'''v_lshl_add_u32 v252, v2, 2, v3
v_mul_u32_u24 v252, 224, v252
v_lshl_add_u32 v252, v4, 3, v252
v_add_u32 v252, {LW1}, v252
v_add_u32 v253, 57344, v252''')
        def rd(n, h):
            ks = n // 7; ft = n % 7; b = 252 if ks < 8 else 253; o = 7168*(ks & 7) + 32*ft
            r = A + 4*(n % 8)
            a(f'ds_read_b64_tr_b16 v[{r+2*h}:{r+2*h+1}], v{b} offset:{o + 3584*h}')
        P = 8
        def pack(ft):
            for rt in range(2):
                c = C + 8*ft + 4*rt; p = P + 16*rt + 2*ft
                a(f'v_cvt_pk_bf16_f32 v{p}, v{c}, v{c+1}\nv_cvt_pk_bf16_f32 v{p+1}, v{c+2}, v{c+3}')
                a(f'v_pk_max_i16 v{p}, v{p}, 0\nv_pk_max_i16 v{p+1}, v{p+1}, 0')
        for n in range(7): rd(n, 0); rd(n, 1)
        for ks in range(16):
            last = max(k for k, t in enumerate(issued) if t == ks)
            a(f's_waitcnt vmcnt({len(issued) - 1 - last})')
            if ks in (0, 6): s.fstamp(f'gamma ks{ks}', 'gamma')
            if ks == 12:
                a(f'''s_mul_i32 s47, s46, 229376
s_and_b32 s48, s41, 1
s_mul_i32 s48, s48, {2*57344}
s_add_u32 s47, s47, s48
s_mul_i32 s48, s40, 7
s_lshr_b32 s48, s48, 1
s_lshl_b32 s48, s48, 10
s_add_u32 s47, s47, s48
s_add_u32 s47, s47, {HO + LAYOFF*s.lay}
s_add_u32 s48, s47, 57344
v_lshlrev_b32 v249, 3, v0''')
            for ft in range(7):
                n = 7*ks + ft
                a(f's_waitcnt lgkmcnt({2*min(6, 111-n)})')
                r = A + 4*(n % 8)
                for rt in range(2):
                    c = C + 8*ft + 4*rt
                    src = '0' if ks == 0 else f'v[{c}:{c+3}]'
                    a(f'v_mfma_f32_16x16x32_bf16 v[{c}:{c+3}], v[{r}:{r+3}], v[{XB+8*ks+4*rt}:{XB+8*ks+4*rt+3}], {src}')
                    if n + 7 < 112: rd(n + 7, rt)
                if ks == 15 and ft >= 2: pack(ft - 2)
                if ft in (1, 4):
                    if s.lay == 1 and ft == 4 and s.gx1: pass
                    elif nx[0] < 16: ldx(nx[0]); nx[0] += 1
                    elif s.lay == 0 and s.t2 == 1 and not th[0]:
                        th[0] = 1
                        s.h_touch(52, 53, 254, 255); issued.append('t')
                    elif s.lay == 0 and nw2[0] < 56:
                        k = min(max(1, (56 - s.nw2b + 18) // 19), 56 - nw2[0])
                        s.w2_issue(nw2[0], nw2[0] + k, 250, 55); issued.extend(['w']*k); nw2[0] += k
        pack(5); pack(6)
        if s.lay == s.finel: s.stamp('gamma mfma done')
        if s.lay == 0:
            s.w2_issue(nw2[0], 56, 250, 55)
        od = s.label('ODD'); jn = s.label('GJ')
        a(f's_bitcmp1_b32 s40, 0\ns_cbranch_scc1 {od}')
        def st_even(f):
            for rt in range(2):
                p = P + 16*rt
                for k in range(3): a(f'buffer_store_dwordx4 v[{p+4*k}:{p+4*k+3}], v5, s[28:31], s{47+rt} offen offset:{1024*k}{f}')
                a(f'buffer_store_dwordx2 v[{p+12}:{p+13}], v249, s[28:31], s{47+rt} offen offset:3072{f}')
        s.dual(st_even)
        a(f's_branch {jn}\n{od}:')
        def st_odd(f):
            for rt in range(2):
                p = P + 16*rt
                a(f'buffer_store_dwordx2 v[{p}:{p+1}], v249, s[28:31], s{47+rt} offen offset:512{f}')
                for k in range(3): a(f'buffer_store_dwordx4 v[{p+2+4*k}:{p+5+4*k}], v5, s[28:31], s{47+rt} offen offset:{1024*(k+1)}{f}')
        s.dual(st_odd)
        a(f'{jn}:')
    def delta_addr(s):
        a = s.a
        a('''
s_lshl_b32 s47, s38, 16
s_lshl_b32 s48, s41, 14
s_add_u32 s47, s47, s48
s_lshl_b32 s48, s39, 7
s_add_u32 s47, s47, s48
v_lshlrev_b32 v6, 10, v1
v_lshl_add_u32 v6, v2, 3, v6
v_add_u32 v6, s47, v6
v_lshlrev_b32 v5, 4, v0''')
    def delta(s, layer):
        a = s.a
        C, R, X = 8, 72, 200
        a(f's_mov_b32 s49, {X1O + LAYOFF*layer}\nv_lshlrev_b32 v7, 3, v0')
        a(f's_mul_i32 s47, s38, 229376\ns_mul_i32 s48, s41, 14336\ns_add_u32 s47, s47, s48\ns_add_u32 s47, s47, {HO + LAYOFF*layer}')
        for sl in range(4):
            a(f's_add_u32 s48, s41, {sl}\ns_and_b32 s48, s48, 3\ns_mul_i32 s48, s48, 57344\ns_add_u32 s{50+sl}, s47, s48')
        issued = []
        def ld(st):
            for sl in range(4):
                r = R + 16*(st & 7) + 4*sl
                if st in (3, 10):
                    a(f'buffer_load_dwordx2 v[{r}:{r+1}], v7, s[28:31], s{50+sl} offen offset:{1024*(st&3)}{s.ldf}')
                    a(f'buffer_load_dwordx2 v[{r+2}:{r+3}], v7, s[28:31], s{50+sl} offen offset:{1024*(st&3)+512}{s.ldf}')
                    issued.extend([st, st])
                else:
                    a(f'buffer_load_dwordx4 v[{r}:{r+3}], v5, s[28:31], s{50+sl} offen offset:{1024*(st&3)}{s.ldf}')
                    issued.append(st)
            if (st & 3) == 3:
                for sl in range(4): a(f's_add_u32 s{50+sl}, s{50+sl}, 4096')
        for st in range(3): ld(st)
        nl = [3]
        def red_w(sl):
            for nt in range(4):
                c = C + 16*sl + 4*nt
                a(f'ds_write_b128 v{72+sl}, v[{c}:{c+3}] offset:{4096*(sl-1)+1024*nt}')
        for st in range(14):
            last = max(k for k, t in enumerate(issued) if t == st)
            ops = []
            if layer == 0:
                a(f's_waitcnt vmcnt({len(issued) - 1 - last}) lgkmcnt({12 if st < 13 else 0})')
                if st + 2 < 14: ops = s.w2t_ops(st + 2)
                if st == 13: a('s_barrier')
            else:
                a(f's_waitcnt vmcnt({len(issued) - 1 - last})')
            if st in (0, 4, 8): s.fstamp(f'delta st{st}', 'delta')
            for sl in ((0, 1, 2, 3) if st < 13 else (1, 2, 3, 0)):
                for nt in range(4):
                    c = C + 16*sl + 4*nt; r = R + 16*(st & 7) + 4*sl
                    src = '0' if st == 0 else f'v[{c}:{c+3}]'
                    a(f'v_mfma_f32_16x16x32_bf16 v[{c}:{c+3}], a[{16*st+4*nt}:{16*st+4*nt+3}], v[{r}:{r+3}], {src}')
                    if ops: a(ops.pop(0))
                if st == 13 and sl in (2, 3, 0): red_w({2: 1, 3: 2, 0: 3}[sl])
            for _ in range(2):
                if nl[0] < 14 and nl[0] <= st + 8: ld(nl[0]); nl[0] += 1
            if st == 6:
                for nt in range(4):
                    a(f'buffer_load_dwordx2 v[{X+2*nt}:{X+2*nt+1}], v6, s[28:31], s49 offen offset:{32*nt}{s.ldf}'); issued.append('x')
                if layer == 0: s.alpha_consts(208, 228); issued.extend(['c']*4)
            if st == 10:
                a(f'v_add_u32 v72, {LS}, v5')
                for sl in range(1, 4):
                    a(f's_add_u32 s47, s41, {sl}\ns_and_b32 s47, s47, 3\ns_mul_i32 s47, s47, 12288\nv_add_u32 v{72+sl}, s47, v72')
                a('s_mul_i32 s47, s41, 12288\nv_add_u32 v72, s47, v72')
                if layer == 0:
                    a(f'''s_lshl_b32 s47, s38, 13
s_lshl_b32 s48, s41, 11
s_add_u32 s47, s47, s48
s_add_u32 s47, s47, {STO}
s_lshl_b32 s48, s39, 4
s_add_u32 s48, s48, s47
v_lshlrev_b32 v80, 7, v1
s_add_u32 s56, s42, 48
v_mov_b32 v81, s56''')
                else:
                    a('''s_lshl_b32 s47, s41, 1
v_lshrrev_b32 v7, 3, v1
v_add_u32 v7, s47, v7
v_lshrrev_b32 v76, 2, v7
v_and_b32 v7, 3, v7
v_lshl_add_u32 v76, v7, 4, v76
v_and_b32 v7, 7, v1
v_lshl_add_u32 v76, v7, 1, v76
v_lshlrev_b32 v76, 5, v76
v_add_u32 v76, s38, v76
v_lshlrev_b32 v76, 10, v76
v_lshl_add_u32 v82, v2, 3, v76
s_lshl_b32 s47, s39, 7''')
        if layer == s.finel: s.stamp('delta mfma done')
        s.fstamp('dtail mfma done', 'dtail')
        a('s_waitcnt lgkmcnt(0)\ns_barrier')
        s.fstamp('dtail bar2', 'dtail')
        for sl in range(1, 4):
            for nt in range(4):
                c = C + 16*sl + 4*nt
                a(f'ds_read_b128 v[{c}:{c+3}], v72 offset:{4096*(sl-1)+1024*nt}')
        a('s_waitcnt vmcnt(0)')
        for nt in range(4):
            for k in range(2):
                c = C + 4*nt + 2*k
                a(f'''v_lshlrev_b32 v76, 16, v{X+2*nt+k}
v_and_b32 v77, 0xffff0000, v{X+2*nt+k}
v_pk_add_f32 v[{c}:{c+1}], v[{c}:{c+1}], v[76:77]''')
        for sl in range(1, 4):
            a(f's_waitcnt lgkmcnt({4*(3-sl)})')
            for k in range(0, 16, 2): a(f'v_pk_add_f32 v[{C+k}:{C+k+1}], v[{C+k}:{C+k+1}], v[{C+16*sl+k}:{C+16*sl+k+1}]')
        s.fstamp('dtail reduced', 'dtail')
        for k in range(8): a(f'v_cvt_pk_bf16_f32 v{X+k}, v{C+2*k}, v{C+2*k+1}')
        if layer == 1:
            for nt in range(4): a(f'buffer_store_dwordx2 v[{X+2*nt}:{X+2*nt+1}], v82, s[24:27], s47 offen offset:{32*nt}')
            return
        S_, Q_ = C + 16, C + 18
        a(f'v_pk_add_f32 v[{S_}:{S_+1}], v[{C}:{C+1}], v[{C+2}:{C+3}]\nv_pk_mul_f32 v[{Q_}:{Q_+1}], v[{C}:{C+1}], v[{C}:{C+1}]')
        for k in range(1, 8):
            if k > 1: a(f'v_pk_add_f32 v[{S_}:{S_+1}], v[{S_}:{S_+1}], v[{C+2*k}:{C+2*k+1}]')
            a(f'v_pk_fma_f32 v[{Q_}:{Q_+1}], v[{C+2*k}:{C+2*k+1}], v[{C+2*k}:{C+2*k+1}], v[{Q_}:{Q_+1}]')
        a(f'v_add_f32 v76, v{S_}, v{S_+1}\nv_add_f32 v78, v{Q_}, v{Q_+1}')
        s.wave_reduce([76, 78], 82, rows=False)
        a('v_mov_b32 v77, v81\nv_mov_b32 v79, v81')
        def st(f):
            a('s_mov_b64 exec, 0xffff')
            a(f'buffer_store_dwordx4 v[76:79], v80, s[28:31], s48 offen{f}')
            a('s_mov_b64 exec, -1')
        s.dual(st)
        s.fstamp('dtail granule', 'dtail')
    def delta_norm(s):
        a = s.a
        C = 8
        lp = s.label('SP'); dn = s.label('SD')
        a(f'''v_lshl_add_u32 v80, v2, 5, v80
s_mov_b32 s58, 0x40000
{lp}:
buffer_load_dwordx4 v[72:75], v80, s[28:31], s47 offen sc1
buffer_load_dwordx4 v[76:79], v80, s[28:31], s47 offen offset:16 sc1
s_waitcnt vmcnt(0)
v_cmp_ne_u32 vcc, s56, v73
v_cmp_ne_u32 s[48:49], s56, v75
s_nop 1
s_or_b64 vcc, vcc, s[48:49]
v_cmp_ne_u32 s[48:49], s56, v77
s_nop 1
s_or_b64 vcc, vcc, s[48:49]
v_cmp_ne_u32 s[48:49], s56, v79
s_nop 1
s_or_b64 vcc, vcc, s[48:49]
s_cbranch_vccz {dn}
s_sub_u32 s58, s58, 1
s_cmp_lg_u32 s58, 0
s_cbranch_scc1 {lp}
{dn}:
v_add_f32 v76, v72, v76
v_add_f32 v77, v74, v78''')
        s.stamp('stats poll')
        s.fstamp('dtail stats', 'dtail')
        def stx(f):
            for nt in range(4): a(f'buffer_store_dwordx2 v[{200+2*nt}:{201+2*nt}], v6, s[28:31], s57 offen offset:{32*nt}{f}')
        a(f's_mov_b32 s57, {X2O}')
        s.dual(stx)
        s.wave_reduce([76, 77], 78, rows=False)
        s.finish_stats(76, 77)
        for k in range(0, 16, 2): a(f'v_pk_fma_f32 v[{C+k}:{C+k+1}], v[{C+k}:{C+k+1}], v[76:77], v[76:77] op_sel:[0,0,1] op_sel_hi:[1,0,1]')
        for k in range(0, 16, 2): a(f'v_cvt_pk_bf16_f32 v{C+k//2}, v{C+k}, v{C+k+1}')
        for nt in range(4):
            a(f'ds_write_b64 v{226 if nt < 2 else 227}, v[{C+2*nt}:{C+2*nt+1}] offset:{16*(nt&1)}')
    def xtile_addr(s):
        s.a(f'''
s_mul_i32 s48, s41, 12288
s_add_u32 s48, s48, {LS}
v_bfe_u32 v226, v1, 1, 1
v_bfe_u32 v227, v1, 3, 1
v_lshl_or_b32 v226, v227, 1, v226
v_and_b32 v227, 1, v2
v_xor_b32 v226, v226, v227
v_lshlrev_b32 v226, 5, v226
v_lshrrev_b32 v227, 1, v2
v_lshl_add_u32 v226, v227, 3, v226
v_lshl_add_u32 v226, v1, 7, v226
v_add_u32 v226, s48, v226
v_xor_b32 v227, 64, v226''')
    def bar_addr(s, arr, v):
        s.a(f'''
v_lshrrev_b32 v{v}, 1, v0
v_and_b32 v{v+1}, 3, v{v}
v_lshrrev_b32 v{v}, 2, v{v}
v_lshl_add_u32 v{v}, v{v+1}, 6, v{v}
v_and_b32 v{v+1}, 1, v0
v_lshl_add_u32 v{v}, v{v+1}, 3, v{v}
s_lshl_b32 s47, s41, 4
v_add_u32 v{v}, s47, v{v}
v_lshlrev_b32 v{v}, 6, v{v}
v_add_u32 v{v}, {FLO + arr*0x8000}, v{v}''')
    def barrier0(s):
        a = s.a; pf = s.label('PF'); jn = s.label('PJ'); lp = s.label('BP'); dn = s.label('BD')
        if s.pwb:
            s.bar_addr(0, 222)
            a('s_mov_b32 s56, s42')
            s.poll(222, 223, 56, maskxcc=True)
            a('''v_and_b32 v223, 15, v223
v_cmp_ne_u32 vcc, s59, v223
s_lshl_b32 s47, s36, 3
s_lshl_b64 s[48:49], 0xff, s47
s_and_b64 s[48:49], s[48:49], vcc
s_cmp_lg_u64 s[48:49], 0
s_cselect_b32 s53, 1, 0''')
            return
        a(f's_mov_b32 s53, 0\ns_cmp_ge_u32 s41, 2\ns_cbranch_scc1 {pf}')
        s.bar_addr(0, 222)
        a(f'''s_mov_b32 s56, s42
s_mov_b32 s58, 0x40000
{lp}:
buffer_load_dword v223, v222, s[28:31], 0 offen sc1
buffer_load_dword v224, v222, s[28:31], 0 offen offset:2048 sc1
s_waitcnt vmcnt(0)
v_and_b32 v225, 0xfffffff0, v223
v_and_b32 v226, 0xfffffff0, v224
v_cmp_ne_u32 vcc, s56, v225
v_cmp_ne_u32 s[48:49], s56, v226
s_nop 4
s_or_b64 vcc, vcc, s[48:49]
s_cbranch_vccz {dn}
s_sub_u32 s58, s58, 1
s_cmp_lg_u32 s58, 0
s_cbranch_scc1 {lp}
{dn}:
v_and_b32 v223, 15, v223
v_and_b32 v224, 15, v224
v_cmp_ne_u32 vcc, s59, v223
v_cmp_ne_u32 s[48:49], s59, v224
s_nop 4
s_or_b64 vcc, vcc, s[48:49]
s_lshl_b32 s47, s36, 3
s_lshl_b64 s[48:49], 0xff, s47
s_and_b64 s[48:49], s[48:49], vcc
s_cmp_lg_u64 s[48:49], 0
s_cselect_b32 s53, 1, 0
s_branch {jn}
{pf}:''')
        if s.pf1 == 2:
            a('''s_mul_i32 s54, s37, 57344
s_sub_u32 s55, s41, 2
s_lshl_b32 s55, s55, 15
s_add_u32 s54, s54, s55
s_cmp_eq_u32 s41, 3
s_cselect_b32 s55, 0, 8192
v_lshlrev_b32 v240, 7, v0
buffer_load_dword v241, v240, s[16:19], s54 offen
s_add_u32 s54, s54, 8192
buffer_load_dword v242, v240, s[16:19], s54 offen
s_add_u32 s54, s54, 8192
buffer_load_dword v243, v240, s[16:19], s54 offen
s_add_u32 s54, s54, s55
buffer_load_dword v244, v240, s[16:19], s54 offen''')
        a(f'{jn}:\ns_barrier')
    def grp16_base(s, arr, dst):
        s.a(f'''s_lshr_b32 s{dst}, s37, 4
s_lshl_b32 s48, s36, 1
s_add_u32 s{dst}, s{dst}, s48
s_lshl_b32 s{dst}, s{dst}, 8
s_add_u32 s{dst}, s{dst}, {FLO + arr*0x8000}''')
    def grp16_poll(s, arr):
        s.grp16_base(arr, 47)
        s.a(f'''s_lshl_b32 s48, s41, 6
s_add_u32 s47, s47, s48
v_lshlrev_b32 v222, 2, v1
v_add_u32 v222, s47, v222
s_add_u32 s56, s42, {16*arr}''')
        s.poll(222, 223, 56)
    def grp16_signal(s, arr):
        s.grp16_base(arr, 54)
        s.a('s_lshl_b32 s48, s40, 4\ns_add_u32 s54, s54, s48\ns_lshl_b32 s48, s41, 2\ns_add_u32 s54, s54, s48')
        s.wave_signal(arr, 54)
    def dump_stamps(s):
        if not s.stamps: return
        a = s.a
        a(f's_lshl_b32 s47, s2, 2\ns_add_u32 s47, s47, s41\ns_lshl_b32 s47, s47, 7\ns_add_u32 s47, s47, {DBO}\nv_mov_b32 v5, s47\ns_mov_b64 exec, 1')
        for k in range(s.nst):
            a(f'v_mov_b32 v6, s{60+2*k}\nbuffer_store_dword v6, v5, s[28:31], 0 offen offset:{4*k}')
        for k, r in enumerate((43, 59, 53, 98, 100)):
            a(f'v_mov_b32 v6, s{r}\nbuffer_store_dword v6, v5, s[28:31], 0 offen offset:{4*(24+k)}')
        a('s_mov_b64 exec, -1')
    def build(s):
        a = s.a
        s.prologue()
        s.alpha_in1(); s.alpha_consts(128); s.g_load()
        npre = 0
        if s.pretouch:
            a(f'v_lshlrev_b32 v95, 20, v0\nv_min_u32 v95, {WSZ - 4}, v95\nbuffer_load_dword v96, v95, s[28:31], 0 offen\nv_and_b32 v95, 1, v0\nv_lshlrev_b32 v95, 20, v95\nbuffer_load_dword v96, v95, s[24:27], 0 offen')
            npre = 2
        if s.cpf:
            a(f'''s_lshl_b32 s47, s37, 12
s_lshl_b32 s48, s41, 10
s_add_u32 s47, s47, s48
v_lshlrev_b32 v95, 4, v0
v_add_u32 v95, s47, v95
v_min_u32 v95, TABLE-{KN}_kernel+{len(tables())*4 - 16}, v95
s_sub_u32 s48, s44, TABLE-{KN}_kernel
s_subb_u32 s49, s45, 0
global_load_dwordx4 v[248:251], v95, s[48:49]''')
            npre += 1
        if s.htouch:
            if s.htouch == 1:
                a(f'v_min_u32 v238, 6, v0\nv_lshlrev_b32 v238, 12, v238\ns_mov_b32 s55, 0')
            else:
                a(f'v_min_u32 v238, 55, v0\nv_lshlrev_b32 v238, 7, v238\ns_mul_i32 s55, s41, 7168')
            a(f's_mul_i32 s54, s38, 229376\ns_add_u32 s54, s54, s55\ns_mul_i32 s55, s39, 28672\ns_add_u32 s54, s54, s55\ns_add_u32 s54, s54, {HO}\nbuffer_load_dword v239, v238, s[28:31], s54 offen sc1')
            npre += 1
        if s.pf1 == 1: s.touch(16, 240); npre += 2
        if s.pf2 == 1: s.touch(20, 244); npre += 2
        s.w1_load()
        if s.w1d:
            e0, e1, e2 = s.w1d
            s.w1_dma(0, e0); npre += e0
        elif s.w1e:
            a(f's_mul_i32 s54, s40, 224\ns_mul_i32 s55, s41, {4*32*3584}\ns_add_u32 s54, s54, s55')
            it = s.w1_items()
            for x in it[:s.w1e]: a(x)
            npre += s.w1e
        a(f's_waitcnt vmcnt({6 + npre})')
        s.stamp('x arrived')
        s.fstamp('alpha x arrived', 'alpha')
        if s.w1d:
            s.w1_dma(e0, e0 + e1); npre += e1
        elif s.w1e:
            for x in it[s.w1e:]: a(x)
            npre += 28 - s.w1e
        s.fstamp('alpha w1 issued', 'alpha')
        a('v_mov_b32 v95, 0\nbuffer_load_dword v95, v95, s[32:35], 0 offen sc1')
        s.alpha_ln1()
        s.fstamp('alpha ln done', 'alpha')
        a(f's_waitcnt vmcnt({3 + npre}) lgkmcnt(0)\ns_barrier')
        s.fstamp('alpha tile bar', 'alpha')
        s.alpha_core(128, AD0)
        s.fstamp('alpha stores issued', 'alpha')
        vm = 0
        if s.w1d: s.w1_dma(e0 + e1, e0 + e1 + e2); vm = e2
        a(f's_waitcnt vmcnt({vm})')
        dn = s.label('ND')
        a(f'''v_readfirstlane_b32 s42, v95
s_cmp_lg_u32 s42, 0
s_cbranch_scc1 {dn}''')
        s.get_nonce()
        a(f'{dn}:')
        a('s_lshl_b32 s54, s2, 6')
        s.signal(0, 54, 0, dual=False, xcc=True, vm=vm)
        s.stamp('sig0')
        if s.w1d: s.w1_dma(e0 + e1 + e2, 28)
        s.g_make()
        if s.w1e and not s.w1d: s.w1_store()
        s.beta_consts(); s.beta_addr(0)
        for layer in range(2):
            arr = 4*layer; s.lay = layer
            if layer == 1:
                a('s_waitcnt lgkmcnt(0)\ns_barrier')
                s.lay = 0; s.fstamp('dtail xtile', 'dtail')
                s.alpha_core(208, AD1)
                s.fstamp('dtail AD issued', 'dtail'); s.lay = 1
                a('s_lshl_b32 s54, s2, 6')
                s.signal(4, 54, 4, dual=False)
                s.stamp('sig4')
                s.lay = 0; s.fstamp('dtail sig4', 'dtail'); s.lay = 1
                s.beta_consts(); s.beta_addr(1)
            if layer == 0: s.barrier0()
            else:
                s.bar_addr(arr, 222)
                a(f's_add_u32 s56, s42, {16*arr}')
                s.poll(222, 223, 56)
            s.stamp('bar done')
            s.beta_main(layer)
            s.grp16_signal(arr + 1)
            if layer == s.finel: s.stamp('beta sig')
            if s.stop == f'beta{layer}': return s.end()
            if layer == 0 and not s.w1e: s.w1_store()
            s.grp16_poll(arr + 1)
            if layer == 0 and not s.w1e: a('s_waitcnt lgkmcnt(0)\ns_barrier')
            s.stamp('beta poll')
            s.gamma()
            s.grp16_signal(arr + 2)
            if layer == s.finel: s.stamp('gamma sig')
            if s.stop == f'gamma{layer}': return s.end()
            if layer == 0: s.w2_transpose(0, 2, LS + 32768)
            s.delta_addr()
            if layer == 0: s.xtile_addr()
            s.grp16_poll(arr + 2)
            s.stamp('gamma poll')
            s.delta(layer)
            if layer == 0:
                s.delta_norm()
                if s.stop == 'delta0': return s.end()
        return s.end()
    def end(s):
        a = s.a
        s.stamp('end')
        if s.stamps: a('s_memtime s[100:101]\ns_waitcnt lgkmcnt(0)')
        s.dump_stamps()
        a('END:\ns_endpgm')
        body, nn = a.finish()
        tab = tables()
        t = '\n'.join('.long ' + ','.join('0x%08x' % x for x in tab[i:i+8]) for i in range(0, len(tab), 8))
        hdr = open('cdna_kernels/' + KN + '.s.ref').read().split('; Override')[0]
        txt = hdr + f'''; Single persistent kernel: LN + FFT-factorised FNet mixing + FFN GEMMs, 256 workgroups (one per CU).
; @launch grid=(256,1,1) block=(256,1,1) lds=163840
.amdgcn_target "amdgcn-amd-amdhsa--gfx950"
.text
.globl {KN}_kernel
.p2align 8
.type {KN}_kernel,@function
{KN}_kernel:
{body}
.p2align 8
.type TABLE,@object
TABLE:
{t}
.size TABLE, {len(tab)*4}
.section .rodata,"a"
.p2align 6
.amdhsa_kernel {KN}_kernel
  .amdhsa_next_free_vgpr 512
  .amdhsa_next_free_sgpr 102
  .amdhsa_accum_offset 256
  .amdhsa_group_segment_fixed_size 0
  .amdhsa_kernarg_size 88
  .amdhsa_user_sgpr_count 2
  .amdhsa_user_sgpr_kernarg_segment_ptr 1
  .amdhsa_system_sgpr_workgroup_id_x 1
  .amdhsa_float_denorm_mode_32 3
.end_amdhsa_kernel
'''
        return txt
if __name__ == '__main__':
    import argparse
    ap = argparse.ArgumentParser(); ap.add_argument('out'); ap.add_argument('--stop'); ap.add_argument('--stamps', action='store_true'); ap.add_argument('--slow', action='store_true'); ap.add_argument('--fine'); ap.add_argument('--pre', action='store_true'); ap.add_argument('--cpf', action='store_true'); ap.add_argument('--nt', action='store_true'); ap.add_argument('--adsc1', action='store_true'); ap.add_argument('--wsoff', type=lambda x: int(x, 0), default=0); ap.add_argument('--gx0', type=int, default=4); ap.add_argument('--gx1', type=int, default=0); ap.add_argument('--w1e', type=int, default=1); ap.add_argument('--t1', type=int, default=0); ap.add_argument('--t2', type=int, default=1); ap.add_argument('--stf', default=''); ap.add_argument('--htouch', type=int, default=0); ap.add_argument('--pf1', type=int, default=0); ap.add_argument('--pf2', type=int, default=0); ap.add_argument('--nw2b', type=int, default=28); ap.add_argument('--every', type=int, default=12); ap.add_argument('--dma', type=int, default=1); ap.add_argument('--pwb', type=int, default=1); ap.add_argument('--w1d', default='1,0,0')
    o = ap.parse_args()
    g = Gen(o.stop, o.stamps, o.slow, o.fine); g.pretouch = o.pre; g.cpf = o.cpf; g.nt = ' nt' if o.nt else ''; g.adf = ' sc1'; g.t1 = o.t1; g.t2 = o.t2; g.pf1 = o.pf1; g.w1e = o.w1e; g.gx0 = o.gx0; g.gx1 = o.gx1; g.wsoff = o.wsoff; g.stf = (' ' + o.stf.replace('+', ' ')) if o.stf else ''; g.htouch = o.htouch; g.pf2 = o.pf2; g.nw2b = o.nw2b; g.every = o.every; g.dma = o.dma; g.pwb = o.pwb; g.w1d = tuple(int(t) for t in o.w1d.split(',')) if o.w1d != 'off' else None
    open(o.out, 'w').write(g.build())
```
